```python
import torch

def _softmax(x, axis=-1):
    return torch.softmax(x, dim=axis)
def _gelu(x):
    return torch.nn.functional.gelu(x, approximate="tanh")
def _silu(x):
    return torch.nn.functional.silu(x)
def _sigmoid(x):
    return torch.sigmoid(x)
def _layernorm(x, axis=-1, eps=1e-5):
    m = x.mean(dim=axis, keepdim=True)
    v = x.var(dim=axis, keepdim=True, unbiased=False)
    return (x - m) / torch.sqrt(v + eps)
def _scatter_add(tgt, idx, src, axis=0):
    return tgt.clone().index_add_(axis, idx, src)
def _segment_sum(src, seg, n):
    out = torch.zeros((n,) + src.shape[1:], dtype=src.dtype)
    return out.index_add_(0, seg, src)
def _pad(x, pw):
    flat = tuple(v for pair in reversed(pw) for v in pair)
    return torch.nn.functional.pad(x, flat)

kernel_name = 'standalone__geglu_ffn__prompt'

def setup_inputs():

    _w = (lambda a: (lambda t: t.to(torch.bfloat16) if t.is_floating_point() else t)(torch.as_tensor(a)))
    B, S, D, F = 1, 2048, 512, 1792
    return {
        "x": _w((lambda *s: torch.randn(*s, dtype=torch.bfloat16) * 0.05)(B, S, D)),
        "w_gate": _w((lambda *s: torch.randn(*s, dtype=torch.bfloat16) * 0.05)(D, F)),
        "w_up": _w((lambda *s: torch.randn(*s, dtype=torch.bfloat16) * 0.05)(D, F)),
        "w_down": _w((lambda *s: torch.randn(*s, dtype=torch.bfloat16) * 0.05)(F, D)),
    }

def reference(x, w_gate, w_up, w_down):
    return (_gelu(x @ w_gate) * (x @ w_up)) @ w_down
```

```python
KNAME = "standalone__geglu_ffn__prompt_kernel"

HEADER_COMMENT = """; Kernarg layout for this problem (56 bytes, ptrs only, base s[0:1]):
"""

class Asm:
    def __init__(self):
        self.lines = []
    def __call__(self, s=""):
        for l in s.split("\n"):
            self.lines.append("    " + l.strip() if l.strip() and not l.strip().endswith(":") else l.strip())
    def label(self, n):
        self.lines.append(n + ":")
    def c(self, s):
        self.lines.append("    ; " + s)
    def text(self):
        return "\n".join(self.lines) + "\n"

def kernel_begin(name):
    return f""".globl {name}
.p2align 8
.type {name},@function
{name}:
"""

def kd(name, vgpr, sgpr=102, accum=None):
    if accum is None:
        accum = min(256, (vgpr + 3) // 4 * 4)
    return f""".p2align 6
.amdhsa_kernel {name}
  .amdhsa_next_free_vgpr {vgpr}
  .amdhsa_next_free_sgpr {sgpr}
  .amdhsa_accum_offset {accum}
  .amdhsa_group_segment_fixed_size 0
  .amdhsa_kernarg_size 56
  .amdhsa_user_sgpr_count 2
  .amdhsa_user_sgpr_kernarg_segment_ptr 1
  .amdhsa_system_sgpr_workgroup_id_x 1
.end_amdhsa_kernel
"""

def single_file(body, grid, block, lds, vgpr, sgpr=102, accum=None):
    return (HEADER_COMMENT + f"; @launch grid=({grid},1,1) block=({block},1,1) lds={lds}\n"
            + '.amdgcn_target "amdgcn-amd-amdhsa--gfx950"\n.text\n'
            + kernel_begin(KNAME) + body + '.section .rodata,"a"\n' + kd(KNAME, vgpr, sgpr, accum))
```

```python
import sys, struct
from common import *

C0 = -2.0 * 0.7978845608028654 * 1.4426950408889634
C1 = C0 * 0.044715
def f2u(f): return struct.unpack("<I", struct.pack("<f", f))[0]

def stamp(a, idx, on):
    if on: a(f"s_memrealtime s[{80+2*idx}:{81+2*idx}]")

def write_stamps(a, n, on, wsreg, wave_s, lanev, base_idx=0, total=None):
    if not on: return
    total = total or n
    a("s_waitcnt lgkmcnt(0)")
    a(f"s_cmp_lg_u32 {wave_s}, 0")
    a("s_cbranch_scc1 L_nostamp%d" % base_idx)
    a(f"s_add_u32 s78, s{wsreg}, 0x8000000\ns_addc_u32 s79, s{wsreg+1}, 0")
    a(f"s_mul_i32 s77, s2, {total*8}")
    a("v_mov_b32 v1, s77")
    a(f"v_cmp_eq_u32 vcc, 0, {lanev}")
    a("s_and_saveexec_b64 s[74:75], vcc")
    for i in range(n):
        a(f"v_mov_b32 v2, s{80+2*i}\nv_mov_b32 v3, s{81+2*i}")
        a(f"global_store_dwordx2 v1, v[2:3], s[78:79] offset:{(base_idx+i)*8}")
        a("s_nop 1")
    a("s_waitcnt vmcnt(0)")
    a("s_mov_b64 exec, s[74:75]")
    a.label("L_nostamp%d" % base_idx)

GB = 64 * 224
UPOFF = GB + 128
XOFF = UPOFF + GB + 128
CH = XOFF + 16384
NSLOT = 3

def phase1(a, stamps, mbx=8):
    ACC = 0
    ACC = 16
    WF = [128, 156]
    XF = [184, 188]
    WOFF = 192
    XOFFV = 200
    RDW = 204
    RDX = 208
    a("s_load_dwordx8 s[4:11], s[0:1], 0")
    a("s_load_dwordx2 s[12:13], s[0:1], 48")
    stamp(a, 0, stamps)
    a("s_cmp_ge_u32 s2, 256")
    a("s_cbranch_scc1 L_endA")
    import math
    nx_m = 16 // mbx; lm = int(math.log2(nx_m)); lmb = int(math.log2(mbx)); fcx = 32 // mbx
    a("s_and_b32 s14, s2, 7\ns_lshr_b32 s15, s2, 3")
    a(f"s_and_b32 s16, s14, {nx_m-1}\ns_lshr_b32 s17, s14, {lm}")
    a(f"s_and_b32 s18, s15, {mbx-1}\ns_lshr_b32 s19, s15, {lmb}")
    a(f"s_mul_i32 s16, s16, {mbx}\ns_add_u32 s16, s16, s18")
    a(f"s_mul_i32 s17, s17, {fcx}\ns_add_u32 s17, s17, s19")
    a("v_lshrrev_b32 v1, 6, v0")
    a("v_and_b32 v2, 63, v0")
    a("v_readfirstlane_b32 s20, v1")
    for j in range(7):
        a(f"v_add_u32 v3, {64*j}, v2")
        a(f"v_mul_u32_u24 v4, {65536//14+1}, v3")
        a("v_lshrrev_b32 v4, 16, v4")
        a("v_mul_u32_u24 v5, 14, v4")
        a("v_sub_u32 v5, v3, v5")
        a("v_mul_u32_u24 v4, 3584, v4")
        a("v_lshl_add_u32 v4, v5, 4, v4")
        a(f"v_subrev_u32 v{WOFF+j}, {1024*(j%4)}, v4")
    for q in range(4):
        a("v_lshrrev_b32 v3, 3, v2")
        a(f"v_add_u32 v3, {8*q}, v3")
        a("v_lshrrev_b32 v4, 1, v3")
        a("v_xor_b32 v4, v4, v2")
        a("v_and_b32 v4, 7, v4")
        a("v_lshlrev_b32 v3, 10, v3")
        a("v_lshl_add_u32 v3, v4, 4, v3")
        a(f"v_subrev_u32 v{XOFFV+q}, {1024*q}, v3")
    a("v_lshrrev_b32 v3, 5, v2")
    a("v_lshlrev_b32 v3, 3, v3")
    a("v_bfe_u32 v4, v2, 2, 2")
    a("v_add_u32 v3, v3, v4")
    a("v_mul_u32_u24 v3, 224, v3")
    a("v_bfe_u32 v4, v2, 4, 1")
    a(f"v_mul_u32_u24 v4, {UPOFF}, v4")
    a("v_add_u32 v3, v3, v4")
    a("v_and_b32 v4, 1, v2")
    a("v_lshl_add_u32 v3, v4, 4, v3")
    a("v_bfe_u32 v4, v2, 1, 1")
    a(f"v_lshl_add_u32 v{RDW}, v4, 3, v3")
    a(f"v_add_u32 v{RDW+1}, {CH}, v{RDW}")
    a(f"v_add_u32 v{RDW+2}, {2*CH}, v{RDW}")
    a("v_and_b32 v3, 31, v2")
    a("v_lshrrev_b32 v4, 1, v3")
    a("v_and_b32 v4, 7, v4")
    a("v_lshrrev_b32 v5, 5, v2")
    a("v_xor_b32 v4, v4, v5")
    a("v_lshlrev_b32 v3, 7, v3")
    a("v_lshl_add_u32 v3, v1, 12, v3")
    a(f"v_add_u32 v3, {XOFF}, v3")
    for ks in range(4):
        a(f"v_xor_b32 v5, {2*ks}, v4")
        a(f"v_lshl_add_u32 v{RDX+ks}, v5, 4, v3")
        a(f"v_add_u32 v{RDX+4+ks}, {CH}, v{RDX+ks}")
        a(f"v_add_u32 v{RDX+8+ks}, {2*CH}, v{RDX+ks}")
    a("s_waitcnt lgkmcnt(0)")
    a("s_mov_b32 s24, s4\ns_mov_b32 s25, s5\ns_mov_b32 s26, 0x200000\ns_mov_b32 s27, 0x20000")
    a("s_and_b32 s21, s20, 1\ns_cmp_eq_u32 s21, 0")
    a("s_cselect_b32 s28, s6, s8\ns_cselect_b32 s29, s7, s9\ns_mov_b32 s30, 1835008\ns_mov_b32 s31, 0x20000")
    a("s_lshr_b32 s23, s20, 1")
    a(f"s_mul_i32 s22, s23, {32*3584}")
    a("s_mul_i32 s33, s17, 224")
    a("s_add_u32 s22, s22, s33")
    a(f"s_mul_i32 s34, s21, {UPOFF}")
    a(f"s_mul_i32 s33, s23, {32*224}")
    a("s_add_u32 s34, s34, s33")
    a("s_lshl_b32 s32, s16, 17")
    a("s_lshl_b32 s33, s20, 15")
    a("s_add_u32 s32, s32, s33")
    a("s_lshl_b32 s35, s20, 12")
    a(f"s_add_u32 s35, s35, {XOFF}")

    def dma_ops(c):
        slot = c % NSLOT
        ops = []
        ops.append(f"s_add_u32 m0, s35, {slot*CH}")
        for q in range(4):
            ops.append(f"buffer_load_dwordx4 v{XOFFV+q}, s[24:27], s32 offen offset:{1024*q} lds")
        ops.append(f"s_add_u32 m0, s34, {slot*CH}")
        for j in range(4):
            ops.append(f"buffer_load_dwordx4 v{WOFF+j}, s[28:31], s22 offen offset:{1024*j} lds")
        ops.append(f"s_add_u32 m0, s34, {slot*CH+4096}")
        for j in range(4, 7):
            ops.append(f"buffer_load_dwordx4 v{WOFF+j}, s[28:31], s22 offen offset:{1024*(j-4)} lds")
        ops.append("s_add_u32 s32, s32, 128")
        ops.append(f"s_add_u32 s22, s22, {64*3584}")
        return ops
    def emit_dma(ops):
        for o in ops:
            a(o)
            if "m0" in o: a("s_nop 0")
    for c in range(3):
        emit_dma(dma_ops(c))
    for i in range(112):
        a(f"v_mov_b32 v{ACC+i}, 0")
    def reads(c, ks, buf):
        slot = c % NSLOT
        ops = [f"ds_read_b128 v[{XF[buf]}:{XF[buf]+3}], v{RDX+4*slot+ks}"]
        for t in range(7):
            for j in range(2):
                r = WF[buf] + 4*t + 2*j
                ops.append(f"ds_read_b64_tr_b16 v[{r}:{r+1}], v{RDW+slot} offset:{ks*3584 + j*896 + t*32}")
        return ops
    a("s_waitcnt vmcnt(22)")
    a("s_barrier")
    stamp(a, 1, stamps)
    for o in reads(0, 0, 0): a(o)
    step = 0
    for c in range(8):
        for ks in range(4):
            buf = step & 1
            extra = []
            a("s_waitcnt lgkmcnt(0)")
            if ks == 3 and c < 7:
                a(f"s_waitcnt vmcnt({11 if c + 2 < 8 else 0})")
                a("s_barrier")
                nxt = reads(c+1, 0, buf ^ 1)
                if c + 3 < 8: extra = dma_ops(c+3)
            elif ks < 3:
                nxt = reads(c, ks+1, buf ^ 1)
            else:
                nxt = []
            ri = 0; ei = 0
            for t in range(7):
                acc = ACC + 16*t
                w = WF[buf] + 4*t
                a(f"v_mfma_f32_32x32x16_bf16 v[{acc}:{acc+15}], v[{w}:{w+3}], v[{XF[buf]}:{XF[buf]+3}], v[{acc}:{acc+15}]")
                n = 3 if t == 0 else 2
                for _ in range(n):
                    if ri < len(nxt): a(nxt[ri]); ri += 1
                for _ in range(3):
                    if ei < len(extra):
                        a(extra[ei])
                        if "m0" in extra[ei]: a("s_nop 0")
                        ei += 1
            assert ri == len(nxt) and ei == len(extra)
            step += 1
    stamp(a, 2, stamps)
    a("s_nop 7\ns_nop 7")
    a(f"s_mov_b32 s40, {f2u(C0):#x}\ns_mov_b32 s41, {f2u(C1):#x}")
    a("v_mov_b32 v10, s40")
    a("s_mov_b32 s44, s12\ns_mov_b32 s45, s13\ns_mov_b32 s46, 7340032\ns_mov_b32 s47, 0x20000")
    a("s_lshl_b32 s42, s16, 2\ns_add_u32 s42, s42, s20\ns_mul_i32 s42, s42, 112\ns_mul_i32 s43, s17, 7\ns_add_u32 s42, s42, s43\ns_lshl_b32 s42, s42, 10")
    a("v_lshlrev_b32 v11, 4, v2")
    T = 128
    for t in range(7):
        acc = ACC + 16*t
        for i in range(8):
            a(f"v_mul_f32 v{T+i}, v{acc+i}, v{acc+i}")
        for i in range(8):
            a(f"v_fma_f32 v{T+i}, v{T+i}, s41, v10")
        for i in range(8):
            a(f"v_mul_f32 v{T+i}, v{T+i}, v{acc+i}")
        for i in range(8):
            a(f"v_exp_f32 v{T+i}, v{T+i}")
        for i in range(8):
            a(f"v_mul_f32 v{acc+i}, v{acc+i}, v{acc+8+i}")
        for i in range(8):
            a(f"v_add_f32 v{T+i}, 1.0, v{T+i}")
        for i in range(8):
            a(f"v_rcp_f32 v{T+i}, v{T+i}")
        a("s_nop 0")
        for i in range(8):
            a(f"v_mul_f32 v{acc+i}, v{acc+i}, v{T+i}")
        o = acc + 8
        for i in range(4):
            a(f"v_cvt_pk_bf16_f32 v{o+i}, v{acc+2*i}, v{acc+2*i+1}")
        if t < 4:
            a(f"buffer_store_dwordx4 v[{o}:{o+3}], v11, s[44:47], s42 offen offset:{1024*t}")
        else:
            if t == 4: a("s_add_u32 s42, s42, 4096")
            a(f"buffer_store_dwordx4 v[{o}:{o+3}], v11, s[44:47], s42 offen offset:{1024*(t-4)}")
    stamp(a, 3, stamps)
    if stamps:
        a("s_waitcnt vmcnt(0)")
        stamp(a, 4, stamps)
        write_stamps(a, 5, stamps, 12, "s20", "v2", 0, 10)
    a.label("L_endA")
    a("s_endpgm")

def phase2(a, stamps, rbx=4):
    ACC = 16
    WF = [48, 56]
    DOFF = 64
    RD = 68
    a("s_load_dwordx4 s[4:7], s[0:1], 24")
    a("s_load_dwordx2 s[12:13], s[0:1], 48")
    stamp(a, 0, stamps)
    a("s_cmp_ge_u32 s2, 256")
    a("s_cbranch_scc1 L_endB")
    import math
    cbx = 32 // rbx
    nxc = 8 // cbx if cbx <= 8 else 1
    assert cbx <= 8
    lx = int(math.log2(nxc))
    a("s_and_b32 s14, s2, 7\ns_lshr_b32 s15, s2, 3")
    a(f"s_and_b32 s16, s14, {nxc-1}\ns_lshr_b32 s17, s14, {lx}")
    lc = int(math.log2(cbx))
    a(f"s_and_b32 s18, s15, {cbx-1}\ns_lshr_b32 s19, s15, {lc}")
    a(f"s_mul_i32 s16, s16, {cbx}\ns_add_u32 s16, s16, s18")
    a(f"s_mul_i32 s17, s17, {rbx}\ns_add_u32 s17, s17, s19")
    a("v_lshrrev_b32 v1, 6, v0")
    a("v_and_b32 v2, 63, v0")
    a("v_readfirstlane_b32 s20, v1")
    a("v_lshrrev_b32 v3, 3, v2")
    a("v_bfe_u32 v4, v2, 4, 1")
    a("v_lshlrev_b32 v4, 2, v4")
    a("v_xor_b32 v4, v4, v2")
    a("v_and_b32 v4, 7, v4")
    a("v_lshlrev_b32 v3, 10, v3")
    a(f"v_lshl_add_u32 v{DOFF}, v4, 4, v3")
    for q in range(1, 4):
        a(f"v_add_u32 v{DOFF+q}, {8*1024*q - 1024*q}, v{DOFF}")
    a("v_lshrrev_b32 v3, 5, v2")
    a("v_lshlrev_b32 v3, 3, v3")
    a("v_bfe_u32 v4, v2, 2, 2")
    a("v_add_u32 v3, v3, v4")
    a("v_lshlrev_b32 v3, 7, v3")
    a("v_bfe_u32 v4, v2, 3, 1")
    a("v_lshl_add_u32 v3, v4, 6, v3")
    a("v_bfe_u32 v4, v2, 4, 1")
    a("v_lshl_add_u32 v3, v4, 5, v3")
    a("v_and_b32 v4, 1, v2")
    a("v_lshl_add_u32 v3, v4, 4, v3")
    a("v_bfe_u32 v4, v2, 1, 1")
    a("v_lshl_add_u32 v3, v4, 3, v3")
    a("s_lshr_b32 s21, s20, 1")
    a("s_and_b32 s22, s20, 1")
    a("s_mul_i32 s23, s21, 81920")
    a(f"v_add_u32 v{RD}, s23, v3")
    a(f"v_xor_b32 v{RD+1}, 64, v{RD}")
    a(f"v_add_u32 v{RD+2}, 49152, v{RD}")
    a(f"v_add_u32 v{RD+3}, 49152, v{RD+1}")
    a("v_lshlrev_b32 v11, 4, v2")
    a("s_waitcnt lgkmcnt(0)")
    a("s_mov_b32 s24, s4\ns_mov_b32 s25, s5\ns_mov_b32 s26, 1835008\ns_mov_b32 s27, 0x20000")
    a("s_mov_b32 s28, s12\ns_mov_b32 s29, s13\ns_mov_b32 s30, 7340032\ns_mov_b32 s31, 0x20000")
    a("s_mul_i32 s32, s21, 896\ns_lshl_b32 s33, s22, 6\ns_add_u32 s32, s32, s33\ns_lshl_b32 s32, s32, 10")
    a("s_lshl_b32 s33, s16, 7\ns_add_u32 s32, s32, s33")
    a("s_lshl_b32 s34, s22, 13\ns_add_u32 s34, s34, s23")
    a("s_lshl_b32 s36, s17, 1\ns_add_u32 s36, s36, s22\ns_mul_i32 s36, s36, 112\ns_mul_i32 s33, s21, 56\ns_add_u32 s36, s36, s33\ns_lshl_b32 s36, s36, 10")
    def dma_ops(c):
        slot = c % 5
        ops = []
        for hf in range(2):
            ops.append(f"s_add_u32 m0, s34, {slot*16384 + hf*4096}")
            for q in range(4):
                ops.append(f"buffer_load_dwordx4 v{DOFF+q}, s[24:27], s32 offen offset:{1024*q} lds")
            ops.append(f"s_add_u32 s32, s32, {32*1024 if hf == 0 else 96*1024}")
        return ops
    def h_ops(c):
        ops = []
        for hf in range(2):
            for q in range(4):
                k = c*8 + hf*4 + q
                ops.append(f"buffer_load_dwordx4 a[{4*k}:{4*k+3}], v11, s[28:31], s36 offen offset:{1024*q}")
            ops.append("s_add_u32 s36, s36, 4096")
        return ops
    def emit(ops):
        for o in ops:
            a(o)
            if "m0" in o: a("s_nop 0")
    issued = []
    def issue(tag, ops, lst=None):
        for o in ops:
            if lst is None:
                a(o)
                if "m0" in o: a("s_nop 0")
            else:
                lst.append(o)
            if o.startswith("buffer_"): issued.append(tag)
    def need(tags):
        last = max(i for i, t in enumerate(issued) if t in tags)
        return len(issued) - 1 - last
    for c in range(3):
        issue(("w", c), dma_ops(c)); issue(("h", c), h_ops(c))
    for i in range(32):
        a(f"v_mov_b32 v{ACC+i}, 0")
    def reads(c, ks, buf):
        slot = c % 5
        ops = []
        for t in range(2):
            for j in range(2):
                r = WF[buf] + 4*t + 2*j
                if slot < 3:
                    ops.append(f"ds_read_b64_tr_b16 v[{r}:{r+1}], v{RD+t} offset:{slot*16384 + ks*2048 + j*512}")
                else:
                    ops.append(f"ds_read_b64_tr_b16 v[{r}:{r+1}], v{RD+2+t} offset:{(slot-3)*16384 + ks*2048 + j*512}")
        return ops
    a(f"s_waitcnt vmcnt({need([('w',0),('h',0)])})")
    a("s_barrier")
    stamp(a, 1, stamps)
    for o in reads(0, 0, 0): a(o)
    step = 0
    for c in range(7):
        extra = []
        if c + 3 < 7:
            issue(("w", c+3), dma_ops(c+3), extra); issue(("h", c+3), h_ops(c+3), extra)
        ei = 0
        for ks in range(8):
            buf = step & 1
            a("s_waitcnt lgkmcnt(0)")
            if ks == 7 and c < 6:
                assert ei == len(extra)
                a(f"s_waitcnt vmcnt({need([('w',c+1),('h',c+1)])})")
                a("s_barrier")
                nxt = reads(c+1, 0, buf ^ 1)
            elif ks < 7:
                nxt = reads(c, ks+1, buf ^ 1)
            else:
                nxt = []
            k = c*8 + ks
            ri = 0
            for t in range(2):
                acc = ACC + 16*t
                w = WF[buf] + 4*t
                a(f"v_mfma_f32_32x32x16_bf16 v[{acc}:{acc+15}], v[{w}:{w+3}], a[{4*k}:{4*k+3}], v[{acc}:{acc+15}]")
                for _ in range(2):
                    if ri < len(nxt): a(nxt[ri]); ri += 1
                for _ in range(2):
                    if ei < len(extra):
                        a(extra[ei])
                        if "m0" in extra[ei]: a("s_nop 0")
                        ei += 1
            step += 1
    stamp(a, 2, stamps)
    a("s_barrier")
    a("s_nop 7\ns_nop 7")
    a("s_lshl_b32 s40, s20, 12")
    a("v_add_u32 v4, s40, v11")
    a("s_xor_b32 s41, s20, 2\ns_lshl_b32 s41, s41, 12")
    a("v_add_u32 v5, s41, v11")
    a("s_cmp_eq_u32 s21, 0")
    a("s_cbranch_scc0 L_kh1")
    for kh in range(2):
        send = ACC + 16*(1-kh); keep = ACC + 16*kh
        if kh == 1: a.label("L_kh1")
        for i in range(4):
            a(f"ds_write_b128 v4, v[{send+4*i}:{send+4*i+3}] offset:{1024*i}")
        a("s_waitcnt lgkmcnt(0)")
        a("s_barrier")
        for i in range(4):
            a(f"ds_read_b128 v[{80+4*i}:{80+4*i+3}], v5 offset:{1024*i}")
        a("s_waitcnt lgkmcnt(0)")
        for i in range(16):
            a(f"v_add_f32 v{80+i}, v{80+i}, v{keep+i}")
        if kh == 0: a("s_branch L_red")
    a.label("L_red")
    for i in range(8):
        a(f"v_cvt_pk_bf16_f32 v{96+i}, v{80+2*i}, v{80+2*i+1}")
    a("s_mov_b32 s44, s6\ns_mov_b32 s45, s7\ns_mov_b32 s46, 0x200000\ns_mov_b32 s47, 0x20000")
    a("v_and_b32 v3, 31, v2\nv_lshlrev_b32 v3, 10, v3\nv_lshrrev_b32 v4, 5, v2\nv_lshl_add_u32 v3, v4, 4, v3")
    a("s_lshl_b32 s42, s17, 16\ns_lshl_b32 s43, s22, 15\ns_add_u32 s42, s42, s43\ns_lshl_b32 s43, s16, 7\ns_add_u32 s42, s42, s43\ns_lshl_b32 s43, s21, 6\ns_add_u32 s42, s42, s43")
    a("buffer_store_dwordx4 v[96:99], v3, s[44:47], s42 offen")
    a("buffer_store_dwordx4 v[100:103], v3, s[44:47], s42 offen offset:32")
    stamp(a, 3, stamps)
    if stamps:
        a("s_waitcnt vmcnt(0)")
        stamp(a, 4, stamps)
        write_stamps(a, 5, stamps, 12, "s20", "v2", 5, 10)
    a.label("L_endB")
    a("s_endpgm")

def gen(stamps=False, mbx=8, rbx=4):
    a = Asm(); phase1(a, stamps, mbx)
    b = Asm(); phase2(b, stamps, rbx)
    s = HEADER_COMMENT
    s += f"; @launch kernel=ffn_up_kernel grid=(256,1,1) block=(256,1,1) lds={NSLOT*CH}\n"
    s += f"; @launch kernel=ffn_down_kernel grid=(256,1,1) block=(256,1,1) lds=163840\n"
    s += '.amdgcn_target "amdgcn-amd-amdhsa--gfx950"\n.text\n'
    s += kernel_begin("ffn_up_kernel") + a.text()
    s += kernel_begin("ffn_down_kernel") + b.text()
    s += '.section .rodata,"a"\n' + kd("ffn_up_kernel", 256, 102, 256) + kd("ffn_down_kernel", 128 + 224, 102, 128)
    return s

if __name__ == "__main__":
    open("v1.s", "w").write(gen(False))
    open("v1_st.s", "w").write(gen(True))
```

```python
import sys, struct, math
from common import *

C0 = -2.0 * 0.7978845608028654 * 1.4426950408889634
C1 = C0 * 0.044715
def f2u(f): return struct.unpack("<I", struct.pack("<f", f))[0]

class Stream:
    def __init__(self):
        self.ins = []
    def add(self, text, lds=None, vm=None, need_lds=(), need_vm=(), mw=None, vr=(), trans=None, tr=()):
        self.ins.append(dict(t=text, lds=lds, vm=vm, nl=list(need_lds), nv=list(need_vm), mw=mw, vr=set(vr), trans=trans))
    def __call__(self, text):
        for l in text.split("\n"):
            if l.strip(): self.add(l.strip())
    def render(self):
        out = []
        lds_q = []; vm_q = []
        lds_done = 0; vm_done = 0
        mf = {}
        lasttrans = {}
        pos = 0
        def emit(t):
            nonlocal pos
            out.append(t)
            if t.endswith(":") or t.startswith(";") or t.startswith("."): return
            if t.startswith("s_nop"): pos += int(t.split()[1]) + 1
            else: pos += 1
        for I in self.ins:
            w = []
            nl = I["nl"]; nv = I["nv"]
            if nl == ["ALL"]:
                if lds_done < len(lds_q): w.append("lgkmcnt(0)"); lds_done = len(lds_q)
            elif nl:
                k = max(lds_q.index(x) for x in nl) + 1
                if k > lds_done:
                    n = len(lds_q) - k
                    n = min(n, 15)
                    w.append(f"lgkmcnt({n})"); lds_done = len(lds_q) - n
            if nv == ["ALL"]:
                if vm_done < len(vm_q): w.insert(0, "vmcnt(0)"); vm_done = len(vm_q)
            elif nv:
                k = max(vm_q.index(x) for x in nv) + 1
                if k > vm_done:
                    n = len(vm_q) - k
                    assert n <= 63
                    w.insert(0, f"vmcnt({n})"); vm_done = len(vm_q) - n
            if w: emit("s_waitcnt " + " ".join(w))
            need = 0
            for r in I["vr"]:
                if r in mf: need = max(need, 12 - (pos - mf[r] - 1))
                if r in lasttrans and I["trans"] is None: need = max(need, 1 - (pos - lasttrans[r] - 1))
            while need > 0:
                n = min(need, 16); emit(f"s_nop {n-1}"); need -= n
            if I["t"]:
                if I["mw"]:
                    for r in range(I["mw"][0], I["mw"][1] + 1): mf[r] = pos
                if I["trans"] is not None: lasttrans[I["trans"]] = pos
                emit(I["t"])
            if I["lds"] is not None: lds_q.append(I["lds"])
            if I["vm"] is not None:
                vm_q.append(I["vm"])
                assert len(vm_q) - vm_done <= 63, "too many outstanding vm ops"
        return "\n".join((l if l.endswith(":") else "    " + l) for l in out) + "\n"

BLK = 16384
FO = 8 << 20
FSZ = 897 * 128
WR = 0
ACC = [128 + 16*i for i in range(5)]
POOL = 208
NPOOL = 6
TMP = 232
XA = 240
WA = 244
L16 = 245
CC0 = 246
DA = 247
VT = 253

def build(cfg):
    stamps = cfg.get("stamps", False)
    HD = cfg.get("hdist", 12)
    LOOK = cfg.get("look", 5)
    xblk = {i: i % 3 for i in range(16)}
    wblk = {i: 4 + i % 3 for i in range(8)}
    dblk = {0: 3, 1: 7, 2: 8, 3: 9, 4: wblk[5], 5: wblk[6], 6: wblk[7], 7: xblk[13], 8: xblk[14], 9: xblk[15]}
    for j in range(10, 14): dblk[j] = dblk[j - 10]
    plan = {s: [] for s in range(-1, 23)}
    plan[-1] = [("X", 0), ("W", 0), ("X", 1), ("W", 1)]
    for s in range(0, 14):
        plan[s].append(("X", s + 2))
        if s + 2 < 8: plan[s].append(("W", s + 2))
    dsched = cfg.get("dsched", {0: 0, 1: 6, 2: 7, 3: 8, 4: 9, 5: 10, 6: 11, 7: 14, 8: 15, 9: 16, 10: 17, 11: 17, 12: 18, 13: 18})
    for j, s in dsched.items(): plan[s].append(("D", j))
    def consume_step(it):
        k, i = it
        return i if k in "XW" else 16 + i // 2
    occ = {}
    for s in range(-1, 23):
        for it in plan[s]:
            b = {"X": xblk, "W": wblk, "D": dblk}[it[0]][it[1]]
            if b in occ: assert consume_step(occ[b]) < s, (it, s, occ[b])
            assert s < consume_step(it), it
            occ[b] = it
    pub = cfg.get("pub", {2: 11, 4: 13, 6: 15, 8: 18})
    blk_class = lambda j: (2*j + 1) // 7

    def compute(spare):
        S = Stream()
        sfx = "s" if spare else "r"
        S(f"v_and_b32 v{VT}, 63, v0")
        lane = VT
        S(f"v_lshlrev_b32 v{L16}, 4, v{lane}")
        if cfg.get("codepf", True):
            S("s_getpc_b64 s[60:61]")
            S(f"L_pc{sfx}:")
            S(f"s_sub_u32 s60, s60, L_pc{sfx}-{KNAME}")
            S("s_subb_u32 s61, s61, 0")
            S(f"s_mov_b32 s62, L_codeend-{KNAME}")
            S("s_mov_b32 s63, 0x20000")
            S("s_lshl_b32 s64, s15, 2\ns_add_u32 s64, s64, s20\ns_lshl_b32 s64, s64, 10")
            pfd = ACC[2] if spare else ACC[4]
            S.add(f"buffer_load_dwordx4 v[{pfd}:{pfd+3}], v{L16}, s[60:63], s64 offen", vm="pf")
        t1, t2 = VT + 1, VT + 2
        if not spare:
            S(f"v_and_b32 v{t1}, 31, v{lane}")
            S(f"v_bfe_u32 v{t2}, v{lane}, 1, 3")
            S(f"v_lshrrev_b32 v{TMP}, 5, v{lane}")
            S(f"v_xor_b32 v{t2}, v{t2}, v{TMP}")
            S(f"v_lshlrev_b32 v{t1}, 7, v{t1}")
            for ks in range(4):
                S(f"v_xor_b32 v{TMP}, {2*ks}, v{t2}")
                S(f"v_lshl_add_u32 v{XA+ks}, v{TMP}, 4, v{t1}")
            S(f"v_lshrrev_b32 v{t1}, 5, v{lane}")
            S(f"v_lshlrev_b32 v{t1}, 3, v{t1}")
            S(f"v_bfe_u32 v{t2}, v{lane}, 2, 2")
            S(f"v_add_u32 v{t1}, v{t1}, v{t2}")
            S(f"v_lshlrev_b32 v{t1}, 7, v{t1}")
            S(f"v_bfe_u32 v{t2}, v{lane}, 4, 1")
            S(f"v_lshl_add_u32 v{t1}, v{t2}, 13, v{t1}")
            S(f"v_bfe_u32 v{TMP}, v{lane}, 3, 1")
            S(f"v_lshl_add_u32 v{t2}, v{TMP}, 1, v{t2}")
            S(f"v_xor_b32 v{t2}, s20, v{t2}")
            S(f"v_lshl_add_u32 v{t1}, v{t2}, 5, v{t1}")
            S(f"v_and_b32 v{t2}, 1, v{lane}")
            S(f"v_lshl_add_u32 v{t1}, v{t2}, 4, v{t1}")
            S(f"v_bfe_u32 v{t2}, v{lane}, 1, 1")
            S(f"v_lshl_add_u32 v{t1}, v{t2}, 3, v{t1}")
            S(f"v_add_u32 v{WA}, 0x10000, v{t1}")
            S(f"s_mov_b32 s40, {f2u(C0):#x}\ns_mov_b32 s41, {f2u(C1):#x}")
            S(f"v_mov_b32 v{CC0}, s40")
        S(f"v_lshrrev_b32 v{t1}, 5, v{lane}")
        S(f"v_lshlrev_b32 v{t1}, 3, v{t1}")
        S(f"v_bfe_u32 v{t2}, v{lane}, 2, 2")
        S(f"v_add_u32 v{t1}, v{t1}, v{t2}")
        S(f"v_lshlrev_b32 v{t1}, 7, v{t1}")
        S(f"v_bfe_u32 v{t2}, v{lane}, 3, 1")
        S(f"v_lshl_add_u32 v{t1}, v{t2}, 6, v{t1}")
        S(f"v_bfe_u32 v{t2}, v{lane}, 4, 1")
        S(f"v_lshl_add_u32 v{t1}, v{t2}, 5, v{t1}")
        S(f"v_and_b32 v{t2}, 1, v{lane}")
        S(f"v_lshl_add_u32 v{t1}, v{t2}, 4, v{t1}")
        S(f"v_bfe_u32 v{t2}, v{lane}, 1, 1")
        S(f"v_lshl_add_u32 v{t1}, v{t2}, 3, v{t1}")
        S("s_lshr_b32 s21, s20, 1\ns_and_b32 s22, s20, 1")
        S("s_lshl_b32 s23, s21, 13")
        S(f"v_add_u32 v{DA}, s23, v{t1}")
        S(f"v_xor_b32 v{DA+1}, 64, v{DA}")
        for w in (1, 2):
            S(f"v_add_u32 v{DA+2*w}, {w*65536:#x}, v{DA}")
            S(f"v_add_u32 v{DA+2*w+1}, {w*65536:#x}, v{DA+1}")
        S("s_lshl_b32 s42, s18, 1\ns_add_u32 s42, s42, s22\ns_mul_i32 s42, s42, 114688")
        seq_table(S, "s21", 66, 12, "s42")
        S("s_waitcnt lgkmcnt(0)")
        S("s_mov_b32 s44, s30\ns_mov_b32 s45, s31\ns_mov_b32 s46, 7340032\ns_mov_b32 s47, 0x20000")
        S("s_mov_b32 s48, s26\ns_mov_b32 s49, s27\ns_mov_b32 s50, 0x200000\ns_mov_b32 s51, 0x20000")
        if not spare:
            S("s_lshl_b32 s42, s17, 2\ns_add_u32 s42, s42, s20\ns_mul_i32 s43, s16, 896\ns_add_u32 s42, s42, s43")
            S("s_and_b32 s43, s17, 3\ns_lshl_b32 s43, s43, 1")
            for p in range(8):
                S(f"s_add_u32 s65, s43, {p}\ns_and_b32 s65, s65, 7\ns_mul_i32 s65, s65, 112\ns_add_u32 s65, s65, s42\ns_lshl_b32 s{52+p}, s65, 10")

        M = []
        pooln = [0]
        def pool():
            r = POOL + 4 * (pooln[0] % NPOOL); pooln[0] += 1; return r
        if not spare:
            accof = {0: 0, 1: 1, 2: 2, 3: 3, 4: 4, 5: 0, 6: 1, 7: 2}
            for i in range(8):
                for ks in range(4):
                    for g in range(4):
                        rd = []
                        wreg = WR + 4 * (4*i + ks)
                        if g == 0:
                            for j in range(2):
                                off = (wblk[i] - 4) * BLK + ks * 2048 + j * 512
                                rd.append((("w", i, ks, j), f"ds_read_b64_tr_b16 v[{wreg+2*j}:{wreg+2*j+1}], v{WA} offset:{off}"))
                        xr = pool()
                        rd.append((("x", i, ks, g), f"ds_read_b128 v[{xr}:{xr+3}], v{XA+ks} offset:{xblk[i]*BLK + g*4096}"))
                        M.append(dict(step=i, acc=ACC[g], A=wreg, B=xr, first=(i == 0 and ks == 0), rd=rd, last=(i == 7 and ks == 3), grp=g))
            for p in range(4, 8):
                for i in range(8):
                    st = 8 + 2*(p - 4) + i // 4
                    for ks in range(4):
                        xr = pool()
                        rd = [(("x", p, i, ks, 9), f"ds_read_b128 v[{xr}:{xr+3}], v{XA+ks} offset:{xblk[st]*BLK + (i % 4)*4096}")]
                        M.append(dict(step=st, acc=ACC[accof[p]], A=WR + 4*(4*i + ks), B=xr, first=(i == 0 and ks == 0), rd=rd,
                                      last=(i == 7 and ks == 3), grp=p, wdead=(4*i + ks if p == 7 else None)))
        n1 = len(M)
        A2 = [ACC[3], ACC[4]]
        for j in range(14):
            b = dblk[j]
            for ks in range(4):
                n = 4*j + ks
                for t in range(2):
                    r = pool()
                    rd = []
                    for jj in range(2):
                        off = (b % 4) * BLK + ks * 2048 + jj * 512
                        rd.append((("d", j, ks, t, jj), f"ds_read_b64_tr_b16 v[{r+2*jj}:{r+2*jj+1}], v{DA+2*(b//4)+t} offset:{off}"))
                    M.append(dict(step=16 + j // 2, acc=A2[t], A=r, B=WR + 4*(n % 32), first=(n == 0), rd=rd, h=n, last=False, grp=None))
        NM = len(M)
        def epi(p):
            a = ACC[accof[p]]
            L = []
            for hb in range(2):
                idx = range(4*hb, 4*hb + 4)
                T = lambda i: TMP + (i % 4) + 4*hb
                for i in idx: L.append(dict(text=f"v_mul_f32 v{T(i)}, v{a+i}, v{a+i}", vr=[a+i], cost=1))
                for i in idx: L.append(dict(text=f"v_fma_f32 v{T(i)}, v{T(i)}, s41, v{CC0}", vr=[], cost=1))
                for i in idx: L.append(dict(text=f"v_mul_f32 v{T(i)}, v{T(i)}, v{a+i}", vr=[], cost=1))
                for i in idx:
                    L.append(dict(text=f"v_exp_f32 v{T(i)}, v{T(i)}", vr=[], cost=2, trans=T(i)))
                    L.append(dict(text=f"v_mul_f32 v{a+8+i}, v{a+i}, v{a+8+i}", vr=[a+8+i], cost=1))
                for i in idx: L.append(dict(text=f"v_add_f32 v{T(i)}, 1.0, v{T(i)}", vr=[T(i)], cost=1))
                for i in idx: L.append(dict(text=f"v_rcp_f32 v{T(i)}, v{T(i)}", vr=[], cost=2, trans=T(i)))
                for i in idx: L.append(dict(text=f"v_mul_f32 v{a+8+i}, v{a+8+i}, v{T(i)}", vr=[T(i)], cost=1))
            for i in range(4): L.append(dict(text=f"v_cvt_pk_bf16_f32 v{a+i}, v{a+8+2*i}, v{a+8+2*i+1}", vr=[], cost=1))
            L.append(dict(text=f"buffer_store_dwordx4 v[{a}:{a+3}], v{L16}, s[44:47], s{52+p} offen sc1", vm=("st", p), vr=[], cost=1))
            return L
        first_step = 16 if spare else 0
        rdptr = 0
        hptr = 0
        epq = []
        cur_bar = first_step - 1
        wdead = 32 if spare else 0
        class_ok_at = cfg["class_at_s"] if spare else cfg["class_at"]
        def barrier(s):
            nonlocal cur_bar
            nv = []
            if not spare:
                for v, bs in pub.items():
                    if bs == s: nv = [("st", p) for p in range(v)]
                if s == 6 and cfg.get("codepf", True): nv = nv + ["pf"]
            S.add("s_barrier", need_lds=["ALL"], need_vm=nv)
            cur_bar = s
        def issue_reads(upto, maxn):
            nonlocal rdptr
            cnt = 0
            while rdptr < NM and rdptr <= upto and M[rdptr]["step"] <= cur_bar and cnt < maxn:
                for (i, t) in M[rdptr]["rd"]: S.add(t, lds=i)
                rdptr += 1; cnt += 1
        def issue_h(maxn, hcons):
            nonlocal hptr
            cnt = 0
            while hptr < 56 and cnt < maxn and hptr < hcons + HD and (hptr < wdead if hptr < 32 else hptr - 32 < hcons) \
                    and class_ok_at[blk_class(hptr // 4)] <= cur_bar:
                r = WR + 4 * (hptr % 32)
                S.add(f"buffer_load_dwordx4 v[{r}:{r+3}], v{L16}, s[44:47], s{66 + hptr//4} offen offset:{(hptr % 4)*1024} sc1", vm=("h", hptr))
                hptr += 1; cnt += 1
        if spare:
            barrier(15)
            issue_h(99, 0)
        barrier(first_step)
        issue_reads(NPOOL - 2, 99)
        EPB = cfg.get("epb", 5)
        for n, m in enumerate(M):
            nv = [("h", m["h"])] if "h" in m else []
            if "h" in m: assert m["h"] < hptr, ("h not issued", m["h"], hptr, n)
            assert rdptr > n, ("reads not issued", n)
            if m["first"]:
                for e in epq: assert e[2] != m["acc"], ("acc reuse", n)
            c = "0" if m["first"] else f"v[{m['acc']}:{m['acc']+15}]"
            S.add(f"v_mfma_f32_32x32x16_bf16 v[{m['acc']}:{m['acc']+15}], v[{m['A']}:{m['A']+3}], v[{m['B']}:{m['B']+3}], {c}",
                  need_lds=[i for i, _ in m["rd"]], need_vm=nv, mw=(m["acc"], m["acc"] + 15))
            if m.get("wdead") is not None: wdead = m["wdead"] + 1
            if m["last"]: epq.append([n + 2, epi(m["grp"]), m["acc"]])
            BK = cfg.get("bk", 3)
            if n + 1 + BK <= NM - 1 + 1 and n + BK + 1 < NM and M[n + BK + 1]["step"] > cur_bar and M[n + BK]["step"] == cur_bar:
                assert rdptr == n + BK + 1, (rdptr, n)
                barrier(cur_bar + 1)
                issue_reads(n + NPOOL - 1, 99)
            else:
                issue_reads(n + NPOOL - 1, 2)
            hcons = (m["h"] + (1 if m["acc"] == A2[1] else 0)) if "h" in m else 0
            issue_h(1, hcons)
            budget = EPB
            while epq and epq[0][0] <= n and budget > 0:
                e = epq[0][1].pop(0)
                S.add(e["text"], vm=e.get("vm"), vr=e["vr"], trans=e.get("trans"))
                budget -= e["cost"]
                if not epq[0][1]: epq.pop(0)
        assert not epq and hptr == 56
        S.add("s_barrier", need_lds=["ALL"])
        S("s_lshl_b32 s40, s20, 12")
        S(f"v_add_u32 v{TMP}, s40, v{L16}")
        S("s_xor_b32 s41, s20, 2\ns_lshl_b32 s41, s41, 12")
        S(f"v_add_u32 v{TMP+1}, s41, v{L16}")
        S(f"v_lshrrev_b32 v{TMP+2}, 4, v{L16}")
        S(f"v_and_b32 v{TMP+3}, 31, v{TMP+2}\nv_lshlrev_b32 v{TMP+3}, 10, v{TMP+3}\nv_lshrrev_b32 v{TMP+2}, 5, v{TMP+2}\nv_lshl_add_u32 v{TMP+3}, v{TMP+2}, 4, v{TMP+3}")
        S("s_lshl_b32 s42, s18, 16\ns_lshl_b32 s43, s22, 15\ns_add_u32 s42, s42, s43\ns_lshl_b32 s43, s19, 7\ns_add_u32 s42, s42, s43\ns_lshl_b32 s43, s21, 6\ns_add_u32 s42, s42, s43")
        S("s_nop 3")
        S("s_cmp_eq_u32 s21, 0")
        S(f"s_cbranch_scc0 L_kh1{sfx}")
        R = ACC[0]
        for kh in range(2):
            send = A2[1 - kh]; keep = A2[kh]
            if kh == 1: S(f"L_kh1{sfx}:")
            for i in range(4):
                S(f"ds_write_b128 v{TMP}, v[{send+4*i}:{send+4*i+3}] offset:{1024*i}")
            S("s_waitcnt lgkmcnt(0)")
            S("s_barrier")
            for i in range(4):
                S(f"ds_read_b128 v[{R+4*i}:{R+4*i+3}], v{TMP+1} offset:{1024*i}")
            for q in range(2):
                S(f"s_waitcnt lgkmcnt({2 - 2*q})")
                for i in range(8*q, 8*q + 8): S(f"v_add_f32 v{R+i}, v{R+i}, v{keep+i}")
                for i in range(4): S(f"v_cvt_pk_bf16_f32 v{ACC[1]+4*q+i}, v{R+8*q+2*i}, v{R+8*q+2*i+1}")
                S(f"buffer_store_dwordx4 v[{ACC[1]+4*q}:{ACC[1]+4*q+3}], v{TMP+3}, s[48:51], s42 offen offset:{32*q}")
            if kh == 0: S(f"s_branch L_fin{sfx}")
        S(f"L_fin{sfx}:")
        if stamps:
            S("s_memrealtime s[80:81]")
            S("s_waitcnt vmcnt(0)")
            S("s_memrealtime s[82:83]")
            S("s_waitcnt lgkmcnt(0)")
            S("s_cmp_lg_u32 s20, 0")
            S("s_cbranch_scc1 L_end")
            S("s_add_u32 s30, s30, 0x8000000\ns_addc_u32 s31, s31, 0")
            S("s_lshl_b32 s40, s2, 8\ns_add_u32 s40, s40, 240")
            S("v_mov_b32 v0, s40\nv_mov_b32 v2, s80\nv_mov_b32 v3, s82")
            S("global_store_dwordx2 v0, v[2:3], s[30:31]")
        S("s_endpgm")
        return S.render()

    def seq_table(S, kh, base, shift, add):
        for j in range(14):
            S(f"s_add_u32 s36, {kh}, {2*j}")
            S("s_mul_i32 s37, s36, 37\ns_lshr_b32 s37, s37, 8")
            S("s_mul_i32 s38, s37, 7\ns_sub_u32 s36, s36, s38")
            S("s_add_u32 s36, s36, s34")
            S("s_sub_u32 s38, s36, 7\ns_cmp_ge_u32 s36, 7\ns_cselect_b32 s36, s38, s36")
            S("s_sub_u32 s37, s35, s37\ns_and_b32 s37, s37, 3")
            S("s_lshl2_add_u32 s36, s36, s37")
            S(f"s_lshl_b32 s36, s36, {shift}")
            S(f"s_add_u32 s{base+j}, s36, {add}")

    def loader(spare):
        S = Stream()
        sfx = "s" if spare else "r"
        VX, VW, VD = 4, 8, 12
        VF, VP, VS, VZ, VT2 = 16, 17, 18, 19, 22
        S("v_and_b32 v1, 63, v0")
        S("s_and_b32 s21, s20, 3")
        S("v_lshrrev_b32 v2, 3, v1")
        S("v_lshrrev_b32 v3, 4, v1")
        if not spare:
            S("v_xor_b32 v20, v3, v1\nv_and_b32 v20, 7, v20\nv_lshlrev_b32 v21, 10, v2")
            S(f"v_lshl_add_u32 v{VX}, v20, 4, v21")
            S(f"v_xor_b32 v{VX+1}, 64, v{VX}")
            S(f"v_add_u32 v{VX+1}, {7*1024}, v{VX+1}")
            S(f"v_add_u32 v{VX+2}, {14*1024}, v{VX}")
            S(f"v_add_u32 v{VX+3}, {14*1024}, v{VX+1}")
            S("s_lshr_b32 s22, s21, 1\ns_lshl_b32 s23, s22, 1")
            S("v_and_b32 v20, 1, v3\nv_lshlrev_b32 v20, 2, v20\nv_or_b32 v20, s23, v20\nv_xor_b32 v20, v20, v1\nv_and_b32 v20, 7, v20")
            S("v_mul_u32_u24 v21, 3584, v2")
            S(f"v_lshl_add_u32 v{VW}, v20, 4, v21")
            for q in range(1, 4): S(f"v_add_u32 v{VW+q}, {q*(8*3584-1024)}, v{VW}")
            S("s_and_b32 s40, s16, 3\ns_lshl_b32 s40, s40, 1\ns_lshr_b32 s41, s16, 2\ns_add_u32 s40, s40, s41")
            if cfg.get("crot", 1):
                S("s_lshr_b32 s41, s17, 2\ns_add_u32 s40, s40, s41")
            S("s_and_b32 s40, s40, 7")
            S("s_and_b32 s43, s17, 3\ns_lshl_b32 s43, s43, 1")
            S("s_add_u32 s41, s43, s21\ns_and_b32 s41, s41, 7\ns_lshl_b32 s41, s41, 15\ns_lshl_b32 s44, s16, 18\ns_add_u32 s42, s41, s44")
            S("s_and_b32 s45, s21, 1\ns_mul_i32 s45, s45, 114688\ns_lshl_b32 s41, s17, 7\ns_add_u32 s45, s45, s41")
        S("s_lshl_b32 s46, s21, 12")
        S("s_waitcnt lgkmcnt(0)")
        if not spare:
            S("s_mov_b32 s48, s4\ns_mov_b32 s49, s5\ns_mov_b32 s50, 0x200000\ns_mov_b32 s51, 0x20000")
            S("s_cmp_eq_u32 s22, 0")
            S("s_cselect_b32 s52, s6, s8\ns_cselect_b32 s53, s7, s9\ns_mov_b32 s54, 1835008\ns_mov_b32 s55, 0x20000")
        dinit = [False]
        def d_setup():
            dinit[0] = True
            S("v_and_b32 v20, 1, v3\nv_lshlrev_b32 v20, 2, v20\nv_xor_b32 v20, v20, v1\nv_and_b32 v20, 7, v20\nv_lshlrev_b32 v21, 10, v2")
            S(f"v_lshl_add_u32 v{VD}, v20, 4, v21")
            for q in range(1, 4): S(f"v_add_u32 v{VD+q}, {q*7*1024}, v{VD}")
            S("s_mov_b32 s56, s10\ns_mov_b32 s57, s11\ns_mov_b32 s58, 1835008\ns_mov_b32 s59, 0x20000")
            S("s_lshr_b32 s47, s21, 1")
            S("s_and_b32 s39, s21, 1\ns_lshl_b32 s39, s39, 15\ns_lshl_b32 s41, s19, 7\ns_add_u32 s39, s39, s41")
        def d_entry(j):
            S(f"s_add_u32 s36, s47, {2*j}")
            S("s_mul_i32 s37, s36, 37\ns_lshr_b32 s37, s37, 8")
            S("s_mul_i32 s38, s37, 7\ns_sub_u32 s36, s36, s38")
            S("s_add_u32 s36, s36, s34")
            S("s_sub_u32 s38, s36, 7\ns_cmp_ge_u32 s36, 7\ns_cselect_b32 s36, s38, s36")
            S("s_sub_u32 s37, s35, s37\ns_and_b32 s37, s37, 3")
            S("s_lshl2_add_u32 s36, s36, s37")
            S("s_lshl_b32 s36, s36, 16")
            S("s_add_u32 s60, s36, s39")
        def item(it):
            k, i = it
            if k == "X":
                if i < 8:
                    S(f"s_add_u32 s60, s40, {i}\ns_and_b32 s60, s60, 7\ns_lshl_b32 s60, s60, 7\ns_add_u32 s60, s60, s42")
                else:
                    p = 4 + (i - 8) // 2; hf = (i - 8) % 2
                    S(f"s_add_u32 s60, s40, s21\ns_add_u32 s60, s60, {4*hf}\ns_and_b32 s60, s60, 7\ns_lshl_b32 s60, s60, 7")
                    S(f"s_add_u32 s61, s43, {p}\ns_and_b32 s61, s61, 7\ns_lshl_b32 s61, s61, 15\ns_add_u32 s60, s60, s61\ns_add_u32 s60, s60, s44")
                b, v, srd = xblk[i], VX, 48
            elif k == "W":
                S(f"s_add_u32 s60, s40, {i}\ns_and_b32 s60, s60, 7\ns_mul_i32 s60, s60, {64*3584}\ns_add_u32 s60, s60, s45")
                b, v, srd = wblk[i], VW, 52
            else:
                if not dinit[0]: d_setup()
                d_entry(i)
                b, v, srd = dblk[i], VD, 56
            S(f"s_add_u32 m0, s46, {b*BLK}")
            S("s_nop 0")
            for q in range(4):
                S.add(f"buffer_load_dwordx4 v{v+q}, s[{srd}:{srd+3}], s60 offen offset:{1024*q} lds", vm=(k, i, q))
        def sync_setup():
            S(f"s_add_u32 s64, s30, {FO}\ns_addc_u32 s65, s31, 0\ns_mov_b32 s66, {FSZ}\ns_mov_b32 s67, 0x20000")
            S("s_mov_b32 s88, s28\ns_mov_b32 s89, s29\ns_mov_b32 s90, 256\ns_mov_b32 s91, 0x20000")
            S("s_cmp_eq_u32 s21, 0\ns_cselect_b32 s73, 0, 0x1000000")
            S(f"v_min_u32 v{VP}, 6, v1\nv_lshlrev_b32 v{VP}, 9, v{VP}")
            S("s_mul_i32 s68, s18, 3584\ns_add_u32 s68, s68, s73")
            S(f"v_lshlrev_b32 v{VF}, 20, v1")
            S(f"v_mov_b32 v{VZ}, 0")
            if not spare:
                S("s_mul_i32 s69, s16, 14336\ns_lshl_b32 s72, s17, 7\ns_add_u32 s69, s69, s72\ns_add_u32 s69, s69, s73")
            if stamps: S(f"v_mov_b32 v{VS}, 0")
        def tag_make():
            S("s_cmp_eq_u32 s2, 224\ns_cselect_b32 s72, s21, 0\ns_cmp_eq_u32 s72, 1")
            S("s_cbranch_scc0 L_notag")
            S(f"s_mov_b32 s72, {FSZ-128}")
            S(f"buffer_load_dwordx2 v[{VT2}:{VT2+1}], v{VZ}, s[64:67], s72 offen sc1")
            S("s_waitcnt vmcnt(0)")
            S(f"v_add_u32 v{VT2}, 1, v{VT2}")
            S(f"v_or_b32 v{VT2+1}, 0x80000000, v{VT2+1}")
            S(f"buffer_store_dwordx2 v[{VT2}:{VT2+1}], v{VF}, s[88:91], 0 offen sc1")
            S(f"buffer_store_dwordx2 v[{VT2}:{VT2+1}], v{VF}, s[64:67], s72 offen sc1")
            S("s_waitcnt vmcnt(0)")
            S("L_notag:")
        def tag_issue():
            S.add(f"buffer_load_dwordx2 v[{VT2}:{VT2+1}], v{VZ}, s[88:91], s73 offen sc1", vm="tag")
        def tag_check():
            S("s_mov_b32 s71, 0")
            S.add("", need_vm=["tag"])
            S(f"L_tag{sfx}:")
            S(f"v_readfirstlane_b32 s86, v{VT2}")
            S(f"v_readfirstlane_b32 s87, v{VT2+1}")
            S("s_nop 1")
            S("s_or_b32 s72, s87, s73")
            S("s_cmp_lg_u32 s72, 0")
            S(f"s_cbranch_scc1 L_tagok{sfx}")
            S("s_add_u32 s71, s71, 1")
            S("s_cmp_ge_u32 s71, 0x40000")
            S(f"s_cbranch_scc1 L_tagok{sfx}")
            S("s_sleep 2")
            S(f"buffer_load_dwordx2 v[{VT2}:{VT2+1}], v{VZ}, s[88:91], s73 offen sc1")
            S("s_waitcnt vmcnt(0)")
            S(f"s_branch L_tag{sfx}")
            S(f"L_tagok{sfx}:")
        nst = [0]
        def stamp_take():
            if stamps: S("s_memrealtime s[80:81]")
        def stamp_put(idx):
            if stamps:
                S("s_waitcnt lgkmcnt(0)")
                S(f"v_writelane_b32 v{VS}, s80, {idx}")
        class_ok_at = cfg["class_at_s"] if spare else cfg["class_at"]
        issued = []
        if spare:
            myplan = {s: [] for s in range(-1, 23)}
            myplan[-1] = [("D", j) for j in range(10)]
            for j in range(10, 14): myplan[dsched[j]].append(("D", j))
            steps = [15] + list(range(16, 23))
        else:
            myplan = plan
            steps = list(range(0, 23))
        if spare:
            sync_setup()
            tag_make()
        for it in myplan[-1]: item(it); issued.append(it)
        if not spare: sync_setup()
        if spare:
            tag_issue(); tag_check()
        if stamps:
            S(f"v_writelane_b32 v{VS}, s84, 0")
        def poll_issue(c):
            S(f"s_sub_u32 s70, s35, {c}\ns_and_b32 s70, s70, 3\ns_lshl_b32 s70, s70, 7\ns_add_u32 s{92+c}, s70, s68")
            S.add(f"buffer_load_dwordx2 v[{24+2*c}:{25+2*c}], v{VP}, s[64:67], s{92+c} offen sc1", vm=("poll", c))
        def poll_check(c):
            S("s_mov_b32 s71, 0")
            S.add("", need_vm=[("poll", c)])
            S(f"L_poll{sfx}{c}:")
            S(f"v_cmp_eq_u64 vcc, s[86:87], v[{24+2*c}:{25+2*c}]")
            S("s_nop 1")
            S("s_cmp_eq_u64 vcc, -1")
            S(f"s_cbranch_scc1 L_ok{sfx}{c}")
            S("s_add_u32 s71, s71, 1")
            S("s_cmp_ge_u32 s71, 0x40000")
            S(f"s_cbranch_scc1 L_ok{sfx}{c}")
            if spare and c == 0: S("s_sleep 8")
            S(f"buffer_load_dwordx2 v[{24+2*c}:{25+2*c}], v{VP}, s[64:67], s{92+c} offen sc1")
            S("s_waitcnt vmcnt(0)")
            S(f"s_branch L_poll{sfx}{c}")
            S(f"L_ok{sfx}{c}:")
            if stamps: S(f"v_writelane_b32 v{VS}, s71, {40+c}")
        PD = cfg.get('pd', 1)
        last_needed = max(max(consume_step(it) for s in myplan for it in myplan[s]), max(class_ok_at.values()), 0 if spare else max(pub.values()))
        for c, bs in class_ok_at.items():
            if bs - PD < steps[0]: poll_issue(c)
        for s in steps:
            for c, bs in class_ok_at.items():
                if bs == s: poll_check(c)
            nv = [(k, i, 3) for (k, i) in issued if consume_step((k, i)) <= s]
            S.add("s_barrier", need_vm=nv)
            stamp_take()
            if not spare:
                for e, (v, bs) in enumerate(sorted(pub.items())):
                    if bs == s:
                        S(f"s_add_u32 s72, s17, {e}\ns_and_b32 s72, s72, 3\ns_mul_i32 s72, s72, 3584\ns_add_u32 s72, s72, s69")
                        S.add(f"buffer_store_dwordx2 v[{VT2}:{VT2+1}], v{VF}, s[64:67], s72 offen sc1", vm=("flag", v))
                if s == cfg.get("tag_issue", 3): tag_issue()
                if s == cfg.get("tag_check", 8): tag_check()
            for c, bs in class_ok_at.items():
                if bs == s + PD: poll_issue(c)
            for it in myplan[s]: item(it); issued.append(it)
            stamp_put(s + 1)
            if s >= last_needed and not stamps: break
        if stamps:
            S("s_cmp_lg_u32 s21, 0")
            S("s_cbranch_scc1 L_end")
            S("s_add_u32 s30, s30, 0x8000000\ns_addc_u32 s31, s31, 0")
            S("s_lshl_b32 s40, s2, 8")
            S("v_lshlrev_b32 v2, 2, v1\nv_add_u32 v2, s40, v2")
            S("v_cmp_gt_u32 vcc, 60, v1\ns_and_saveexec_b64 s[74:75], vcc")
            S(f"global_store_dword v2, v{VS}, s[30:31]")
        S("s_endpgm")
        return S.render()

    E = Stream()
    E("s_load_dwordx8 s[4:11], s[0:1], 0")
    E("s_load_dwordx4 s[24:27], s[0:1], 24")
    E("s_load_dwordx4 s[28:31], s[0:1], 40")
    if stamps: E("s_memrealtime s[84:85]")
    E("v_lshrrev_b32 v1, 6, v0")
    E("s_cmp_ge_u32 s2, 256")
    E("s_cbranch_scc1 L_end")
    E("v_readfirstlane_b32 s20, v1")
    E("s_and_b32 s14, s2, 7\ns_lshr_b32 s15, s2, 3")
    E("s_and_b32 s35, s15, 3\ns_lshr_b32 s19, s15, 2")
    E("s_and_b32 s16, s14, 1\ns_lshl2_add_u32 s16, s16, s35")
    E("s_lshr_b32 s17, s14, 1\ns_mul_i32 s17, s17, 7\ns_add_u32 s17, s17, s19")
    E("s_lshl2_add_u32 s18, s14, s35")
    E("s_cmp_eq_u32 s19, 7\ns_cselect_b32 s34, 0, s19")
    E("s_cbranch_scc1 L_spare")
    E("s_cmp_lt_u32 s20, 4")
    E("s_cbranch_scc1 L_comp")
    body = E.render()
    body += loader(False)
    body += ".p2align 6\nL_comp:\n" + compute(False)
    body += ".p2align 6\nL_spare:\n    s_cmp_lt_u32 s20, 4\n    s_cbranch_scc1 L_comps\n"
    body += loader(True)
    body += ".p2align 6\nL_comps:\n" + compute(True)
    body += "L_end:\n    s_endpgm\nL_codeend:\n"
    return single_file(body, 256, 512, 163840, 256)

DEF = dict(class_at={0: 14, 1: 16, 2: 18, 3: 20}, class_at_s={0: 15, 1: 16, 2: 18, 3: 20})
if __name__ == "__main__":
    open("v2.s", "w").write(build(dict(DEF)))
    open("v2_st.s", "w").write(build(dict(DEF, stamps=True)))
```

```python
import sys, struct, math
from common import *

C0 = -2.0 * 0.7978845608028654 * 1.4426950408889634
C1 = C0 * 0.044715
def f2u(f): return struct.unpack("<I", struct.pack("<f", f))[0]

class Stream:
    def __init__(self):
        self.ins = []
    def add(self, text, lds=None, vm=None, need_lds=(), need_vm=(), mw=None, vr=(), trans=None, tr=()):
        self.ins.append(dict(t=text, lds=lds, vm=vm, nl=list(need_lds), nv=list(need_vm), mw=mw, vr=set(vr), trans=trans))
    def __call__(self, text):
        for l in text.split("\n"):
            if l.strip(): self.add(l.strip())
    def render(self):
        out = []
        lds_q = []; vm_q = []
        lds_done = 0; vm_done = 0
        mf = {}
        lasttrans = {}
        pos = 0
        def emit(t):
            nonlocal pos
            out.append(t)
            if t.endswith(":") or t.startswith(";") or t.startswith("."): return
            if t.startswith("s_nop"): pos += int(t.split()[1]) + 1
            else: pos += 1
        for I in self.ins:
            w = []
            nl = I["nl"]; nv = I["nv"]
            if nl == ["ALL"]:
                if lds_done < len(lds_q): w.append("lgkmcnt(0)"); lds_done = len(lds_q)
            elif nl:
                k = max(lds_q.index(x) for x in nl) + 1
                if k > lds_done:
                    n = len(lds_q) - k
                    n = min(n, 15)
                    w.append(f"lgkmcnt({n})"); lds_done = len(lds_q) - n
            if nv == ["ALL"]:
                if vm_done < len(vm_q): w.insert(0, "vmcnt(0)"); vm_done = len(vm_q)
            elif nv:
                k = max(vm_q.index(x) for x in nv) + 1
                if k > vm_done:
                    n = len(vm_q) - k
                    assert n <= 63
                    w.insert(0, f"vmcnt({n})"); vm_done = len(vm_q) - n
            if w: emit("s_waitcnt " + " ".join(w))
            need = 0
            for r in I["vr"]:
                if r in mf: need = max(need, 12 - (pos - mf[r] - 1))
                if r in lasttrans and I["trans"] is None: need = max(need, 1 - (pos - lasttrans[r] - 1))
            while need > 0:
                n = min(need, 16); emit(f"s_nop {n-1}"); need -= n
            if I["t"]:
                if I["mw"]:
                    for r in range(I["mw"][0], I["mw"][1] + 1): mf[r] = pos
                if I["trans"] is not None: lasttrans[I["trans"]] = pos
                emit(I["t"])
            if I["lds"] is not None: lds_q.append(I["lds"])
            if I["vm"] is not None:
                vm_q.append(I["vm"])
                assert len(vm_q) - vm_done <= 63, "too many outstanding vm ops"
        return "\n".join((l if l.endswith(":") else "    " + l) for l in out) + "\n"

BLK = 16384
FO = 8 << 20
FSZ = 897 * 128
WR = 0
ACC = [128 + 16*i for i in range(5)]
POOL = 208
NPOOL = 6
TMP = 232
XA = 240
WA = 244
L16 = 245
CC0 = 246
DA = 247
VT = 253

def build(cfg):
    stamps = cfg.get("stamps", False)
    HD = cfg.get("hdist", 12)
    LOOK = cfg.get("look", 5)
    xblk = {i: i % 3 for i in range(16)}
    wblk = {i: 4 + i % 3 for i in range(8)}
    dblk = {0: 3, 1: 7, 2: 8, 3: 9, 4: wblk[5], 5: wblk[6], 6: wblk[7], 7: xblk[13], 8: xblk[14], 9: xblk[15]}
    for j in range(10, 14): dblk[j] = dblk[j - 10]
    plan = {s: [] for s in range(-1, 23)}
    plan[-1] = [("X", 0), ("W", 0), ("X", 1), ("W", 1)]
    for s in range(0, 14):
        plan[s].append(("X", s + 2))
        if s + 2 < 8: plan[s].append(("W", s + 2))
    dsched = cfg.get("dsched", {0: 0, 1: 6, 2: 7, 3: 8, 4: 9, 5: 10, 6: 11, 7: 14, 8: 15, 9: 16, 10: 17, 11: 17, 12: 18, 13: 18})
    for j, s in dsched.items(): plan[s].append(("D", j))
    def consume_step(it):
        k, i = it
        return i if k in "XW" else 16 + i // 2
    occ = {}
    for s in range(-1, 23):
        for it in plan[s]:
            b = {"X": xblk, "W": wblk, "D": dblk}[it[0]][it[1]]
            if b in occ: assert consume_step(occ[b]) < s, (it, s, occ[b])
            assert s < consume_step(it), it
            occ[b] = it
    pub = cfg.get("pub", {2: 11, 4: 13, 6: 15, 8: 18})
    blk_class = lambda j: (2*j + 1) // 7

    def compute(spare):
        S = Stream()
        sfx = "s" if spare else "r"
        S(f"v_and_b32 v{VT}, 63, v0")
        lane = VT
        S(f"v_lshlrev_b32 v{L16}, 4, v{lane}")
        if cfg.get("codepf", True):
            S("s_getpc_b64 s[60:61]")
            S(f"L_pc{sfx}:")
            S(f"s_sub_u32 s60, s60, L_pc{sfx}-{KNAME}")
            S("s_subb_u32 s61, s61, 0")
            S(f"s_mov_b32 s62, L_codeend-{KNAME}")
            S("s_mov_b32 s63, 0x20000")
            S("s_lshl_b32 s64, s15, 2\ns_add_u32 s64, s64, s20\ns_lshl_b32 s64, s64, 10")
            pfd = ACC[2] if spare else ACC[4]
            S.add(f"buffer_load_dwordx4 v[{pfd}:{pfd+3}], v{L16}, s[60:63], s64 offen", vm="pf")
        t1, t2 = VT + 1, VT + 2
        if not spare:
            S(f"v_and_b32 v{t1}, 31, v{lane}")
            S(f"v_bfe_u32 v{t2}, v{lane}, 1, 3")
            S(f"v_lshrrev_b32 v{TMP}, 5, v{lane}")
            S(f"v_xor_b32 v{t2}, v{t2}, v{TMP}")
            S(f"v_lshlrev_b32 v{t1}, 7, v{t1}")
            for ks in range(4):
                S(f"v_xor_b32 v{TMP}, {2*ks}, v{t2}")
                S(f"v_lshl_add_u32 v{XA+ks}, v{TMP}, 4, v{t1}")
            S(f"v_lshrrev_b32 v{t1}, 5, v{lane}")
            S(f"v_lshlrev_b32 v{t1}, 3, v{t1}")
            S(f"v_bfe_u32 v{t2}, v{lane}, 2, 2")
            S(f"v_add_u32 v{t1}, v{t1}, v{t2}")
            S(f"v_lshlrev_b32 v{t1}, 7, v{t1}")
            S(f"v_bfe_u32 v{t2}, v{lane}, 4, 1")
            S(f"v_lshl_add_u32 v{t1}, v{t2}, 13, v{t1}")
            S(f"v_bfe_u32 v{TMP}, v{lane}, 3, 1")
            S(f"v_lshl_add_u32 v{t2}, v{TMP}, 1, v{t2}")
            S(f"v_xor_b32 v{t2}, s20, v{t2}")
            S(f"v_lshl_add_u32 v{t1}, v{t2}, 5, v{t1}")
            S(f"v_and_b32 v{t2}, 1, v{lane}")
            S(f"v_lshl_add_u32 v{t1}, v{t2}, 4, v{t1}")
            S(f"v_bfe_u32 v{t2}, v{lane}, 1, 1")
            S(f"v_lshl_add_u32 v{t1}, v{t2}, 3, v{t1}")
            S(f"v_add_u32 v{WA}, 0x10000, v{t1}")
            S(f"s_mov_b32 s40, {f2u(C0):#x}\ns_mov_b32 s41, {f2u(C1):#x}")
            S(f"v_mov_b32 v{CC0}, s40")
        S(f"v_lshrrev_b32 v{t1}, 5, v{lane}")
        S(f"v_lshlrev_b32 v{t1}, 3, v{t1}")
        S(f"v_bfe_u32 v{t2}, v{lane}, 2, 2")
        S(f"v_add_u32 v{t1}, v{t1}, v{t2}")
        S(f"v_lshlrev_b32 v{t1}, 7, v{t1}")
        S(f"v_bfe_u32 v{t2}, v{lane}, 3, 1")
        S(f"v_lshl_add_u32 v{t1}, v{t2}, 6, v{t1}")
        S(f"v_bfe_u32 v{t2}, v{lane}, 4, 1")
        S(f"v_lshl_add_u32 v{t1}, v{t2}, 5, v{t1}")
        S(f"v_and_b32 v{t2}, 1, v{lane}")
        S(f"v_lshl_add_u32 v{t1}, v{t2}, 4, v{t1}")
        S(f"v_bfe_u32 v{t2}, v{lane}, 1, 1")
        S(f"v_lshl_add_u32 v{t1}, v{t2}, 3, v{t1}")
        S("s_lshr_b32 s21, s20, 1\ns_and_b32 s22, s20, 1")
        S("s_lshl_b32 s23, s21, 13")
        S(f"v_add_u32 v{DA}, s23, v{t1}")
        S(f"v_xor_b32 v{DA+1}, 64, v{DA}")
        for w in (1, 2):
            S(f"v_add_u32 v{DA+2*w}, {w*65536:#x}, v{DA}")
            S(f"v_add_u32 v{DA+2*w+1}, {w*65536:#x}, v{DA+1}")
        S("s_lshl_b32 s42, s18, 1\ns_add_u32 s42, s42, s22\ns_mul_i32 s42, s42, 114688")
        seq_table(S, "s21", 66, 12, "s42")
        S("s_waitcnt lgkmcnt(0)")
        S("s_mov_b32 s44, s30\ns_mov_b32 s45, s31\ns_mov_b32 s46, 7340032\ns_mov_b32 s47, 0x20000")
        S("s_mov_b32 s48, s26\ns_mov_b32 s49, s27\ns_mov_b32 s50, 0x200000\ns_mov_b32 s51, 0x20000")
        if not spare:
            S("s_lshl_b32 s42, s17, 2\ns_add_u32 s42, s42, s20\ns_mul_i32 s43, s16, 896\ns_add_u32 s42, s42, s43")
            S("s_and_b32 s43, s17, 3\ns_lshl_b32 s43, s43, 1")
            for p in range(8):
                S(f"s_add_u32 s65, s43, {p}\ns_and_b32 s65, s65, 7\ns_mul_i32 s65, s65, 112\ns_add_u32 s65, s65, s42\ns_lshl_b32 s{52+p}, s65, 10")

        M = []
        pooln = [0]
        def pool():
            r = POOL + 4 * (pooln[0] % NPOOL); pooln[0] += 1; return r
        if not spare:
            accof = {0: 0, 1: 1, 2: 2, 3: 3, 4: 4, 5: 0, 6: 1, 7: 2}
            for i in range(8):
                for ks in range(4):
                    for g in range(4):
                        rd = []
                        wreg = WR + 4 * (4*i + ks)
                        if g == 0:
                            for j in range(2):
                                off = (wblk[i] - 4) * BLK + ks * 2048 + j * 512
                                rd.append((("w", i, ks, j), f"ds_read_b64_tr_b16 v[{wreg+2*j}:{wreg+2*j+1}], v{WA} offset:{off}"))
                        xr = pool()
                        rd.append((("x", i, ks, g), f"ds_read_b128 v[{xr}:{xr+3}], v{XA+ks} offset:{xblk[i]*BLK + g*4096}"))
                        M.append(dict(step=i, acc=ACC[g], A=wreg, B=xr, first=(i == 0 and ks == 0), rd=rd, last=(i == 7 and ks == 3), grp=g))
            for p in range(4, 8):
                for i in range(8):
                    st = 8 + 2*(p - 4) + i // 4
                    for ks in range(4):
                        xr = pool()
                        rd = [(("x", p, i, ks, 9), f"ds_read_b128 v[{xr}:{xr+3}], v{XA+ks} offset:{xblk[st]*BLK + (i % 4)*4096}")]
                        M.append(dict(step=st, acc=ACC[accof[p]], A=WR + 4*(4*i + ks), B=xr, first=(i == 0 and ks == 0), rd=rd,
                                      last=(i == 7 and ks == 3), grp=p, wdead=(4*i + ks if p == 7 else None)))
        n1 = len(M)
        A2 = [ACC[3], ACC[4]]
        for j in range(14):
            b = dblk[j]
            for ks in range(4):
                n = 4*j + ks
                for t in range(2):
                    r = pool()
                    rd = []
                    for jj in range(2):
                        off = (b % 4) * BLK + ks * 2048 + jj * 512
                        rd.append((("d", j, ks, t, jj), f"ds_read_b64_tr_b16 v[{r+2*jj}:{r+2*jj+1}], v{DA+2*(b//4)+t} offset:{off}"))
                    M.append(dict(step=16 + j // 2, acc=A2[t], A=r, B=WR + 4*(n % 32), first=(n == 0), rd=rd, h=n, last=False, grp=None))
        NM = len(M)
        def epi(p):
            a = ACC[accof[p]]
            L = []
            for hb in range(2):
                idx = range(4*hb, 4*hb + 4)
                T = lambda i: TMP + (i % 4) + 4*hb
                for i in idx: L.append(dict(text=f"v_mul_f32 v{T(i)}, v{a+i}, v{a+i}", vr=[a+i], cost=1))
                for i in idx: L.append(dict(text=f"v_fma_f32 v{T(i)}, v{T(i)}, s41, v{CC0}", vr=[], cost=1))
                for i in idx: L.append(dict(text=f"v_mul_f32 v{T(i)}, v{T(i)}, v{a+i}", vr=[], cost=1))
                for i in idx:
                    L.append(dict(text=f"v_exp_f32 v{T(i)}, v{T(i)}", vr=[], cost=2, trans=T(i)))
                    L.append(dict(text=f"v_mul_f32 v{a+8+i}, v{a+i}, v{a+8+i}", vr=[a+8+i], cost=1))
                for i in idx: L.append(dict(text=f"v_add_f32 v{T(i)}, 1.0, v{T(i)}", vr=[T(i)], cost=1))
                for i in idx: L.append(dict(text=f"v_rcp_f32 v{T(i)}, v{T(i)}", vr=[], cost=2, trans=T(i)))
                for i in idx: L.append(dict(text=f"v_mul_f32 v{a+8+i}, v{a+8+i}, v{T(i)}", vr=[T(i)], cost=1))
            for i in range(4): L.append(dict(text=f"v_cvt_pk_bf16_f32 v{a+i}, v{a+8+2*i}, v{a+8+2*i+1}", vr=[], cost=1))
            L.append(dict(text=f"buffer_store_dwordx4 v[{a}:{a+3}], v{L16}, s[44:47], s{52+p} offen sc1", vm=("st", p), vr=[], cost=1))
            return L
        first_step = 16 if spare else 0
        rdptr = 0
        hptr = 0
        epq = []
        cur_bar = first_step - 1
        wdead = 32 if spare else 0
        class_ok_at = cfg["class_at_s"] if spare else cfg["class_at"]
        def barrier(s):
            nonlocal cur_bar
            nv = []
            if not spare:
                for v, bs in pub.items():
                    if bs == s: nv = [("st", p) for p in range(v)]
                if s == 6 and cfg.get("codepf", True): nv = nv + ["pf"]
            S.add("s_barrier", need_lds=["ALL"], need_vm=nv)
            cur_bar = s
        def issue_reads(upto, maxn):
            nonlocal rdptr
            cnt = 0
            while rdptr < NM and rdptr <= upto and M[rdptr]["step"] <= cur_bar and cnt < maxn:
                for (i, t) in M[rdptr]["rd"]: S.add(t, lds=i)
                rdptr += 1; cnt += 1
        def issue_h(maxn, hcons):
            nonlocal hptr
            cnt = 0
            while hptr < 56 and cnt < maxn and hptr < hcons + HD and (hptr < wdead if hptr < 32 else hptr - 32 < hcons) \
                    and class_ok_at[blk_class(hptr // 4)] <= cur_bar:
                r = WR + 4 * (hptr % 32)
                S.add(f"buffer_load_dwordx4 v[{r}:{r+3}], v{L16}, s[44:47], s{66 + hptr//4} offen offset:{(hptr % 4)*1024} sc1", vm=("h", hptr))
                hptr += 1; cnt += 1
        if spare:
            barrier(15)
            issue_h(99, 0)
        barrier(first_step)
        issue_reads(NPOOL - 2, 99)
        EPB = cfg.get("epb", 5)
        for n, m in enumerate(M):
            nv = [("h", m["h"])] if "h" in m else []
            if "h" in m: assert m["h"] < hptr, ("h not issued", m["h"], hptr, n)
            assert rdptr > n, ("reads not issued", n)
            if m["first"]:
                for e in epq: assert e[2] != m["acc"], ("acc reuse", n)
            c = "0" if m["first"] else f"v[{m['acc']}:{m['acc']+15}]"
            S.add(f"v_mfma_f32_32x32x16_bf16 v[{m['acc']}:{m['acc']+15}], v[{m['A']}:{m['A']+3}], v[{m['B']}:{m['B']+3}], {c}",
                  need_lds=[i for i, _ in m["rd"]], need_vm=nv, mw=(m["acc"], m["acc"] + 15))
            if m.get("wdead") is not None: wdead = m["wdead"] + 1
            if m["last"]: epq.append([n + 2, epi(m["grp"]), m["acc"]])
            BK = cfg.get("bk", 3)
            if n + 1 + BK <= NM - 1 + 1 and n + BK + 1 < NM and M[n + BK + 1]["step"] > cur_bar and M[n + BK]["step"] == cur_bar:
                assert rdptr == n + BK + 1, (rdptr, n)
                barrier(cur_bar + 1)
                issue_reads(n + NPOOL - 1, 99)
            else:
                issue_reads(n + NPOOL - 1, 2)
            hcons = (m["h"] + (1 if m["acc"] == A2[1] else 0)) if "h" in m else 0
            issue_h(1, hcons)
            budget = EPB
            while epq and epq[0][0] <= n and budget > 0:
                e = epq[0][1].pop(0)
                S.add(e["text"], vm=e.get("vm"), vr=e["vr"], trans=e.get("trans"))
                budget -= e["cost"]
                if not epq[0][1]: epq.pop(0)
        assert not epq and hptr == 56
        S.add("s_barrier", need_lds=["ALL"])
        S("s_lshl_b32 s40, s20, 12")
        S(f"v_add_u32 v{TMP}, s40, v{L16}")
        S("s_xor_b32 s41, s20, 2\ns_lshl_b32 s41, s41, 12")
        S(f"v_add_u32 v{TMP+1}, s41, v{L16}")
        S(f"v_lshrrev_b32 v{TMP+2}, 4, v{L16}")
        S(f"v_and_b32 v{TMP+3}, 31, v{TMP+2}\nv_lshlrev_b32 v{TMP+3}, 10, v{TMP+3}\nv_lshrrev_b32 v{TMP+2}, 5, v{TMP+2}\nv_lshl_add_u32 v{TMP+3}, v{TMP+2}, 4, v{TMP+3}")
        S("s_lshl_b32 s42, s18, 16\ns_lshl_b32 s43, s22, 15\ns_add_u32 s42, s42, s43\ns_lshl_b32 s43, s19, 7\ns_add_u32 s42, s42, s43\ns_lshl_b32 s43, s21, 6\ns_add_u32 s42, s42, s43")
        S("s_nop 3")
        S("s_cmp_eq_u32 s21, 0")
        S(f"s_cbranch_scc0 L_kh1{sfx}")
        R = ACC[0]
        for kh in range(2):
            send = A2[1 - kh]; keep = A2[kh]
            if kh == 1: S(f"L_kh1{sfx}:")
            for i in range(4):
                S(f"ds_write_b128 v{TMP}, v[{send+4*i}:{send+4*i+3}] offset:{1024*i}")
            S("s_waitcnt lgkmcnt(0)")
            S("s_barrier")
            for i in range(4):
                S(f"ds_read_b128 v[{R+4*i}:{R+4*i+3}], v{TMP+1} offset:{1024*i}")
            for q in range(2):
                S(f"s_waitcnt lgkmcnt({2 - 2*q})")
                for i in range(8*q, 8*q + 8): S(f"v_add_f32 v{R+i}, v{R+i}, v{keep+i}")
                for i in range(4): S(f"v_cvt_pk_bf16_f32 v{ACC[1]+4*q+i}, v{R+8*q+2*i}, v{R+8*q+2*i+1}")
                S(f"buffer_store_dwordx4 v[{ACC[1]+4*q}:{ACC[1]+4*q+3}], v{TMP+3}, s[48:51], s42 offen offset:{32*q}")
            if kh == 0: S(f"s_branch L_fin{sfx}")
        S(f"L_fin{sfx}:")
        if stamps:
            S("s_memrealtime s[80:81]")
            S("s_waitcnt vmcnt(0)")
            S("s_memrealtime s[82:83]")
            S("s_waitcnt lgkmcnt(0)")
            S("s_cmp_lg_u32 s20, 0")
            S("s_cbranch_scc1 L_end")
            S("s_add_u32 s30, s30, 0x8000000\ns_addc_u32 s31, s31, 0")
            S("s_lshl_b32 s40, s2, 8\ns_add_u32 s40, s40, 240")
            S("v_mov_b32 v0, s40\nv_mov_b32 v2, s80\nv_mov_b32 v3, s82")
            S("global_store_dwordx2 v0, v[2:3], s[30:31]")
        S("s_endpgm")
        return S.render()

    def seq_table(S, kh, base, shift, add):
        for j in range(14):
            S(f"s_add_u32 s36, {kh}, {2*j}")
            S("s_mul_i32 s37, s36, 37\ns_lshr_b32 s37, s37, 8")
            S("s_mul_i32 s38, s37, 7\ns_sub_u32 s36, s36, s38")
            S("s_add_u32 s36, s36, s34")
            S("s_sub_u32 s38, s36, 7\ns_cmp_ge_u32 s36, 7\ns_cselect_b32 s36, s38, s36")
            S("s_sub_u32 s37, s35, s37\ns_and_b32 s37, s37, 3")
            S("s_lshl2_add_u32 s36, s36, s37")
            S(f"s_lshl_b32 s36, s36, {shift}")
            S(f"s_add_u32 s{base+j}, s36, {add}")

    def loader(spare):
        S = Stream()
        sfx = "s" if spare else "r"
        VX, VW, VD = 4, 8, 12
        VF, VP, VS, VZ, VT2 = 16, 17, 18, 19, 22
        S("v_and_b32 v1, 63, v0")
        S("s_and_b32 s21, s20, 3")
        S("v_lshrrev_b32 v2, 3, v1")
        S("v_lshrrev_b32 v3, 4, v1")
        if not spare:
            S("v_xor_b32 v20, v3, v1\nv_and_b32 v20, 7, v20\nv_lshlrev_b32 v21, 10, v2")
            S(f"v_lshl_add_u32 v{VX}, v20, 4, v21")
            S(f"v_xor_b32 v{VX+1}, 64, v{VX}")
            S(f"v_add_u32 v{VX+1}, {7*1024}, v{VX+1}")
            S(f"v_add_u32 v{VX+2}, {14*1024}, v{VX}")
            S(f"v_add_u32 v{VX+3}, {14*1024}, v{VX+1}")
            S("s_lshr_b32 s22, s21, 1\ns_lshl_b32 s23, s22, 1")
            S("v_and_b32 v20, 1, v3\nv_lshlrev_b32 v20, 2, v20\nv_or_b32 v20, s23, v20\nv_xor_b32 v20, v20, v1\nv_and_b32 v20, 7, v20")
            S("v_mul_u32_u24 v21, 3584, v2")
            S(f"v_lshl_add_u32 v{VW}, v20, 4, v21")
            for q in range(1, 4): S(f"v_add_u32 v{VW+q}, {q*(8*3584-1024)}, v{VW}")
            S("s_and_b32 s40, s16, 3\ns_lshl_b32 s40, s40, 1\ns_lshr_b32 s41, s16, 2\ns_add_u32 s40, s40, s41")
            if cfg.get("crot", 1):
                S("s_lshr_b32 s41, s17, 2\ns_add_u32 s40, s40, s41")
            S("s_and_b32 s40, s40, 7")
            S("s_and_b32 s43, s17, 3\ns_lshl_b32 s43, s43, 1")
            S("s_add_u32 s41, s43, s21\ns_and_b32 s41, s41, 7\ns_lshl_b32 s41, s41, 15\ns_lshl_b32 s44, s16, 18\ns_add_u32 s42, s41, s44")
            S("s_and_b32 s45, s21, 1\ns_mul_i32 s45, s45, 114688\ns_lshl_b32 s41, s17, 7\ns_add_u32 s45, s45, s41")
        S("s_lshl_b32 s46, s21, 12")
        S("s_waitcnt lgkmcnt(0)")
        if not spare:
            S("s_mov_b32 s48, s4\ns_mov_b32 s49, s5\ns_mov_b32 s50, 0x200000\ns_mov_b32 s51, 0x20000")
            S("s_cmp_eq_u32 s22, 0")
            S("s_cselect_b32 s52, s6, s8\ns_cselect_b32 s53, s7, s9\ns_mov_b32 s54, 1835008\ns_mov_b32 s55, 0x20000")
        dinit = [False]
        def d_setup():
            dinit[0] = True
            S("v_and_b32 v20, 1, v3\nv_lshlrev_b32 v20, 2, v20\nv_xor_b32 v20, v20, v1\nv_and_b32 v20, 7, v20\nv_lshlrev_b32 v21, 10, v2")
            S(f"v_lshl_add_u32 v{VD}, v20, 4, v21")
            for q in range(1, 4): S(f"v_add_u32 v{VD+q}, {q*7*1024}, v{VD}")
            S("s_mov_b32 s56, s10\ns_mov_b32 s57, s11\ns_mov_b32 s58, 1835008\ns_mov_b32 s59, 0x20000")
            S("s_lshr_b32 s47, s21, 1")
            S("s_and_b32 s39, s21, 1\ns_lshl_b32 s39, s39, 15\ns_lshl_b32 s41, s19, 7\ns_add_u32 s39, s39, s41")
        def d_entry(j):
            S(f"s_add_u32 s36, s47, {2*j}")
            S("s_mul_i32 s37, s36, 37\ns_lshr_b32 s37, s37, 8")
            S("s_mul_i32 s38, s37, 7\ns_sub_u32 s36, s36, s38")
            S("s_add_u32 s36, s36, s34")
            S("s_sub_u32 s38, s36, 7\ns_cmp_ge_u32 s36, 7\ns_cselect_b32 s36, s38, s36")
            S("s_sub_u32 s37, s35, s37\ns_and_b32 s37, s37, 3")
            S("s_lshl2_add_u32 s36, s36, s37")
            S("s_lshl_b32 s36, s36, 16")
            S("s_add_u32 s60, s36, s39")
        def item(it):
            k, i = it
            if k == "X":
                if i < 8:
                    S(f"s_add_u32 s60, s40, {i}\ns_and_b32 s60, s60, 7\ns_lshl_b32 s60, s60, 7\ns_add_u32 s60, s60, s42")
                else:
                    p = 4 + (i - 8) // 2; hf = (i - 8) % 2
                    S(f"s_add_u32 s60, s40, s21\ns_add_u32 s60, s60, {4*hf}\ns_and_b32 s60, s60, 7\ns_lshl_b32 s60, s60, 7")
                    S(f"s_add_u32 s61, s43, {p}\ns_and_b32 s61, s61, 7\ns_lshl_b32 s61, s61, 15\ns_add_u32 s60, s60, s61\ns_add_u32 s60, s60, s44")
                b, v, srd = xblk[i], VX, 48
            elif k == "W":
                S(f"s_add_u32 s60, s40, {i}\ns_and_b32 s60, s60, 7\ns_mul_i32 s60, s60, {64*3584}\ns_add_u32 s60, s60, s45")
                b, v, srd = wblk[i], VW, 52
            else:
                if not dinit[0]: d_setup()
                d_entry(i)
                b, v, srd = dblk[i], VD, 56
            S(f"s_add_u32 m0, s46, {b*BLK}")
            S("s_nop 0")
            for q in range(4):
                S.add(f"buffer_load_dwordx4 v{v+q}, s[{srd}:{srd+3}], s60 offen offset:{1024*q} lds", vm=(k, i, q))
        def sync_setup():
            S(f"s_add_u32 s64, s30, {FO}\ns_addc_u32 s65, s31, 0\ns_mov_b32 s66, {FSZ}\ns_mov_b32 s67, 0x20000")
            S("s_mov_b32 s88, s28\ns_mov_b32 s89, s29\ns_mov_b32 s90, 256\ns_mov_b32 s91, 0x20000")
            S("s_cmp_eq_u32 s21, 0\ns_cselect_b32 s73, 0, 0x1000000")
            S(f"v_min_u32 v{VP}, 6, v1\nv_lshlrev_b32 v{VP}, 9, v{VP}")
            S("s_mul_i32 s68, s18, 3584\ns_add_u32 s68, s68, s73")
            S(f"v_lshlrev_b32 v{VF}, 20, v1")
            S(f"v_mov_b32 v{VZ}, 0")
            if not spare:
                S("s_mul_i32 s69, s16, 14336\ns_lshl_b32 s72, s17, 7\ns_add_u32 s69, s69, s72\ns_add_u32 s69, s69, s73")
            if stamps: S(f"v_mov_b32 v{VS}, 0\nv_mov_b32 v32, 0")
        def tag_make():
            S("s_cmp_eq_u32 s2, 224\ns_cselect_b32 s72, s21, 0\ns_cmp_eq_u32 s72, 1")
            S("s_cbranch_scc0 L_notag")
            S(f"s_mov_b32 s72, {FSZ-128}")
            S(f"buffer_load_dwordx2 v[{VT2}:{VT2+1}], v{VZ}, s[64:67], s72 offen sc1")
            S("s_waitcnt vmcnt(0)")
            S(f"v_add_u32 v{VT2}, 1, v{VT2}")
            S(f"v_or_b32 v{VT2+1}, 0x80000000, v{VT2+1}")
            S(f"buffer_store_dwordx2 v[{VT2}:{VT2+1}], v{VF}, s[88:91], 0 offen sc1")
            S(f"buffer_store_dwordx2 v[{VT2}:{VT2+1}], v{VF}, s[64:67], s72 offen sc1")
            S("s_waitcnt vmcnt(0)")
            S("L_notag:")
        def tag_issue():
            S.add(f"buffer_load_dwordx2 v[{VT2}:{VT2+1}], v{VZ}, s[88:91], s73 offen sc1", vm="tag")
        def tag_check():
            S("s_mov_b32 s71, 0")
            S.add("", need_vm=["tag"])
            S(f"L_tag{sfx}:")
            S(f"v_readfirstlane_b32 s86, v{VT2}")
            S(f"v_readfirstlane_b32 s87, v{VT2+1}")
            S("s_nop 1")
            S("s_or_b32 s72, s87, s73")
            S("s_cmp_lg_u32 s72, 0")
            S(f"s_cbranch_scc1 L_tagok{sfx}")
            S("s_add_u32 s71, s71, 1")
            S("s_cmp_ge_u32 s71, 0x40000")
            S(f"s_cbranch_scc1 L_tagok{sfx}")
            S("s_sleep 2")
            S(f"buffer_load_dwordx2 v[{VT2}:{VT2+1}], v{VZ}, s[88:91], s73 offen sc1")
            S("s_waitcnt vmcnt(0)")
            S(f"s_branch L_tag{sfx}")
            S(f"L_tagok{sfx}:")
        nst = [0]
        def stamp_take():
            if stamps: S("s_memrealtime s[80:81]")
        def stamp_put(idx):
            if stamps:
                S("s_waitcnt lgkmcnt(0)")
                S(f"v_writelane_b32 v{VS}, s80, {idx}")
                S(f"v_writelane_b32 v32, s82, {idx}")
        class_ok_at = cfg["class_at_s"] if spare else cfg["class_at"]
        issued = []
        if spare:
            myplan = {s: [] for s in range(-1, 23)}
            myplan[-1] = [("D", j) for j in range(10)]
            for j in range(10, 14): myplan[dsched[j]].append(("D", j))
            steps = [15] + list(range(16, 23))
        else:
            myplan = plan
            steps = list(range(0, 23))
        if spare:
            sync_setup()
            tag_make()
        for it in myplan[-1]: item(it); issued.append(it)
        if not spare: sync_setup()
        if spare:
            tag_issue(); tag_check()
        if stamps:
            S(f"v_writelane_b32 v{VS}, s84, 0")
        def poll_issue(c):
            S(f"s_sub_u32 s70, s35, {c}\ns_and_b32 s70, s70, 3\ns_lshl_b32 s70, s70, 7\ns_add_u32 s{92+c}, s70, s68")
            S.add(f"buffer_load_dwordx2 v[{24+2*c}:{25+2*c}], v{VP}, s[64:67], s{92+c} offen sc1", vm=("poll", c))
        def poll_check(c):
            S("s_mov_b32 s71, 0")
            S.add("", need_vm=[("poll", c)])
            S(f"L_poll{sfx}{c}:")
            S(f"v_cmp_eq_u64 vcc, s[86:87], v[{24+2*c}:{25+2*c}]")
            S("s_nop 1")
            S("s_cmp_eq_u64 vcc, -1")
            S(f"s_cbranch_scc1 L_ok{sfx}{c}")
            S("s_add_u32 s71, s71, 1")
            S("s_cmp_ge_u32 s71, 0x40000")
            S(f"s_cbranch_scc1 L_ok{sfx}{c}")
            if spare and c == 0: S("s_sleep 8")
            S(f"buffer_load_dwordx2 v[{24+2*c}:{25+2*c}], v{VP}, s[64:67], s{92+c} offen sc1")
            S("s_waitcnt vmcnt(0)")
            S(f"s_branch L_poll{sfx}{c}")
            S(f"L_ok{sfx}{c}:")
            if stamps: S(f"v_writelane_b32 v{VS}, s71, {40+c}")
        PD = cfg.get('pd', 1)
        last_needed = max(max(consume_step(it) for s in myplan for it in myplan[s]), max(class_ok_at.values()), 0 if spare else max(pub.values()))
        for c, bs in class_ok_at.items():
            if bs - PD < steps[0]: poll_issue(c)
        for s in steps:
            for c, bs in class_ok_at.items():
                if bs == s: poll_check(c)
            nv = [(k, i, 3) for (k, i) in issued if consume_step((k, i)) <= s]
            if stamps:
                S.add("s_memrealtime s[82:83]", need_vm=nv)
            S.add("s_barrier", need_vm=nv)
            stamp_take()
            if not spare:
                for e, (v, bs) in enumerate(sorted(pub.items())):
                    if bs == s:
                        S(f"s_add_u32 s72, s17, {e}\ns_and_b32 s72, s72, 3\ns_mul_i32 s72, s72, 3584\ns_add_u32 s72, s72, s69")
                        S.add(f"buffer_store_dwordx2 v[{VT2}:{VT2+1}], v{VF}, s[64:67], s72 offen sc1", vm=("flag", v))
                if s == cfg.get("tag_issue", 3): tag_issue()
                if s == cfg.get("tag_check", 8): tag_check()
            for c, bs in class_ok_at.items():
                if bs == s + PD: poll_issue(c)
            for it in myplan[s]: item(it); issued.append(it)
            stamp_put(s + 1)
            if s >= last_needed and not stamps: break
        if stamps:
            S("s_cmp_lg_u32 s21, 0")
            S("s_cbranch_scc1 L_end")
            S("s_add_u32 s30, s30, 0x8000000\ns_addc_u32 s31, s31, 0")
            S("s_lshl_b32 s40, s2, 8")
            S("v_lshlrev_b32 v2, 2, v1\nv_add_u32 v2, s40, v2")
            S("v_cmp_gt_u32 vcc, 60, v1\ns_and_saveexec_b64 s[74:75], vcc")
            S(f"global_store_dword v2, v{VS}, s[30:31]")
            S("v_add_u32 v2, 0x10000, v2")
            S(f"global_store_dword v2, v32, s[30:31]")
        S("s_endpgm")
        return S.render()

    E = Stream()
    E("s_load_dwordx8 s[4:11], s[0:1], 0")
    E("s_load_dwordx4 s[24:27], s[0:1], 24")
    E("s_load_dwordx4 s[28:31], s[0:1], 40")
    if stamps: E("s_memrealtime s[84:85]")
    E("v_lshrrev_b32 v1, 6, v0")
    E("s_cmp_ge_u32 s2, 256")
    E("s_cbranch_scc1 L_end")
    E("v_readfirstlane_b32 s20, v1")
    E("s_and_b32 s14, s2, 7\ns_lshr_b32 s15, s2, 3")
    E("s_and_b32 s35, s15, 3\ns_lshr_b32 s19, s15, 2")
    E("s_and_b32 s16, s14, 1\ns_lshl2_add_u32 s16, s16, s35")
    E("s_lshr_b32 s17, s14, 1\ns_mul_i32 s17, s17, 7\ns_add_u32 s17, s17, s19")
    E("s_lshl2_add_u32 s18, s14, s35")
    E("s_cmp_eq_u32 s19, 7\ns_cselect_b32 s34, 0, s19")
    E("s_cbranch_scc1 L_spare")
    E("s_cmp_lt_u32 s20, 4")
    E("s_cbranch_scc1 L_comp")
    body = E.render()
    body += loader(False)
    body += ".p2align 6\nL_comp:\n" + compute(False)
    body += ".p2align 6\nL_spare:\n    s_cmp_lt_u32 s20, 4\n    s_cbranch_scc1 L_comps\n"
    body += loader(True)
    body += ".p2align 6\nL_comps:\n" + compute(True)
    body += "L_end:\n    s_endpgm\nL_codeend:\n"
    return single_file(body, 256, 512, 163840, 256)

DEF = dict(class_at={0: 14, 1: 16, 2: 18, 3: 20}, class_at_s={0: 15, 1: 16, 2: 18, 3: 20})
if __name__ == "__main__":
    open("v2.s", "w").write(build(dict(DEF)))
    open("v2_st.s", "w").write(build(dict(DEF, stamps=True)))
```

```python
import sys, struct, math, re
from common import *

C0 = -2.0 * 0.7978845608028654 * 1.4426950408889634
C1 = C0 * 0.044715
def f2u(f): return struct.unpack("<I", struct.pack("<f", f))[0]

VOP3_ONLY = ("v_fma_f32", "v_cvt_pk_bf16_f32", "v_lshl_add_u32", "v_bfe_u32", "v_mfma", "v_readlane", "v_writelane", "v_mul_lo", "v_pk_", "v_add3", "v_lshl_or", "v_and_or", "v_mad_")
def isize(t):
    op = t.split()[0]
    if t.endswith(":") or t.startswith("."): return 0
    if op.startswith(("ds_", "buffer_", "global_", "s_load", "s_mem")): return 8
    if op.startswith(VOP3_ONLY) or op.endswith("_e64"): return 8
    if op.startswith(("s_waitcnt", "s_barrier", "s_nop", "s_branch", "s_cbranch", "s_endpgm", "s_sleep", "s_setprio", "s_call", "s_setpc")): return 4
    args = [x.strip() for x in t[len(op):].split(",")]
    for x in args[1:]:
        if re.fullmatch(r"-?(0x[0-9a-fA-F]+|\d+)", x):
            v = int(x, 0)
            if not (-16 <= v <= 64): return 8
        elif "L_" in x: return 8
    return 4

class Stream:
    def __init__(self, align=0):
        self.ins = []; self.align = align
    def add(self, text, lds=None, vm=None, need_lds=(), need_vm=(), mw=None, vr=(), trans=None, vw=(), pr=(), peek_vm=None):
        self.ins.append(dict(t=text, lds=lds, vm=vm, nl=list(need_lds), nv=list(need_vm), mw=mw, vr=set(vr), trans=trans, vw=set(vw), pr=set(pr), peek=peek_vm))
    def __call__(self, text):
        for l in text.split("\n"):
            if l.strip(): self.add(l.strip())
    def render(self):
        out = []
        lds_q = {}; vm_q = {}
        lds_done = 0; vm_done = 0
        mf = {}; lasttrans = {}; lastw = {}
        pos = 0
        def emit(t):
            nonlocal pos
            if t.startswith("~"):
                out.append(t[1:]); return
            out.append(t)
            if t.endswith(":") or t.startswith(";") or t.startswith("."): return
            if t.startswith("s_nop"): pos += int(t.split()[1]) + 1
            else: pos += 1
        for I in self.ins:
            if I["peek"] is not None:
                out.append(f"s_waitcnt vmcnt({len(vm_q) - vm_q[I['peek']] - 1})")
                continue
            w = []
            nl = I["nl"]; nv = I["nv"]
            if nl == ["ALL"]:
                if lds_done < len(lds_q): w.append("lgkmcnt(0)"); lds_done = len(lds_q)
            elif nl:
                k = max(lds_q[x] for x in nl) + 1
                if k > lds_done:
                    n = min(len(lds_q) - k, 15)
                    w.append(f"lgkmcnt({n})"); lds_done = len(lds_q) - n
            if nv == ["ALL"]:
                if vm_done < len(vm_q): w.insert(0, "vmcnt(0)"); vm_done = len(vm_q)
            elif nv:
                k = max(vm_q[x] for x in nv) + 1
                if k > vm_done:
                    n = len(vm_q) - k
                    assert n <= 63
                    w.insert(0, f"vmcnt({n})"); vm_done = len(vm_q) - n
            if w: emit("s_waitcnt " + " ".join(w))
            need = 0
            for r in I["vr"]:
                if r in mf: need = max(need, 12 - (pos - mf[r] - 1))
                if r in lasttrans and I["trans"] is None: need = max(need, 1 - (pos - lasttrans[r] - 1))
            for r in I["pr"]:
                if r in lastw: need = max(need, 2 - (pos - lastw[r] - 1))
            while need > 0:
                n = min(need, 16); emit(f"s_nop {n-1}"); need -= n
            if I["t"]:
                if I["mw"]:
                    for r in range(I["mw"][0], I["mw"][1] + 1): mf[r] = pos
                if I["trans"] is not None: lasttrans[I["trans"]] = pos
                for r in I["vw"]: lastw[r] = pos
                emit(I["t"])
            if I["lds"] is not None:
                assert I["lds"] not in lds_q; lds_q[I["lds"]] = len(lds_q)
            if I["vm"] is not None:
                assert I["vm"] not in vm_q; vm_q[I["vm"]] = len(vm_q)
                assert len(vm_q) - vm_done <= 63, "too many outstanding vm ops"
        if self.align: out = self.do_align(out)
        return "\n".join((l if l.endswith(":") else "    " + l) for l in out) + "\n"
    def do_align(self, out):
        res = []; par = 0; cand = None
        for t in out:
            sz = isize(t)
            if sz == 8 and par:
                if cand is not None:
                    op = res[cand].split()[0]
                    res[cand] = op + "_e64" + res[cand][len(op):]
                    par = 0
                elif self.align == 2:
                    res.append("s_nop 0"); par = 0
            if sz == 8: cand = None
            if sz == 4:
                par ^= 1
                op = t.split()[0]
                if op in ("v_mul_f32", "v_add_f32", "v_exp_f32", "v_rcp_f32", "v_mov_b32", "v_add_u32", "v_and_b32", "v_xor_b32", "v_lshlrev_b32", "v_lshrrev_b32"):
                    cand = len(res)
            res.append(t)
        return res

BLK = 16384
FO = 8 << 20
FSZ = 897 * 128
WR = 0
ACC = [128, 144, 160]
POOL = 176; NPOOL = 8
TMP = 208
XA = 216
WA = 220
L16 = 222
CC0 = 223
DA = 224
VO = 230
VD = 234
VF, VP, VZ = 238, 239, 240
VT2 = 242
VPOLL = 244
LANE = 246
T1, T2, T3 = 247, 248, 249
VS = 250
PFD = 252

def build(cfg):
    stamps = cfg.get("stamps", False)
    SH1 = cfg.get("sh1", 32)
    HD = cfg.get("hdist", 12)
    AL = cfg.get("align", 0)
    xblk = {i: i % 3 for i in range(16)}
    wblk = {i: 4 + i % 3 for i in range(8)}
    dblk = {0: 3, 1: 7, 2: 8, 3: 9, 4: wblk[5], 5: wblk[6], 6: wblk[7], 7: xblk[13], 8: xblk[14], 9: xblk[15]}
    for j in range(10, 14): dblk[j] = dblk[j - 10]
    planA = {s: [] for s in range(-1, 23)}
    planB = {s: [] for s in range(-1, 23)}
    planA[-1] = [("X", 0), ("X", 1)]; planB[-1] = [("W", 0), ("W", 1)]
    for s in range(0, 14): planA[s].append(("X", s + 2))
    for s in range(0, 6): planB[s].append(("W", s + 2))
    dsched = cfg.get("dsched", {0: 6, 1: 7, 2: 8, 3: 9, 4: 10, 5: 11, 6: 12, 7: 14, 8: 15, 9: 16, 10: 17, 11: 17, 12: 18, 13: 18})
    for j, s in dsched.items(): planB[s].append(("D", j))
    def consume_step(it):
        k, i = it
        return i if k in "XW" else 16 + i // 2
    occ = {}
    for s in range(-1, 23):
        for it in planA[s] + planB[s]:
            b = {"X": xblk, "W": wblk, "D": dblk}[it[0]][it[1]]
            if b in occ: assert consume_step(occ[b]) < s, (it, s, occ[b])
            assert s < consume_step(it), it
            occ[b] = it
    pub = cfg["pub"]
    blk_class = lambda j: (2*j + 1) // 7
    PD = cfg.get("pd", 1)

    def seq_entry(S, kh, j, shift, add, dst):
        S(f"s_add_u32 s36, {kh}, {2*j}")
        S("s_mul_i32 s37, s36, 37\ns_lshr_b32 s37, s37, 8")
        S("s_mul_i32 s38, s37, 7\ns_sub_u32 s36, s36, s38")
        S("s_add_u32 s36, s36, s34")
        S("s_sub_u32 s38, s36, 7\ns_cmp_ge_u32 s36, 7\ns_cselect_b32 s36, s38, s36")
        S("s_sub_u32 s37, s35, s37\ns_and_b32 s37, s37, 3")
        S("s_lshl2_add_u32 s36, s36, s37")
        S(f"s_lshl_b32 s36, s36, {shift}")
        S(f"s_add_u32 s{dst}, s36, {add}")

    def wave(isB, spare):
        S = Stream(AL)
        sfx = ("b" if isB else "a") + ("s" if spare else "r")
        SET = 1 if isB else 0
        late = Stream()
        class_at = cfg["class_at_s"] if spare else cfg["class_at"]
        S(f"v_and_b32 v{LANE}, 63, v0")
        S(f"v_lshrrev_b32 v{T1}, 3, v{LANE}")
        S(f"v_lshrrev_b32 v{T2}, 4, v{LANE}")
        S("s_lshl_b32 s46, s21, 12")
        if not spare:
            S("s_lshr_b32 s41, s16, 2\ns_lshl1_add_u32 s40, s35, s41")
            if cfg.get("crot", 1): S("s_lshr_b32 s41, s17, 2\ns_add_u32 s40, s40, s41")
            S("s_and_b32 s40, s40, 7")
            if not isB:
                S(f"v_xor_b32 v{T3}, v{T2}, v{LANE}\nv_and_b32 v{T3}, 7, v{T3}\nv_lshlrev_b32 v{T1}, 10, v{T1}")
                S(f"v_lshl_add_u32 v{VO}, v{T3}, 4, v{T1}")
                S(f"v_xor_b32 v{VO+1}, 64, v{VO}")
                S(f"v_add_u32 v{VO+1}, {7*1024}, v{VO+1}")
                S(f"v_add_u32 v{VO+2}, {14*1024}, v{VO}")
                S(f"v_add_u32 v{VO+3}, {14*1024}, v{VO+1}")
                S("s_lshl_b32 s43, s17, 1")
                S("s_add_u32 s41, s43, s21\ns_and_b32 s41, s41, 7\ns_lshl_b32 s41, s41, 15\ns_lshl_b32 s44, s16, 18\ns_add_u32 s42, s41, s44")
                S("s_mov_b32 s50, 0x200000\ns_mov_b32 s51, 0x20000")
                S("s_waitcnt lgkmcnt(0)")
                S("s_mov_b32 s48, s4\ns_mov_b32 s49, s5")
            else:
                S("s_lshr_b32 s22, s21, 1")
                S(f"v_and_b32 v{T3}, 1, v{T2}\nv_lshlrev_b32 v{T3}, 2, v{T3}")
                if SH1 == 32:
                    S(f"s_lshl_b32 s23, s22, 1\nv_or_b32 v{T3}, s23, v{T3}")
                S(f"v_xor_b32 v{T3}, v{T3}, v{LANE}\nv_and_b32 v{T3}, 7, v{T3}")
                S(f"v_mul_u32_u24 v{T1}, 3584, v{T1}")
                S(f"v_lshl_add_u32 v{VO}, v{T3}, 4, v{T1}")
                if SH1 == 32:
                    for q in range(1, 4): S(f"v_add_u32 v{VO+q}, {q*(8*3584-1024)}, v{VO}")
                else:
                    S(f"v_xor_b32 v{VO+1}, 32, v{VO}")
                    S(f"v_add_u32 v{VO+1}, {8*3584-1024}, v{VO+1}")
                    S(f"v_add_u32 v{VO+2}, {2*(8*3584-1024)}, v{VO}")
                    S(f"v_add_u32 v{VO+3}, {2*(8*3584-1024)}, v{VO+1}")
                S("s_and_b32 s45, s21, 1\ns_mul_i32 s45, s45, 114688\ns_lshl_b32 s41, s17, 7\ns_add_u32 s45, s45, s41")
                S("s_mov_b32 s50, 1835008\ns_mov_b32 s51, 0x20000")
                S("s_cmp_eq_u32 s22, 0")
                S("s_waitcnt lgkmcnt(0)")
                S("s_cselect_b32 s48, s6, s8\ns_cselect_b32 s49, s7, s9")
        else:
            S("s_waitcnt lgkmcnt(0)")

        def item_ops(it):
            k, i = it
            P = Stream()
            if k == "X":
                if i < 8:
                    P(f"s_add_u32 s60, s40, {i}\ns_and_b32 s60, s60, 7\ns_lshl_b32 s60, s60, 7\ns_add_u32 s60, s60, s42")
                else:
                    pp = 2 + (i - 8) // 4; qn = (i - 8) % 4
                    P(f"s_add_u32 s60, s47, {2*qn}\ns_and_b32 s60, s60, 7\ns_lshl_b32 s60, s60, 7\ns_add_u32 s60, s60, s{62+pp-2}")
                b, v, srd, so = xblk[i], VO, 48, 60
            elif k == "W":
                P(f"s_add_u32 s60, s40, {i}\ns_and_b32 s60, s60, 7\ns_mul_i32 s60, s60, {64*3584}\ns_add_u32 s60, s60, s45")
                b, v, srd, so = wblk[i], VO, 48, 60
            else:
                b, v, srd, so = dblk[i], VD, 56, 66 + i
            P(f"s_add_u32 m0, s46, {b*BLK}")
            P("s_nop 0")
            return [x["t"] for x in P.ins], [(f"buffer_load_dwordx4 v{v+q}, s[{srd}:{srd+3}], s{so} offen offset:{1024*q} lds", (k, i, q)) for q in range(4)]
        issued = []
        def item(it):
            su, dm = item_ops(it)
            for t in su: S(t)
            for t, tag in dm: S.add(t, vm=tag)
            issued.append(it)
        if spare:
            myplan = {s: [] for s in range(-1, 23)}
            if isB:
                myplan[-1] = [("D", j) for j in range(10)]
                for j in range(10, 14): myplan[dsched[j]].append(("D", j))
        else:
            myplan = planB if isB else planA
            for it in myplan[-1]: item(it)
        if stamps and isB: S("s_memrealtime s[98:99]")
        S(f"v_lshlrev_b32 v{L16}, 4, v{LANE}")
        if cfg.get("codepf", True) and not isB:
            S("s_getpc_b64 s[52:53]")
            S(f"L_pc{sfx}:")
            S(f"s_sub_u32 s52, s52, L_pc{sfx}-{KNAME}")
            S("s_subb_u32 s53, s53, 0")
            S(f"s_mov_b32 s54, L_codeend-{KNAME}")
            S("s_mov_b32 s55, 0x20000")
            S("s_lshl2_add_u32 s61, s15, s21\ns_lshl_b32 s61, s61, 10")
            S.add(f"buffer_load_dwordx4 v[{PFD}:{PFD+3}], v{L16}, s[52:55], s61 offen", vm="pf")
        if not spare:
            if SH1 == 32:
                S(f"v_and_b32 v{T1}, 31, v{LANE}")
                S(f"v_bfe_u32 v{T2}, v{LANE}, 1, 3")
                S(f"v_lshrrev_b32 v{T3}, 5, v{LANE}")
                S(f"v_xor_b32 v{T2}, v{T2}, v{T3}")
                S(f"v_lshlrev_b32 v{T1}, 7, v{T1}")
                if isB: S(f"v_add_u32 v{T1}, 4096, v{T1}")
                for ks in range(4):
                    S(f"v_xor_b32 v{T3}, {2*ks}, v{T2}")
                    S(f"v_lshl_add_u32 v{XA+ks}, v{T3}, 4, v{T1}")
                S(f"v_lshrrev_b32 v{T1}, 5, v{LANE}")
                S(f"v_lshlrev_b32 v{T1}, 3, v{T1}")
                S(f"v_bfe_u32 v{T2}, v{LANE}, 2, 2")
                S(f"v_add_u32 v{T1}, v{T1}, v{T2}")
                S(f"v_lshlrev_b32 v{T1}, 7, v{T1}")
                S(f"v_bfe_u32 v{T2}, v{LANE}, 4, 1")
                S(f"v_lshl_add_u32 v{T1}, v{T2}, 13, v{T1}")
                S(f"v_bfe_u32 v{T3}, v{LANE}, 3, 1")
                S(f"v_lshl_add_u32 v{T2}, v{T3}, 1, v{T2}")
                S(f"v_xor_b32 v{T2}, s21, v{T2}")
                S(f"v_lshl_add_u32 v{T1}, v{T2}, 5, v{T1}")
                S(f"v_and_b32 v{T2}, 1, v{LANE}")
                S(f"v_lshl_add_u32 v{T1}, v{T2}, 4, v{T1}")
                S(f"v_bfe_u32 v{T2}, v{LANE}, 1, 1")
                S(f"v_lshl_add_u32 v{T1}, v{T2}, 3, v{T1}")
                S(f"v_add_u32 v{WA}, 0x10000, v{T1}")
            else:
                S(f"v_and_b32 v{T1}, 15, v{LANE}")
                S(f"v_bfe_u32 v{T2}, v{LANE}, 1, 3")
                S(f"v_lshrrev_b32 v{T3}, 4, v{LANE}")
                S(f"v_xor_b32 v{T2}, v{T2}, v{T3}")
                S(f"v_lshlrev_b32 v{T1}, 7, v{T1}")
                if isB: S(f"v_add_u32 v{T1}, 4096, v{T1}")
                S(f"v_lshl_add_u32 v{XA}, v{T2}, 4, v{T1}")
                S(f"v_xor_b32 v{XA+1}, 64, v{XA}")
                S(f"v_lshlrev_b32 v{T1}, 3, v{T3}")
                S(f"v_bfe_u32 v{T2}, v{LANE}, 2, 2")
                S(f"v_add_u32 v{T1}, v{T1}, v{T2}")
                S(f"v_lshlrev_b32 v{T1}, 7, v{T1}")
                S(f"v_bfe_u32 v{T2}, v{LANE}, 4, 1")
                S(f"v_bfe_u32 v{T3}, v{LANE}, 3, 1")
                S(f"v_lshl_add_u32 v{T2}, v{T3}, 1, v{T2}")
                S(f"v_xor_b32 v{T2}, s21, v{T2}")
                S(f"v_lshl_add_u32 v{T1}, v{T2}, 5, v{T1}")
                S(f"v_and_b32 v{T2}, 3, v{LANE}")
                S(f"v_lshl_add_u32 v{T1}, v{T2}, 3, v{T1}")
                S(f"v_add_u32 v{WA}, 0x10000, v{T1}")
        Lt = S if spare else late
        if isB:
            Lt(f"s_add_u32 s84, s30, {FO}\ns_addc_u32 s85, s31, 0\ns_mov_b32 s86, {FSZ}\ns_mov_b32 s87, 0x20000")
            Lt("s_mov_b32 s88, s28\ns_mov_b32 s89, s29\ns_mov_b32 s90, 256\ns_mov_b32 s91, 0x20000")
            Lt("s_cmp_eq_u32 s21, 0\ns_cselect_b32 s83, 0, 0x1000000")
            Lt(f"v_lshlrev_b32 v{VF}, 20, v{LANE}")
            Lt(f"v_mov_b32 v{VZ}, 0")
            if spare:
                S("s_cmp_eq_u32 s2, 224\ns_cselect_b32 s82, s21, 0\ns_cmp_eq_u32 s82, 1")
                S("s_cbranch_scc0 L_notag")
                S(f"s_mov_b32 s82, {FSZ-128}")
                S(f"buffer_load_dwordx2 v[{VT2}:{VT2+1}], v{VZ}, s[84:87], s82 offen sc1")
                S("s_waitcnt vmcnt(0)")
                S(f"v_add_u32 v{VT2}, 1, v{VT2}")
                S(f"v_or_b32 v{VT2+1}, 0x80000000, v{VT2+1}")
                S(f"buffer_store_dwordx2 v[{VT2}:{VT2+1}], v{VF}, s[88:91], 0 offen sc1")
                S(f"buffer_store_dwordx2 v[{VT2}:{VT2+1}], v{VF}, s[84:87], s82 offen sc1")
                S("s_waitcnt vmcnt(0)")
                S("L_notag:")
            Lt(f"v_bfe_u32 v{T3}, v{LANE}, 4, 1\nv_lshlrev_b32 v{T3}, 2, v{T3}\nv_xor_b32 v{T3}, v{T3}, v{LANE}\nv_and_b32 v{T3}, 7, v{T3}")
            Lt(f"v_lshrrev_b32 v{T1}, 3, v{LANE}\nv_lshlrev_b32 v{T1}, 10, v{T1}")
            Lt(f"v_lshl_add_u32 v{VD}, v{T3}, 4, v{T1}")
            for q in range(1, 4): Lt(f"v_add_u32 v{VD+q}, {q*7*1024}, v{VD}")
            Lt("s_mov_b32 s56, s10\ns_mov_b32 s57, s11\ns_mov_b32 s58, 1835008\ns_mov_b32 s59, 0x20000")
            Lt("s_lshr_b32 s47, s21, 1")
            Lt("s_and_b32 s39, s21, 1\ns_lshl_b32 s39, s39, 15\ns_lshl_b32 s41, s19, 7\ns_add_u32 s39, s39, s41")
            for j in range(14):
                seq_entry(Lt, "s47", j, 16, "s39", 66 + j)
                if spare and j < 10: item(("D", j))
            Lt(f"v_min_u32 v{VP}, 6, v{LANE}\nv_lshlrev_b32 v{VP}, 9, v{VP}")
            Lt("s_mul_i32 s80, s18, 3584\ns_add_u32 s80, s80, s83")
            if not spare:
                Lt("s_mul_i32 s81, s16, 14336\ns_lshl_b32 s82, s17, 7\ns_add_u32 s81, s81, s82\ns_add_u32 s81, s81, s83")
        else:
            if spare and cfg.get("warm", 1):
                S("s_mov_b32 s56, s10\ns_mov_b32 s57, s11\ns_mov_b32 s58, 1835008\ns_mov_b32 s59, 0x20000")
                S("s_sub_u32 s60, s2, 224\ns_lshl2_add_u32 s60, s60, s20\ns_mul_i32 s60, s60, 14336")
                if cfg.get("warm_delay", 0): S.add("", need_vm=["ALL"])
                for i in range(14):
                    if i and i % 4 == 0: S("s_add_u32 s60, s60, 4096")
                    S.add(f"buffer_load_dwordx4 v[{4*i}:{4*i+3}], v{L16}, s[56:59], s60 offen offset:{(i%4)*1024}", vm=("wm", i))
            if not spare:
                Lt("s_lshr_b32 s47, s21, 1\ns_add_u32 s47, s47, s40")
                for pp in (2, 3):
                    Lt(f"s_and_b32 s41, s21, 1\ns_add_u32 s41, s41, s43\ns_add_u32 s41, s41, {2*pp}\ns_and_b32 s41, s41, 7\ns_lshl_b32 s41, s41, 15\ns_add_u32 s{62+pp-2}, s41, s44")
        if not spare:
            Lt(f"s_mov_b32 s32, {f2u(C0):#x}\ns_mov_b32 s33, {f2u(C1):#x}")
            Lt(f"v_mov_b32 v{CC0}, s32")
            Lt("s_lshl2_add_u32 s64, s17, s21\ns_mul_i32 s65, s16, 896\ns_add_u32 s64, s64, s65")
            for gi in range(4):
                Lt(f"s_lshl_b32 s65, s17, 1\ns_add_u32 s65, s65, {2*gi+SET}\ns_and_b32 s65, s65, 7\ns_mul_i32 s65, s65, 112\ns_add_u32 s65, s65, s64\ns_lshl_b32 s{92+gi}, s65, 10")
        if not (spare and isB):
            Lt("s_mov_b32 s52, s30\ns_mov_b32 s53, s31\ns_mov_b32 s54, 7340032\ns_mov_b32 s55, 0x20000")
        if not isB:
            Lt(f"v_lshrrev_b32 v{T1}, 5, v{LANE}")
            Lt(f"v_lshlrev_b32 v{T1}, 3, v{T1}")
            Lt(f"v_bfe_u32 v{T2}, v{LANE}, 2, 2")
            Lt(f"v_add_u32 v{T1}, v{T1}, v{T2}")
            Lt(f"v_lshlrev_b32 v{T1}, 7, v{T1}")
            Lt(f"v_bfe_u32 v{T2}, v{LANE}, 3, 1")
            Lt(f"v_lshl_add_u32 v{T1}, v{T2}, 6, v{T1}")
            Lt(f"v_bfe_u32 v{T2}, v{LANE}, 4, 1")
            Lt(f"v_lshl_add_u32 v{T1}, v{T2}, 5, v{T1}")
            Lt(f"v_and_b32 v{T2}, 1, v{LANE}")
            Lt(f"v_lshl_add_u32 v{T1}, v{T2}, 4, v{T1}")
            Lt(f"v_bfe_u32 v{T2}, v{LANE}, 1, 1")
            Lt(f"v_lshl_add_u32 v{T1}, v{T2}, 3, v{T1}")
            Lt("s_lshr_b32 s23, s21, 1\ns_and_b32 s22, s21, 1")
            Lt("s_lshl_b32 s65, s23, 13")
            Lt(f"v_add_u32 v{DA}, s65, v{T1}")
            Lt(f"v_xor_b32 v{DA+1}, 64, v{DA}")
            for w in (1, 2):
                Lt(f"v_add_u32 v{DA+2*w}, {w*65536:#x}, v{DA}")
                Lt(f"v_add_u32 v{DA+2*w+1}, {w*65536:#x}, v{DA+1}")
            Lt("s_lshl1_add_u32 s39, s18, s22\ns_mul_i32 s39, s39, 114688")
            for j in range(14): seq_entry(Lt, "s23", j, 12, "s39", 66 + j)
            if spare and cfg.get("warm", 1): S.add("", need_vm=["ALL"])
            Lt("s_mov_b32 s56, s26\ns_mov_b32 s57, s27\ns_mov_b32 s58, 0x200000\ns_mov_b32 s59, 0x20000")
            Lt(f"v_and_b32 v{T1}, 31, v{LANE}\nv_lshlrev_b32 v{T1}, 10, v{T1}\nv_lshrrev_b32 v{T2}, 5, v{LANE}\nv_lshl_add_u32 v{VF}, v{T2}, 4, v{T1}")
            Lt("s_lshl_b32 s80, s18, 16\ns_lshl_b32 s65, s22, 15\ns_add_u32 s80, s80, s65\ns_lshl_b32 s65, s19, 7\ns_add_u32 s80, s80, s65\ns_lshl_b32 s65, s23, 6\ns_add_u32 s80, s80, s65")
            XB = dblk[9] * BLK
            Lt(f"s_add_u32 s65, s46, {XB}\nv_add_u32 v{VP}, s65, v{L16}\nv_xor_b32 v{VZ}, 0x2000, v{VP}")
        lateq = []
        for i in late.ins:
            if i["t"].startswith(("s_cselect", "s_addc", "s_subb")): lateq[-1] += "\n" + i["t"]
            else: lateq.append(i["t"])
        if stamps and isB:
            S(f"v_mov_b32 v{VS}, 0\nv_mov_b32 v{VS+1}, 0\nv_mov_b32 v{VS+2}, 0")
            S("s_waitcnt lgkmcnt(0)")
            S(f"v_writelane_b32 v{VS}, s100, 0")
            S(f"v_writelane_b32 v{VS}, s98, 30")

        M = []
        pooln = [0]
        def pool():
            r = POOL + 4 * (pooln[0] % NPOOL); pooln[0] += 1; return r
        accof = {0: 0, 1: 1, 2: 2, 3: 0}
        def p1(step, i, gi, unit, readw):
            a = ACC[accof[gi]]
            xo = xblk[step] * BLK + unit * 4096
            wo = (wblk[i] - 4) * BLK if readw else None
            res = []
            if SH1 == 32:
                for ks in range(4):
                    rd = []
                    slot = 4*i + ks; wreg = WR + 4*slot
                    if readw:
                        for j in range(2):
                            rd.append((("w", slot, j), f"ds_read_b64_tr_b16 v[{wreg+2*j}:{wreg+2*j+1}], v{WA} offset:{wo + ks*2048 + j*512}"))
                    res.append([dict(step=step, d=a, n=16, A=wreg, rd=rd, xrd=(("x", gi, slot), f"v{XA+ks} offset:{xo}"), first=(slot == 0),
                                     last=(slot == 31), gi=gi, wdead=(slot if gi == 3 else None))])
            else:
                for k2 in range(2):
                    sub_l = []
                    for sub in range(2):
                        for mat in range(2):
                            slot = (2*i + k2)*2 + mat; wreg = WR + 4*slot
                            rd = []
                            if readw and sub == 0:
                                for j in range(2):
                                    rd.append((("w", slot, j), f"ds_read_b64_tr_b16 v[{wreg+2*j}:{wreg+2*j+1}], v{WA} offset:{wo + mat*8192 + k2*4096 + j*512}"))
                            sub_l.append(dict(step=step, d=a + 8*mat + 4*sub, n=4, A=wreg, rd=rd,
                                              xrd=((("x", gi, i, k2, sub), f"v{XA+k2} offset:{xo + sub*2048}") if mat == 0 else None),
                                              first=(i == 0 and k2 == 0), last=(i == 7 and k2 == 1 and sub == 1 and mat == 1), gi=gi,
                                              wdead=(slot if gi == 3 and sub == 1 else None)))
                    res.append(sub_l)
            return res
        def push(lst):
            for m in lst:
                if m["xrd"] is not None:
                    xr = pool(); push.cur = xr
                    m["rd"] = m["rd"] + [(m["xrd"][0], f"ds_read_b128 v[{xr}:{xr+3}], {m['xrd'][1]}")]
                    m["pool"] = 1
                else: m["pool"] = 0
                m["B"] = push.cur
                M.append(m)
        if not spare:
            for i in range(8):
                g0 = p1(i, i, 0, 0, True); g1 = p1(i, i, 1, 2, False)
                for u, v in zip(g0, g1): push(u); push(v)
            for gi in (2, 3):
                for i in range(8):
                    st = 8 + 4*(gi - 2) + i // 2
                    for u in p1(st, i, gi, 2*(i % 2), False): push(u)
        A2 = [ACC[1], ACC[2]]
        if not isB:
            for j in range(14):
                b = dblk[j]
                for ks in range(4):
                    n = 4*j + ks
                    for t in range(2):
                        r = pool()
                        rd = []
                        for jj in range(2):
                            off = (b % 4) * BLK + ks * 2048 + jj * 512
                            rd.append((("d", j, ks, t, jj), f"ds_read_b64_tr_b16 v[{r+2*jj}:{r+2*jj+1}], v{DA+2*(b//4)+t} offset:{off}"))
                        M.append(dict(step=16 + j // 2, d=A2[t], n=16, A=r, B=WR + 4*(n % 32), first=(n == 0), rd=rd, h=n, t=t, last=False, pool=1))
        NM = len(M)
        cum = [0]
        for m in M: cum.append(cum[-1] + m["pool"])
        def epi(gi):
            a = ACC[accof[gi]]
            L = []
            for hb in range(2):
                idx = range(4*hb, 4*hb + 4)
                T = lambda i: TMP + i
                for i in idx: L.append(dict(text=f"v_mul_f32 v{T(i)}, v{a+i}, v{a+i}", vr=[a+i], cost=1))
                for i in idx: L.append(dict(text=f"v_fma_f32 v{T(i)}, v{T(i)}, s33, v{CC0}", cost=1))
                for i in idx: L.append(dict(text=f"v_mul_f32 v{T(i)}, v{T(i)}, v{a+i}", cost=1))
                for i in idx:
                    L.append(dict(text=f"v_exp_f32 v{T(i)}, v{T(i)}", cost=2, trans=T(i)))
                    L.append(dict(text=f"v_mul_f32 v{a+8+i}, v{a+i}, v{a+8+i}", vr=[a+8+i], cost=1))
                for i in idx: L.append(dict(text=f"v_add_f32 v{T(i)}, 1.0, v{T(i)}", vr=[T(i)], cost=1))
                for i in idx: L.append(dict(text=f"v_rcp_f32 v{T(i)}, v{T(i)}", cost=2, trans=T(i)))
                for i in idx: L.append(dict(text=f"v_mul_f32 v{a+8+i}, v{a+8+i}, v{T(i)}", vr=[T(i)], cost=1))
            for i in range(4): L.append(dict(text=f"v_cvt_pk_bf16_f32 v{a+i}, v{a+8+2*i}, v{a+8+2*i+1}", cost=1, vw=[a+i]))
            if SH1 == 16:
                for i in range(2): L.append(dict(text=f"v_permlane16_swap_b32 v{a+i}, v{a+2+i}", cost=1, pr=[a+i, a+2+i]))
            L.append(dict(text=f"buffer_store_dwordx4 v[{a}:{a+3}], v{L16}, s[52:55], s{92+gi} offen sc1", vm=("st", gi), cost=1))
            return L

        def tag_issue():
            S.add(f"buffer_load_dwordx2 v[{VT2}:{VT2+1}], v{VZ}, s[88:91], s83 offen sc1", vm="tag")
        def tag_check():
            S("s_mov_b32 s61, 0")
            S.add("", need_vm=["tag"])
            S(f"L_tag{sfx}:")
            S(f"v_readfirstlane_b32 s96, v{VT2}")
            S(f"v_readfirstlane_b32 s97, v{VT2+1}")
            S("s_nop 1")
            S("s_or_b32 s82, s97, s83")
            S(f"s_cbranch_scc1 L_tagok{sfx}")
            S("~s_add_u32 s61, s61, 1")
            S("~s_cmp_ge_u32 s61, 0x40000")
            S(f"~s_cbranch_scc1 L_tagok{sfx}")
            S("~s_sleep 2")
            S(f"~buffer_load_dwordx2 v[{VT2}:{VT2+1}], v{VZ}, s[88:91], s83 offen sc1")
            S("~s_waitcnt vmcnt(0)")
            S(f"~s_branch L_tag{sfx}")
            S(f"L_tagok{sfx}:")
        def poll_issue(c):
            S(f"s_sub_u32 s62, s35, {c}\ns_and_b32 s62, s62, 3\ns_lshl_b32 s62, s62, 7\ns_add_u32 s62, s62, s80")
            S.add(f"buffer_load_dwordx2 v[{VPOLL}:{VPOLL+1}], v{VP}, s[84:87], s62 offen sc1", vm=("poll", c))
        def poll_check(c):
            S("s_mov_b32 s61, 0")
            S.add("", need_vm=[("poll", c)])
            S(f"L_poll{sfx}{c}:")
            S(f"v_cmp_eq_u64 vcc, s[96:97], v[{VPOLL}:{VPOLL+1}]")
            S("s_nop 1")
            S("s_cmp_eq_u64 vcc, -1")
            S(f"s_cbranch_scc1 L_ok{sfx}{c}")
            S("~s_add_u32 s61, s61, 1")
            S("~s_cmp_ge_u32 s61, 0x40000")
            S(f"~s_cbranch_scc1 L_ok{sfx}{c}")
            if spare and c == 0: S("~s_sleep 8")
            S(f"~buffer_load_dwordx2 v[{VPOLL}:{VPOLL+1}], v{VP}, s[84:87], s62 offen sc1")
            S("~s_waitcnt vmcnt(0)")
            S(f"~s_branch L_poll{sfx}{c}")
            S(f"L_ok{sfx}{c}:")
            if stamps: S(f"v_writelane_b32 v{VS}, s61, {40+c}")

        st = dict(rd=0, h=0, bar=(14 if spare else -1), wdead=(32 if spare else 0))
        epq = []; dmaq = []
        def barrier():
            s = st["bar"] + 1
            assert not dmaq, ("dma not issued", s)
            if isB:
                for c, bs in class_at.items():
                    if bs == s:
                        assert not lateq
                        poll_check(c)
            nv = [(k, i, 3) for (k, i) in issued if consume_step((k, i)) <= s]
            if not spare:
                for e, bs in pub.items():
                    if bs == s: nv.append(("st", e))
            if stamps and isB:
                S.add("s_memrealtime s[98:99]", need_vm=nv, need_lds=["ALL"])
            S.add("s_barrier", need_lds=["ALL"], need_vm=nv)
            st["bar"] = s
            if stamps and isB:
                S("s_memrealtime s[100:101]\ns_memtime s[12:13]\ns_waitcnt lgkmcnt(0)")
                S(f"v_writelane_b32 v{VS}, s100, {s+1}\nv_writelane_b32 v{VS+1}, s98, {s+1}\nv_writelane_b32 v{VS+2}, s12, {s+1}")
            if isB:
                if not spare:
                    for e, bs in pub.items():
                        if bs == s:
                            S(f"s_add_u32 s82, s17, {e}\ns_and_b32 s82, s82, 3\ns_mul_i32 s82, s82, 3584\ns_add_u32 s82, s82, s81")
                            S.add(f"buffer_store_dwordx2 v[{VT2}:{VT2+1}], v{VF}, s[84:87], s82 offen sc1", vm=("flag", e))
                    if s == cfg.get("tag_issue", 6): assert not lateq; tag_issue()
                    if s == cfg.get("tag_check", 9): tag_check()
                for c, bs in class_at.items():
                    if bs == s + PD: poll_issue(c)
            for it in myplan[s]:
                if it[0] == "D" or (it[0] == "X" and it[1] >= 8): assert not lateq, (it, len(lateq))
                su, dm = item_ops(it)
                dmaq.append(("\n".join(su), None, None))
                for k, (t, tag) in enumerate(dm): dmaq.append((t, tag, it if k == 3 else None))
        def issue_dma(n):
            while dmaq and n > 0:
                t, tag, it = dmaq.pop(0)
                if tag is None: S(t); continue
                S.add(t, vm=tag); n -= 1
                if it: issued.append(it)
        def issue_reads(n, maxn):
            cnt = 0
            while st["rd"] < NM and M[st["rd"]]["step"] <= st["bar"] and cnt < maxn:
                k = st["rd"]
                lo = cum[n + 1] - 1 if n >= 0 else 0
                if cum[k + 1] - lo > NPOOL: break
                for (i, t) in M[k]["rd"]: S.add(t, lds=i)
                if M[k]["rd"]: cnt += 1
                st["rd"] += 1
        def issue_h(maxn, hcons):
            cnt = 0
            while st["h"] < 56 and cnt < maxn:
                h = st["h"]
                if not (h < hcons + HD and (h < st["wdead"] if h < 32 else h - 32 < hcons) and class_at[blk_class(h // 4)] <= st["bar"]): break
                r = WR + 4 * (h % 32)
                S.add(f"buffer_load_dwordx4 v[{r}:{r+3}], v{L16}, s[52:55], s{66 + h//4} offen offset:{(h % 4)*1024} sc1", vm=("h", h))
                st["h"] += 1; cnt += 1
        def issue_epi(n, budget):
            while epq and epq[0][0] <= n and budget > 0:
                e = epq[0][1].pop(0)
                S.add(e["text"], vm=e.get("vm"), vr=e.get("vr", ()), trans=e.get("trans"), vw=e.get("vw", ()), pr=e.get("pr", ()))
                budget -= e["cost"]
                if not epq[0][1]: epq.pop(0)
        if spare:
            if isB:
                tag_issue(); tag_check()
                for c, bs in class_at.items():
                    if bs - PD < 15: poll_issue(c)
            barrier()
            if not isB: issue_h(99, 0)
            issue_dma(99)
        barrier()
        MUL = 2 if SH1 == 16 else 1
        BK1 = cfg.get("bkB" if isB else "bkA", 2 if isB else 3) * MUL
        BK2 = cfg.get("bk2", 3)
        DPOS = cfg.get("dposB" if isB else "dposA", 4 if isB else 0) * MUL
        DPER = cfg.get("dperB" if isB else "dperA", 1)
        WB = cfg.get("wb", 2)
        since = 0
        issue_reads(-1, 99)
        if DPOS == 0: issue_dma(DPER)
        for n, m in enumerate(M):
            ph2 = "h" in m
            nv = [("h", m["h"])] if ph2 else []
            if ph2: assert m["h"] < st["h"], ("h not issued", m["h"], st["h"], n)
            assert st["rd"] > n, ("reads not issued", n)
            if m["first"]:
                for e in epq: assert not (e[2] <= m["d"] < e[2] + 16), ("acc reuse", n)
            d, nn = m["d"], m["n"]
            c = "0" if m["first"] else f"v[{d}:{d+nn-1}]"
            op = "v_mfma_f32_32x32x16_bf16" if nn == 16 else "v_mfma_f32_16x16x32_bf16"
            wb = WB * (1 if nn == 16 else 2)
            S.add(f"{op} v[{d}:{d+nn-1}], v[{m['A']}:{m['A']+3}], v[{m['B']}:{m['B']+3}], {c}",
                  need_lds=[i for k in range(n, min(n + (wb if n % wb == 0 else 1), st["rd"])) for i, _ in M[k]["rd"]],
                  need_vm=nv, mw=(d, d + nn - 1))
            since += 1
            if m.get("wdead") is not None: st["wdead"] = m["wdead"] + 1
            if m["last"]: epq.append([n + 1, epi(m["gi"]), ACC[accof[m["gi"]]]])
            BK = BK2 if ph2 else BK1
            rem = sum(1 for k in range(n + 1, min(n + BK + 2, NM)) if M[k]["step"] == st["bar"])
            lastbar = 22 if not isB else 16
            if m["step"] == st["bar"] and rem == BK and st["bar"] < lastbar and (n + BK + 1 >= NM or M[n + BK + 1]["step"] > st["bar"]):
                issue_dma(99)
                assert st["rd"] == n + BK + 1, (st["rd"], n)
                barrier(); since = 0
                issue_reads(n, 99)
            else:
                issue_reads(n, 2)
            if since >= DPOS and (nn == 16 or n % 2 == 0): issue_dma(DPER)
            if not isB and (nn == 16 or n % 2 == 1):
                hcons = (m["h"] + m["t"]) if ph2 else 0
                issue_h(1, hcons)
            for _ in range(cfg.get("lateb", 8) // MUL):
                if lateq: S(lateq.pop(0))
            issue_epi(n, (cfg.get("epb2", 6) if ph2 else cfg.get("epb", 10) // MUL))
        assert not lateq
        if isB:
            issue_epi(10**9, 10**9)
            issue_dma(99)
            while st["bar"] < 22:
                barrier(); issue_dma(99)
            if stamps:
                S("s_cmp_lg_u32 s21, 0")
                S("s_cbranch_scc1 L_end")
                S("s_add_u32 s30, s30, 0x8000000\ns_addc_u32 s31, s31, 0")
                S("s_lshl_b32 s40, s2, 8")
                S(f"v_lshlrev_b32 v2, 2, v{LANE}\nv_add_u32 v2, s40, v2")
                S(f"v_cmp_gt_u32 vcc, 60, v{LANE}\ns_and_saveexec_b64 s[74:75], vcc")
                for k in range(3):
                    S(f"global_store_dword v2, v{VS+k}, s[30:31]")
                    S("v_add_u32 v2, 0x10000, v2")
            S("s_endpgm")
            return S.render()
        assert not epq and st["h"] == 56 and st["bar"] == 22
        S("s_cmp_eq_u32 s23, 0")
        S(f"s_cbranch_scc0 L_kh1{sfx}")
        R = POOL
        for kh in range(2):
            send = A2[1 - kh]; keep = A2[kh]
            if kh == 1: S(f"L_kh1{sfx}:")
            S("s_nop 7\ns_nop 1")
            for i in range(4):
                S(f"ds_write_b128 v{VP}, v[{send+4*i}:{send+4*i+3}] offset:{1024*i}")
            S("s_waitcnt lgkmcnt(0)")
            S("s_barrier")
            for i in range(4):
                S(f"ds_read_b128 v[{R+4*i}:{R+4*i+3}], v{VZ} offset:{1024*i}")
            for q in range(2):
                S(f"s_waitcnt lgkmcnt({2 - 2*q})")
                for i in range(8*q, 8*q + 8): S(f"v_add_f32 v{R+i}, v{R+i}, v{keep+i}")
                for i in range(4): S(f"v_cvt_pk_bf16_f32 v{TMP+4*q+i}, v{R+8*q+2*i}, v{R+8*q+2*i+1}")
                S(f"buffer_store_dwordx4 v[{TMP+4*q}:{TMP+4*q+3}], v{VF}, s[56:59], s80 offen offset:{32*q}")
            if kh == 0: S(f"s_branch L_fin{sfx}")
        S(f"L_fin{sfx}:")
        if stamps:
            S("s_memrealtime s[96:97]")
            S("s_waitcnt vmcnt(0)")
            S("s_memrealtime s[98:99]")
            S("s_waitcnt lgkmcnt(0)")
            S("s_cmp_lg_u32 s20, 0")
            S("s_cbranch_scc1 L_end")
            S("s_add_u32 s30, s30, 0x8000000\ns_addc_u32 s31, s31, 0")
            S("s_lshl_b32 s40, s2, 8\ns_add_u32 s40, s40, 240")
            S("v_mov_b32 v0, s40\nv_mov_b32 v2, s96\nv_mov_b32 v3, s98")
            S("global_store_dwordx2 v0, v[2:3], s[30:31]")
        S("s_endpgm")
        return S.render()

    E = Stream()
    E("s_load_dwordx8 s[4:11], s[0:1], 0")
    E("s_load_dwordx4 s[24:27], s[0:1], 24")
    E("s_load_dwordx4 s[28:31], s[0:1], 40")
    if stamps: E("s_memrealtime s[100:101]")
    E("v_lshrrev_b32 v1, 6, v0")
    E("s_cmp_ge_u32 s2, 256")
    E("s_cbranch_scc1 L_end")
    E("v_readfirstlane_b32 s20, v1")
    E("s_and_b32 s14, s2, 7\ns_lshr_b32 s15, s2, 3")
    E("s_and_b32 s35, s15, 3\ns_lshr_b32 s19, s15, 2")
    E("s_and_b32 s16, s14, 1\ns_lshl2_add_u32 s16, s16, s35")
    E("s_lshr_b32 s17, s14, 1\ns_mul_i32 s17, s17, 7\ns_add_u32 s17, s17, s19")
    E("s_lshl2_add_u32 s18, s14, s35")
    E("s_and_b32 s21, s20, 3")
    E("s_cmp_eq_u32 s19, 7\ns_cselect_b32 s34, 0, s19")
    E("s_cbranch_scc1 L_spare")
    E("s_cmp_lt_u32 s20, 4")
    E("s_cbranch_scc0 L_B")
    body = E.render()
    body += ".p2align 3\n" + wave(False, False)
    body += ".p2align 6\nL_B:\n" + wave(True, False)
    body += ".p2align 6\nL_spare:\n    s_cmp_lt_u32 s20, 4\n    s_cbranch_scc0 L_Bs\n"
    body += wave(False, True)
    body += ".p2align 6\nL_Bs:\n" + wave(True, True)
    body += "L_end:\n    s_endpgm\nL_codeend:\n"
    return single_file(body, 256, 512, 163840, 256)

DEF = dict(pub={0: 11, 1: 12, 2: 15, 3: 18}, class_at={0: 14, 1: 16, 2: 18, 3: 20}, class_at_s={0: 15, 1: 16, 2: 18, 3: 20})
def emit(variants):
    for k, v in variants.items():
        open(k + ".s", "w").write(build(dict(v)))
        open(k + "_st.s", "w").write(build(dict(v, stamps=True)))
if __name__ == "__main__":
    emit({"v3": dict(DEF), "v3h": dict(DEF, sh1=16)})
```

```python
import sys, struct, math, re
from common import *
from gen3 import Stream, f2u, C0, C1

BLK = 16384
FO = 8 << 20
FSZ = 897 * 128
HSTR = 112
WR = 0
ACC = [128, 144, 160]
DA2 = 176
POOL = 184; NPOOL = 8
TMP = 216
XA = 224
WA = 228
L16 = 229
CC0 = 230
DA = 231
VW = 231
VX = 237
VD = 241
VF = 245
VOUT, VEX = 246, 247
TAG, VF2, FV = 246, 247, 248
PR = 252
LT = 249
T1, T2, T3, LANE, T4, T5 = TMP, TMP + 1, TMP + 2, TMP + 3, TMP + 4, TMP + 5
SX, SW, SD, SH, SF = 40, 44, 48, 52, 56
TB = 60
HS = 76

def build(cfg):
    SH1 = cfg.get("sh1", 32)
    MUL = 2 if SH1 == 16 else 1
    lite = cfg.get("lite", False)
    bgroups = cfg["bgroups"]
    SP = cfg["sp"]
    AL = cfg["al"]
    assert sorted(SP + AL + [g for g, _ in bgroups]) == list(range(8))
    P2 = 8 + 2 * len(AL); LAST = P2 + 6; NST = LAST + 1
    NX = 4 + 2 * len(AL)
    groups = {0: SP + AL, 1: [g for g, _ in bgroups]}
    accof = {g: i % 3 for S_ in (0, 1) for i, g in enumerate(groups[S_])}
    A2 = [ACC[(len(groups[0])) % 3], ACC[(len(groups[0]) + 1) % 3]]
    RED = ACC[(len(groups[0]) + 2) % 3]
    blk = {("X", j): j % 3 for j in range(NX)}
    blk.update({("W", i): 4 + i % 4 for i in range(8)})
    blk.update({("Y", j): 8 + j % 2 for j in range(2 * len(bgroups))})
    dorder = cfg.get("dblk", [3, 4, 5, 6, 7, 8, 9, (NX - 3) % 3, (NX - 2) % 3, (NX - 1) % 3])
    blk.update({("D", j): dorder[j % 10] for j in range(14)})
    plan = {s: [] for s in range(-1, NST)}
    sched = dict(cfg["sched"])
    for j in range(6, NX): sched.setdefault(("X", j), j + 2)
    for j, s in cfg["dsched"].items(): sched[("D", j)] = s + (P2 if j >= 7 else 0)
    for k in "WXYD":
        for it in sorted(x for x in sched if x[0] == k): plan[sched[it]].append(it)
    def first_use(it):
        k, i = it
        if k == "W": return i
        if k == "X": return 2*i if i < 4 else i + 4
        if k == "Y": return min(bgroups[i // 2][1][4*(i % 2):4*(i % 2) + 4])
        return P2 + min(i, 10) // 2
    def last_use(it):
        k, i = it
        if k == "Y": return max(bgroups[i // 2][1][4*(i % 2):4*(i % 2) + 4])
        return first_use(it) + (1 if k == "X" and i < 4 else 0)
    nobar = set(P2 + x for x in cfg.get("nobar2", ())) | set(cfg.get("nobar", ()))
    def prev_bar(s):
        while s in nobar: s -= 1
        return s
    def next_bar(s):
        s += 1
        while s in nobar: s += 1
        return s
    occ = {0: ("X", 0), 4: ("W", 0)}
    for s in range(-1, NST):
        for it in plan[s]:
            b = blk[it]
            if b in occ: assert last_use(occ[b]) < prev_bar(s), (it, s, occ[b])
            assert next_bar(s) <= first_use(it), it
            occ[b] = it
    assert set(sched) | {("X", 0), ("W", 0)} == set(blk), set(blk) - set(sched)
    XJ = max(j for j in range(4, 10) if first_use(("D", j)) < prev_bar(LAST))
    rel = lambda p: (p[0] + P2 if len(p) > 2 else p[0], p[1])
    flag_pts = {g: rel(p) for g, p in cfg["flag_pts"].items()}
    stage = cfg.get("stage", {})
    sreg = {j: 16 * n for n, j in enumerate(sorted(stage))}
    hmax = {P2 + s: v for s, v in cfg["hmax"].items()}
    pg = cfg["pgroups"]

    def wave(isB, spare):
        S = Stream(cfg.get("align", 0))
        sfx = ("b" if isB else "a") + ("s" if spare else "r")
        SET = 1 if isB else 0
        issued = []
        if not spare:
            k = "W" if isB else "X"
            for q in range(4): S.add("", vm=(k, 0, q))
            issued.append((k, 0))
        else:
            S(f"v_and_b32 v{LANE}, 63, v0")
            S("s_waitcnt lgkmcnt(0)")
        S("s_lshl_b32 s33, s21, 12")
        S(f"v_lshlrev_b32 v{L16}, 4, v{LANE}")
        S("s_lshr_b32 s23, s21, 1\ns_and_b32 s22, s21, 1")
        if cfg.get("codepf", True) and not isB:
            S(f"s_getpc_b64 s[{SH}:{SH+1}]")
            S(f"L_pc{sfx}:")
            S(f"s_sub_u32 s{SH}, s{SH}, L_pc{sfx}-{KNAME}")
            S(f"s_subb_u32 s{SH+1}, s{SH+1}, 0")
            S(f"s_mov_b32 s{SH+2}, L_codeend-{KNAME}")
            S(f"s_mov_b32 s{SH+3}, 0x20000")
            S("s_lshl2_add_u32 s32, s15, s21\ns_lshl_b32 s32, s32, 10")
            S.add(f"buffer_load_dwordx4 v[{PR}:{PR+3}], v{L16}, s[{SH}:{SH+3}], s32 offen", vm="pf")
        gexp = lambda p, r: (f"s_lshl1_add_u32 s{r}, s17, {p}\ns_and_b32 s{r}, s{r}, 7" if p < 6 else f"s_and_b32 s{r}, s{p-6}, 7")
        def item_ops(it):
            k, i = it
            su = ""
            if k == "X" and i < 4:
                su = f"s_bfe_u32 s32, s87, {0x30000 + 8*i:#x}\ns_lshl_b32 s32, s32, 7\ns_add_u32 s32, s32, s3"
                v, srd, so = VX, SX, 32
            elif k in "XY":
                p = AL[(i - 4) // 2] if k == "X" else bgroups[i // 2][0]
                su = gexp(p, 32) + f"\ns_lshl_b32 s32, s32, 15\ns_add_u32 s32, s32, s{93 + i % 2}"
                v, srd, so = VX, SX, 32
            elif k == "W":
                su = f"s_bfe_u32 s32, s36, {0x30000 + 4*i:#x}\ns_mul_i32 s32, s32, {64*3584}\ns_add_u32 s32, s32, s38"
                v, srd, so = VW, SW, 32
            else:
                su = "s_nop 0"
                v, srd, so = VD, SD, TB + i
            su = f"s_add_u32 m0, s33, {blk[it]*BLK}\n" + su
            return su, [(f"buffer_load_dwordx4 v{v+q}, s[{srd}:{srd+3}], s{so} offen offset:{1024*q} lds", (k, i, q)) for q in range(4)]
        def item(it):
            su, dm = item_ops(it)
            S(su)
            for t, tag in dm: S.add(t, vm=tag)
            issued.append(it)
        if isB:
            S(f"s_add_u32 s{SF}, s30, {FO}\ns_addc_u32 s{SF+1}, s31, 0\ns_mov_b32 s{SF+2}, {FSZ}\ns_mov_b32 s{SF+3}, 0x20000")
            S(f"v_lshlrev_b32 v{VF}, 20, v{LANE}")
            S("s_mov_b32 s74, s28\ns_mov_b32 s75, s29")
        if spare and isB:
            S("s_cmp_eq_u32 s2, 224\ns_cselect_b32 s32, s21, 0\ns_cmp_eq_u32 s32, 1")
            S("s_cbranch_scc0 L_notag")
            S("s_mov_b32 s88, s28\ns_mov_b32 s89, s29\ns_mov_b32 s90, 256\ns_mov_b32 s91, 0x20000")
            S(f"s_mov_b32 s32, {FSZ-128}")
            S(f"buffer_load_dword v{PR}, v{VF}, s[{SF}:{SF+3}], s32 offen sc1")
            S(f"v_mov_b32 v{PR+1}, 1")
            S("s_waitcnt vmcnt(0)")
            S(f"v_add_u32 v{PR}, 1, v{PR}")
            S(f"buffer_store_dwordx2 v[{PR}:{PR+1}], v{VF}, s[88:91], 0 offen sc1")
            S(f"buffer_store_dword v{PR}, v{VF}, s[{SF}:{SF+3}], s32 offen sc1")
            S("L_notag:")
            S("s_barrier")
        if not spare:
            S("s_bfe_u32 s32, s17, 0x10002\ns_lshl1_add_u32 s0, s17, s32\ns_add_u32 s0, s0, 6\ns_xor_b32 s1, s0, 1")
            for hf in range(2):
                S(f"s_lshl2_add_u32 s32, s21, {16*hf}\ns_lshr_b32 s32, s36, s32\ns_and_b32 s32, s32, 7\ns_lshl_b32 s32, s32, 7\ns_add_u32 s{93+hf}, s32, s39")
            S("s_lshl_b32 s32, s23, 2\ns_lshr_b32 s87, s36, s32")
            if isB:
                for q in range(4): S(f"v_mov_b32 v{VW+q}, v{VX+q}")
                S(f"s_mov_b32 s{SW}, s{SX}\ns_mov_b32 s{SW+1}, s{SX+1}\ns_mov_b32 s{SW+2}, 1835008\ns_mov_b32 s{SW+3}, 0x20000")
                S("s_mov_b32 s38, s37")
                S(f"s_mov_b32 s{SX}, s4\ns_mov_b32 s{SX+1}, s5\ns_mov_b32 s{SX+2}, 0x200000")
                S(f"v_lshrrev_b32 v{T1}, 3, v{LANE}\nv_lshrrev_b32 v{T2}, 4, v{LANE}")
                S(f"v_xor_b32 v{T3}, v{T2}, v{LANE}\nv_and_b32 v{T3}, 7, v{T3}\nv_lshlrev_b32 v{T1}, 10, v{T1}")
                S(f"v_lshl_add_u32 v{VX}, v{T3}, 4, v{T1}")
                S(f"v_xor_b32 v{VX+1}, 64, v{VX}")
                S(f"v_add_u32 v{VX+1}, {7*1024}, v{VX+1}")
                S(f"v_add_u32 v{VX+2}, {14*1024}, v{VX}")
                S(f"v_add_u32 v{VX+3}, {14*1024}, v{VX+1}")
            if SH1 == 32:
                S(f"v_and_b32 v{T1}, 31, v{LANE}")
                S(f"v_bfe_u32 v{T2}, v{LANE}, 1, 3")
                S(f"v_lshrrev_b32 v{T3}, 5, v{LANE}")
                S(f"v_xor_b32 v{T2}, v{T2}, v{T3}")
                S(f"v_lshlrev_b32 v{T1}, 7, v{T1}")
                if isB: S(f"v_add_u32 v{T1}, {8*BLK:#x}, v{T1}")
                for ks in range(4):
                    S(f"v_xor_b32 v{T3}, {2*ks}, v{T2}")
                    S(f"v_lshl_add_u32 v{XA+ks}, v{T3}, 4, v{T1}")
                S(f"v_lshrrev_b32 v{T1}, 5, v{LANE}")
                S(f"v_lshlrev_b32 v{T1}, 3, v{T1}")
                S(f"v_bfe_u32 v{T2}, v{LANE}, 2, 2")
                S(f"v_add_u32 v{T1}, v{T1}, v{T2}")
                S(f"v_lshlrev_b32 v{T1}, 7, v{T1}")
                S(f"v_bfe_u32 v{T2}, v{LANE}, 4, 1")
                S(f"v_lshl_add_u32 v{T1}, v{T2}, 13, v{T1}")
                S(f"v_bfe_u32 v{T3}, v{LANE}, 3, 1")
                S(f"v_lshl_add_u32 v{T2}, v{T3}, 1, v{T2}")
                S(f"v_xor_b32 v{T2}, s21, v{T2}")
                S(f"v_lshl_add_u32 v{T1}, v{T2}, 5, v{T1}")
                S(f"v_and_b32 v{T2}, 1, v{LANE}")
                S(f"v_lshl_add_u32 v{T1}, v{T2}, 4, v{T1}")
                S(f"v_bfe_u32 v{T2}, v{LANE}, 1, 1")
                S(f"v_lshl_add_u32 v{T1}, v{T2}, 3, v{T1}")
                S(f"v_add_u32 v{WA}, 0x10000, v{T1}")
            else:
                S(f"v_and_b32 v{T1}, 15, v{LANE}")
                S(f"v_bfe_u32 v{T2}, v{LANE}, 1, 3")
                S(f"v_lshrrev_b32 v{T3}, 4, v{LANE}")
                S(f"v_xor_b32 v{T2}, v{T2}, v{T3}")
                S(f"v_lshlrev_b32 v{T1}, 7, v{T1}")
                if isB: S(f"v_add_u32 v{T1}, {8*BLK:#x}, v{T1}")
                S(f"v_lshl_add_u32 v{XA}, v{T2}, 4, v{T1}")
                S(f"v_xor_b32 v{XA+1}, 64, v{XA}")
                S(f"v_lshlrev_b32 v{T1}, 3, v{T3}")
                S(f"v_bfe_u32 v{T2}, v{LANE}, 2, 2")
                S(f"v_add_u32 v{T1}, v{T1}, v{T2}")
                S(f"v_lshlrev_b32 v{T1}, 7, v{T1}")
                S(f"v_bfe_u32 v{T2}, v{LANE}, 4, 1")
                S(f"v_bfe_u32 v{T3}, v{LANE}, 3, 1")
                S(f"v_lshl_add_u32 v{T2}, v{T3}, 1, v{T2}")
                S(f"v_xor_b32 v{T2}, s21, v{T2}")
                S(f"v_lshl_add_u32 v{T1}, v{T2}, 5, v{T1}")
                S(f"v_and_b32 v{T2}, 3, v{LANE}")
                S(f"v_lshl_add_u32 v{T1}, v{T2}, 3, v{T1}")
                S(f"v_add_u32 v{WA}, 0x10000, v{T1}")
            for it in plan[-1]:
                if (it[0] == "W") == isB: item(it)
            S(f"s_mov_b32 s32, {f2u(C0):#x}\ns_mov_b32 s12, {f2u(C1):#x}")
            S(f"v_mov_b32 v{CC0}, s32")
            S(f"s_lshl2_add_u32 s13, s17, s21\ns_mul_i32 s32, s16, {8*HSTR}\ns_add_u32 s13, s13, s32")
            for g in groups[SET]:
                r = HS + g
                S(gexp(g, r) + f"\ns_mul_i32 s{r}, s{r}, {HSTR}\ns_add_u32 s{r}, s{r}, s13\ns_lshl_b32 s{r}, s{r}, 10")
            if isB:
                S("s_mul_i32 s92, s16, 14336\ns_lshl_b32 s32, s17, 7\ns_add_u32 s92, s92, s32\ns_lshl2_add_u32 s92, s21, s92")
                S(f"v_lshrrev_b32 v{T1}, 1, v{LANE}\nv_lshl_add_u32 v{VF2}, v{T1}, 20, v{L16}")
        if isB or spare:
            S(f"s_mov_b32 s{SD}, s10\ns_mov_b32 s{SD+1}, s11\ns_mov_b32 s{SD+2}, 1835008\ns_mov_b32 s{SD+3}, 0x20000")
        if isB:
            S(f"v_bfe_u32 v{T3}, v{LANE}, 4, 1\nv_lshlrev_b32 v{T3}, 2, v{T3}\nv_xor_b32 v{T3}, v{T3}, v{LANE}\nv_and_b32 v{T3}, 7, v{T3}")
            S(f"v_lshrrev_b32 v{T1}, 3, v{LANE}\nv_lshlrev_b32 v{T1}, 10, v{T1}")
            S(f"v_lshl_add_u32 v{VD}, v{T3}, 4, v{T1}")
            for q in range(1, 4): S(f"v_add_u32 v{VD+q}, {q*7*1024}, v{VD}")
        S(f"v_and_b32 v{T1}, 15, v{LANE}")
        S("s_lshl_b32 s32, s22, 1\ns_xor_b32 s32, s32, 2")
        S(f"v_subrev_u32 v{T2}, 10, v{T1}\nv_xor_b32 v{T2}, s32, v{T2}\nv_add_u32 v{T2}, 10, v{T2}")
        S(f"v_cmp_le_u32 vcc, 26, v{LANE}")
        S("s_nop 1")
        S(f"v_cndmask_b32 v{T1}, v{T1}, v{T2}, vcc")
        S(f"v_lshl_add_u32 v{T1}, v{T1}, 1, s23")
        S(f"v_mul_u32_u24 v{T2}, 37, v{T1}\nv_lshrrev_b32 v{T2}, 8, v{T2}")
        S(f"v_mul_u32_u24 v{T3}, 7, v{T2}\nv_sub_u32 v{T3}, v{T1}, v{T3}")
        S(f"v_add_u32 v{T3}, s34, v{T3}")
        S(f"v_subrev_u32 v{T4}, 7, v{T3}\nv_min_u32 v{T4}, v{T3}, v{T4}")
        S(f"v_mul_u32_u24 v{T5}, 86, v{T3}\nv_lshrrev_b32 v{T5}, 8, v{T5}\nv_mul_u32_u24 v{T5}, 3, v{T5}\nv_sub_u32 v{T5}, v{T3}, v{T5}")
        S(f"v_lshl_add_u32 v{T5}, v{T5}, 1, 1")
        S(f"v_cmp_le_u32 vcc, 21, v{T1}")
        S(f"v_and_b32 v{T3}, 3, v{T3}\nv_lshlrev_b32 v{T3}, 1, v{T3}")
        S(f"v_cndmask_b32 v{T4}, v{T4}, v{T5}, vcc")
        S(f"v_cmp_le_u32 vcc, 24, v{T1}")
        S(f"v_sub_u32 v{T2}, s35, v{T2}\nv_and_b32 v{T2}, 3, v{T2}")
        S(f"v_cndmask_b32 v{T4}, v{T4}, v{T3}, vcc")
        S(f"v_lshl_add_u32 v{T1}, v{T4}, 2, v{T2}")
        S("s_lshl_b32 s95, s19, 7")
        if isB:
            S("s_lshl_b32 s32, s22, 15\ns_add_u32 s32, s32, s95")
            S(f"v_lshl_add_u32 v{T2}, v{T1}, 16, s32")
            S("s_mul_i32 s32, s18, 3584\ns_lshl4_add_u32 s32, s22, s32")
            S(f"v_lshl_add_u32 v{FV}, v{T1}, 7, s32")
            for j in range(14): S(f"v_readlane_b32 s{TB+j}, v{T2}, {j}")
        else:
            S(f"s_lshl1_add_u32 s32, s18, s22\ns_mul_i32 s32, s32, {HSTR*1024}")
            if cfg.get("hfake"):
                S(f"s_lshl1_add_u32 s32, s35, s22\ns_mul_i32 s32, s32, {HSTR*1024}\ns_and_b32 s84, s14, 1\ns_lshl_b32 s84, s84, 20\ns_add_u32 s32, s32, s84")
                S("s_mov_b32 s84, s4\ns_mov_b32 s85, s5\ns_mov_b32 s86, 0x200000\ns_mov_b32 s87, 0x20000")
            S(f"v_lshl_add_u32 v{T2}, v{T1}, 12, s32")
            S(f"v_lshrrev_b32 v{T1}, 5, v{LANE}")
            for j in range(14): S(f"v_readlane_b32 s{TB+j}, v{T2}, {16+j}")
            S(f"v_lshlrev_b32 v{T1}, 3, v{T1}")
            S(f"v_bfe_u32 v{T2}, v{LANE}, 2, 2")
            S(f"v_add_u32 v{T1}, v{T1}, v{T2}")
            S(f"v_lshlrev_b32 v{T1}, 7, v{T1}")
            S(f"v_bfe_u32 v{T2}, v{LANE}, 3, 1")
            S(f"v_lshl_add_u32 v{T1}, v{T2}, 6, v{T1}")
            S(f"v_bfe_u32 v{T2}, v{LANE}, 4, 1")
            S(f"v_lshl_add_u32 v{T1}, v{T2}, 5, v{T1}")
            S(f"v_and_b32 v{T2}, 1, v{LANE}")
            S(f"v_lshl_add_u32 v{T1}, v{T2}, 4, v{T1}")
            S(f"v_bfe_u32 v{T2}, v{LANE}, 1, 1")
            S(f"v_lshl_add_u32 v{T1}, v{T2}, 3, v{T1}")
            S("s_lshl_b32 s32, s23, 13")
            S(f"v_add_u32 v{DA+1}, s32, v{T1}")
            S(f"s_lshl_b32 s32, s23, 6\nv_xor_b32 v{DA+1}, s32, v{DA+1}")
            S(f"v_xor_b32 v{DA}, 64, v{DA+1}")
            for w in (1, 2):
                S(f"v_add_u32 v{DA+2*w}, {w*65536:#x}, v{DA}")
                S(f"v_add_u32 v{DA+2*w+1}, {w*65536:#x}, v{DA+1}")
            S("s_cmp_eq_u32 s22, 1")
            for i in range(4): S(f"s_cselect_b32 s{88+i}, {blk[('D', 10+i)]}, {blk[('D', 10+(i^2))]}")
            for i in range(4):
                S(f"s_lshl_b32 s32, s{88+i}, 14")
                for t in range(2): S(f"v_add_u32 v{DA2+2*i+t}, s32, v{DA+t}")
            S(f"s_mov_b32 s{SW}, s26\ns_mov_b32 s{SW+1}, s27\ns_mov_b32 s{SW+2}, 0x200000\ns_mov_b32 s{SW+3}, 0x20000")
            S(f"v_and_b32 v{T1}, 31, v{LANE}\nv_lshlrev_b32 v{T1}, 10, v{T1}\nv_lshrrev_b32 v{T2}, 5, v{LANE}\nv_lshl_add_u32 v{VOUT}, v{T2}, 4, v{T1}")
            S("s_lshl_b32 s32, s18, 16\ns_add_u32 s95, s95, s32\ns_lshl_b32 s32, s22, 15\ns_add_u32 s95, s95, s32\ns_lshl_b32 s32, s23, 6\ns_add_u32 s95, s95, s32")
            S(f"s_add_u32 s32, s33, {blk[('D', XJ)]*BLK}\nv_add_u32 v{VEX}, s32, v{L16}\nv_xor_b32 v{VEX+1}, 0x2000, v{VEX}")
        S(f"s_mov_b32 s{SH}, s30\ns_mov_b32 s{SH+1}, s31\ns_mov_b32 s{SH+2}, {64*HSTR*1024}\ns_mov_b32 s{SH+3}, 0x20000")
        if lite and not isB: S(f"v_mov_b32 v{LT}, 0\nv_mov_b32 v{LT+1}, 0\nv_mov_b32 v{LT+2}, 0")
        myplan = {s: [] for s in range(NST)}
        def c3x():
            S(f"s_mov_b32 s{SX}, s4\ns_mov_b32 s{SX+1}, s5\ns_mov_b32 s{SX+2}, 0x200000\ns_mov_b32 s{SX+3}, 0x20000")
            S(f"v_lshrrev_b32 v{T1}, 3, v{LANE}\nv_lshlrev_b32 v{T1}, 10, v{T1}\nv_and_b32 v{T2}, 0x70, v{L16}\nv_add_u32 v{T1}, v{T1}, v{T2}")
            S("s_lshl2_add_u32 s32, s16, s21\ns_lshl_b32 s32, s32, 16\ns_add_u32 s32, s32, 384")
            for i in range(8):
                S.add(f"buffer_load_dwordx4 v[{64+4*i}:{67+4*i}], v{T1}, s[{SX}:{SX+3}], s32 offen", vm=("c3x", i))
                S("s_add_u32 s32, s32, 8192")
        def c3w():
            S("s_cmp_eq_u32 s22, 0")
            S(f"s_cselect_b32 s{SX}, s6, s8\ns_cselect_b32 s{SX+1}, s7, s9\ns_mov_b32 s{SX+2}, 1835008\ns_mov_b32 s{SX+3}, 0x20000")
            S(f"v_min_u32 v{T1}, 880, v{L16}")
            S("s_lshl1_add_u32 s32, s35, s23\ns_lshl_b32 s32, s32, 3\ns_add_u32 s32, s32, 192\ns_mul_i32 s32, s32, 3584\ns_lshr_b32 s96, s14, 1\ns_mul_i32 s96, s96, 896\ns_add_u32 s32, s32, s96")
            for i in range(8):
                S.add(f"buffer_load_dwordx4 v[{96+4*i}:{99+4*i}], v{T1}, s[{SX}:{SX+3}], s32 offen", vm=("c3w", i))
                S("s_add_u32 s32, s32, 3584")
        def warm():
            S("s_sub_u32 s32, s2, 224\ns_lshl2_add_u32 s32, s32, s21\ns_mul_i32 s32, s32, 14336")
            for i in range(14):
                if i and i % 4 == 0: S("s_add_u32 s32, s32, 4096")
                S.add(f"buffer_load_dwordx4 v[{4*i}:{4*i+3}], v{L16}, s[{SD}:{SD+3}], s32 offen offset:{(i%4)*1024}", vm=("wm", i))
        if spare:
            if isB:
                S("s_barrier")
                for j in range(10): item(("D", j))
                for j in range(10, 14): myplan[sched[("D", j)]].append(("D", j))
            else:
                S("s_barrier")
                for f in cfg.get("spare_order", "wxm"): {"w": c3w, "x": c3x, "m": warm}[f]()
                S.add("s_barrier", need_vm=["ALL"])
        elif isB:
            myplan = {s: plan[s] for s in range(NST)}

        M = []
        pooln = [0]
        def pool():
            r = POOL + 4 * (pooln[0] % NPOOL); pooln[0] += 1; return r
        def wreads(i):
            wo = (blk[("W", i)] - 4) * BLK
            out = {}
            for sl in range(4):
                slot = 4*i + sl; wreg = WR + 4*slot
                off = wo + sl*2048 if SH1 == 32 else wo + (sl % 2)*8192 + (sl // 2)*4096
                out[slot] = [(("w", slot, j), f"ds_read_b64_tr_b16 v[{wreg+2*j}:{wreg+2*j+1}], v{WA} offset:{off + j*512}") for j in range(2)]
            return out
        def p1(step, i, g, xo, readw):
            a = ACC[accof[g]]
            wr = wreads(i) if readw else {}
            lastg = (g == groups[SET][-1])
            res = []
            if SH1 == 32:
                for ks in range(4):
                    slot = 4*i + ks
                    res.append([dict(step=step, d=a, n=16, A=WR + 4*slot, rd=wr.get(slot, []), xrd=(("x", g, slot), f"v{XA+ks} offset:{xo}"),
                                     first=(slot == 0), last=(slot == 31), g=g, wdead=(slot if lastg else None), slot=slot)])
            else:
                for k2 in range(2):
                    sub_l = []
                    for sub in range(2):
                        for mat in range(2):
                            slot = 4*i + 2*k2 + mat
                            sub_l.append(dict(step=step, d=a + 8*mat + 4*sub, n=4, A=WR + 4*slot, rd=(wr.get(slot, []) if sub == 0 else []),
                                              xrd=((("x", g, i, k2, sub), f"v{XA+k2} offset:{xo + sub*2048}") if mat == 0 else None),
                                              first=(i == 0 and k2 == 0), last=(i == 7 and k2 == 1 and sub == 1 and mat == 1), g=g,
                                              wdead=(slot if lastg and sub == 1 else None), slot=slot))
                    res.append(sub_l)
            return res
        def push(lst):
            for m in lst:
                if m["xrd"] is not None:
                    xr = pool(); push.cur = xr
                    m["rd"] = m["rd"] + [(m["xrd"][0], f"ds_read_b128 v[{xr}:{xr+3}], {m['xrd'][1]}")]
                    m["pool"] = 1
                else: m["pool"] = 0
                m["B"] = push.cur
                M.append(m)
        if not spare and not isB:
            for i in range(8):
                gs = [p1(i, i, g, blk[("X", i // 2)]*BLK + (2*(i % 2) + u)*4096, u == 0) for u, g in enumerate(SP)]
                for parts in zip(*gs):
                    for u in parts: push(u)
            for n_, g in enumerate(AL):
                for i in range(8):
                    for u in p1(8 + 2*n_ + i // 4, i, g, blk[("X", 4 + 2*n_ + i // 4)]*BLK + (i % 4)*4096, False): push(u)
        if not spare and isB:
            for n_, (g, bs) in enumerate(bgroups):
                for i in range(8):
                    assert bs[i] >= i
                    for u in p1(bs[i], i, g, (blk[("Y", 2*n_ + i // 4)] - 8)*BLK + (i % 4)*4096, False): push(u)
        if not isB:
            for j in range(14):
                b = blk[("D", j)]
                order = [(ks, t) for ks in range(4) for t in range(2)] if j < 13 else [(ks, t) for t in range(2) for ks in range(4)]
                for ks, t in order:
                    n = 4*j + ks
                    r = pool()
                    if j >= 10: ad, off = DA2 + 2*(j - 10) + t, ks*2048
                    else: ad, off = DA + 2*(b // 4) + t, (b % 4)*BLK + ks*2048
                    rd = [(("d", j, ks, t, jj), f"ds_read_b64_tr_b16 v[{r+2*jj}:{r+2*jj+1}], v{ad} offset:{off + jj*512}") for jj in range(2)]
                    M.append(dict(step=P2 + j // 2, d=A2[t], n=16, A=r, B=WR + 4*(n % 32), first=(n == 0), rd=rd, h=n, t=t, last=False, pool=1))
        NM = len(M)
        cum = [0]
        for m in M: cum.append(cum[-1] + m["pool"])
        def epi(g):
            a = ACC[accof[g]]
            L = []
            T = lambda i: TMP + i
            idx = range(8)
            for i in idx: L.append(dict(text=f"v_mul_f32 v{T(i)}, v{a+i}, v{a+i}", vr=[a+i], cost=1))
            for i in idx: L.append(dict(text=f"v_fma_f32 v{T(i)}, v{T(i)}, s12, v{CC0}", cost=1))
            for i in idx: L.append(dict(text=f"v_mul_f32 v{T(i)}, v{T(i)}, v{a+i}", cost=1))
            for i in idx:
                L.append(dict(text=f"v_exp_f32 v{T(i)}, v{T(i)}", cost=2, trans=T(i)))
                L.append(dict(text=f"v_mul_f32 v{a+8+i}, v{a+i}, v{a+8+i}", vr=[a+8+i], cost=1))
            for i in idx: L.append(dict(text=f"v_add_f32 v{T(i)}, 1.0, v{T(i)}", vr=[T(i)], cost=1))
            for i in idx: L.append(dict(text=f"v_rcp_f32 v{T(i)}, v{T(i)}", cost=2, trans=T(i)))
            for i in idx: L.append(dict(text=f"v_mul_f32 v{a+8+i}, v{a+8+i}, v{T(i)}", vr=[T(i)], cost=1))
            for i in range(4): L.append(dict(text=f"v_cvt_pk_bf16_f32 v{a+i}, v{a+8+2*i}, v{a+8+2*i+1}", cost=1, vw=[a+i]))
            if SH1 == 16:
                for i in range(2): L.append(dict(text=f"v_permlane16_swap_b32 v{a+i}, v{a+2+i}", cost=1, pr=[a+i, a+2+i]))
            L.append(dict(text=f"buffer_store_dwordx4 v[{a}:{a+3}], v{L16}, s[{SH}:{SH+3}], s{HS+g} offen sc1", vm=("st", g), cost=1))
            return L
        def put(e):
            S.add(e["text"], vm=e.get("vm"), vr=e.get("vr", ()), trans=e.get("trans"), vw=e.get("vw", ()), pr=e.get("pr", ()))
        covers = lambda ev: (ev - 1, ev) if ev < 6 else (ev,)
        flagged = set()
        def flag(ev):
            nv = [("st", g) for g in covers(ev) if g in groups[1]]
            S(f"s_add_u32 s97, s17, {ev//2}\ns_and_b32 s97, s97, 3\ns_mul_i32 s97, s97, 3584\ns_add_u32 s97, s97, s92")
            if ev >= 6: S(f"s_and_b32 s13, s{ev-6}, 1\ns_lshl4_add_u32 s97, s13, s97")
            S.add(f"buffer_store_dword v{TAG}, v{VF2 if ev < 6 else VF}, s[{SF}:{SF+3}], s97 offen sc1", vm=("flag", ev), need_vm=nv)
            flagged.add(ev)
        def tag_issue():
            S("s_load_dwordx2 s[14:15], s[74:75], 0")
        def tag_check():
            S("s_mov_b32 s97, 0")
            S.add("s_waitcnt lgkmcnt(0)", need_lds=["ALL"])
            S(f"L_tag{sfx}:")
            S("s_cmp_lg_u32 s15, 0")
            S(f"s_cbranch_scc1 L_tagok{sfx}")
            S("~s_add_u32 s97, s97, 1")
            S("~s_cmp_ge_u32 s97, 0x100000")
            S(f"~s_cbranch_scc1 L_tagok{sfx}")
            S("~s_sleep 2")
            S(f"~v_mov_b32 v{PR+2}, 0")
            S(f"~global_load_dwordx2 v[{PR}:{PR+1}], v{PR+2}, s[74:75] sc1")
            S("~s_waitcnt vmcnt(0)")
            S(f"~v_readfirstlane_b32 s14, v{PR}")
            S(f"~v_readfirstlane_b32 s15, v{PR+1}")
            S("~s_nop 1")
            S(f"~s_branch L_tag{sfx}")
            S(f"L_tagok{sfx}:")
            S(f"v_mov_b32 v{TAG}, s14")
            S("s_mov_b32 s15, s14")
        polling = [None]
        pmask = lambda c: (((1 << pg[c][1]) - 1) ^ ((1 << pg[c][0]) - 1)) << 16
        PD4 = (4, 8, 24, 28)
        def poll_loads(c, pre=""):
            for i in range(pg[c][1] - pg[c][0]):
                S(f"{pre}s_load_dwordx4 s[{PD4[i]}:{PD4[i]+3}], s[{SF}:{SF+1}], s{88+i} glc")
        def poll_issue(c):
            assert polling[0] is None; polling[0] = c
            for i, j in enumerate(range(*pg[c])): S(f"v_readlane_b32 s{88+i}, v{FV}, {16+j}")
            S.add("s_nop 3", need_lds=["ALL"])
            poll_loads(c)
        def poll_check(c):
            assert polling[0] == c; polling[0] = None
            prs = [r + d for r in PD4[:pg[c][1] - pg[c][0]] for d in (0, 2)]
            S("s_mov_b32 s96, 0")
            S(f"L_poll{sfx}{c}:")
            S.add("s_waitcnt lgkmcnt(0)", need_lds=["ALL"])
            for r in prs: S(f"s_xor_b64 s[{r}:{r+1}], s[{r}:{r+1}], s[14:15]")
            for r in prs[1:]: S(f"s_or_b64 s[4:5], s[4:5], s[{r}:{r+1}]")
            S(f"s_cbranch_scc0 L_ok{sfx}{c}")
            S("~s_add_u32 s96, s96, 1")
            S("~s_cmp_ge_u32 s96, 0x100000")
            S(f"~s_cbranch_scc1 L_ok{sfx}{c}")
            if spare: S(f"~s_sleep {8 if c == 0 else 2}")
            S("~s_and_b32 s4, s96, 63")
            S(f"~s_cbranch_scc1 L_sp{sfx}{c}")
            S(f"~s_mov_b64 exec, {pmask(c):#x}")
            S(f"~buffer_load_dwordx4 v[{PR}:{PR+3}], v{FV}, s[{SF}:{SF+3}], 0 offen sc1")
            S("~s_mov_b64 exec, -1")
            S("~s_waitcnt vmcnt(0)")
            S(f"~v_cmp_eq_u64 vcc, s[14:15], v[{PR}:{PR+1}]")
            S(f"~v_cmp_eq_u64_e64 s[4:5], s[14:15], v[{PR+2}:{PR+3}]")
            S("~s_nop 1")
            S("~s_and_b32 s4, s4, vcc_lo")
            S(f"~s_andn2_b32 s4, {pmask(c):#x}, s4")
            S(f"~s_cbranch_scc0 L_ok{sfx}{c}")
            S(f"L_sp{sfx}{c}:")
            poll_loads(c, "~")
            S(f"~s_branch L_poll{sfx}{c}")
            S(f"L_ok{sfx}{c}:")
        pts = [(rel(a), rel(b)) for a, b in (cfg["ppts_s"] if spare else cfg["ppts"])]
        def points(s, k):
            if not spare:
                if cfg["tag_pts"][0] == (s, k): tag_issue()
                if cfg["tag_pts"][1] == (s, k): tag_check()
                for ev, pt in flag_pts.items():
                    if pt == (s, k): flag(ev)
            for c, (pi, pc) in enumerate(pts):
                if pc == (s, k) and pi != pc: poll_check(c)
            for c, (pi, pc) in enumerate(pts):
                if pi == (s, k):
                    poll_issue(c)
                    if pi == pc: poll_check(c)

        first = P2 - 2 if spare else 0
        st = dict(rd=0, h=0, bar=first - 1, wdead=(32 if spare else 0), n=0, hcons=0, ok=0)
        epq = []; dmaq = []; lpend = []
        def barrier():
            s = st["bar"] + 1
            assert not dmaq
            nv = [(k, i, 3) for (k, i) in issued if first_use((k, i)) < next_bar(s)]
            if not spare and not isB:
                for ev, pt in flag_pts.items():
                    if s == prev_bar(pt[0]): nv += [("st", g) for g in covers(ev) if g in groups[0]]
            lt = lite and not isB
            if s not in nobar:
                if lt:
                    S.add("s_waitcnt lgkmcnt(0)", need_lds=["ALL"], need_vm=nv)
                    for (r, v, idx) in lpend: S(f"v_writelane_b32 v{v}, s{r}, {idx}")
                    lpend.clear()
                    S("s_memtime s[40:41]"); lpend.append((40, LT + 1, s + 1))
                S.add("s_barrier", need_lds=["ALL"], need_vm=nv)
            if lt:
                r = [x for x in (98, 36, 38) if not any(y[0] == x for y in lpend)][0]
                S(f"s_memtime s[{r}:{r+1}]"); lpend.append((r, LT + 2, s + 1))
                if s not in nobar: S("s_memrealtime s[18:19]"); lpend.append((18, LT, s + 1))
            st["bar"] = s
            if isB and cfg.get("diag") == s: S("s_memrealtime s[98:99]\ns_waitcnt lgkmcnt(0)")
            for c, (pi, pc) in enumerate(pts):
                if s == next_bar(pc[0]): st["ok"] = max(st["ok"], pg[c][1])
            for it in myplan[s]:
                if it[0] == "D" and it[1] in stage and not spare: continue
                su, dm = item_ops(it)
                dmaq.append((su, None, None))
                for k, (t, tag) in enumerate(dm): dmaq.append((t, tag, it if k == 3 else None))
            if isB and not spare:
                for j, ss in stage.items():
                    if ss == s:
                        assert st["n"] == NM, "W registers of set B still in use"
                        for q in range(4):
                            r = sreg[j] + 4*q
                            dmaq.append((f"buffer_load_dwordx4 v[{r}:{r+3}], v{VD+q}, s[{SD}:{SD+3}], s{TB+j} offen offset:{1024*q}", ("sg", j, q), None))
        def unstage(s):
            for it in myplan[s]:
                if it[0] == "D" and it[1] in stage and not spare:
                    j = it[1]
                    S(f"s_add_u32 s32, s33, {blk[it]*BLK}\nv_add_u32 v{XA}, s32, v{L16}")
                    for q in range(4):
                        r = sreg[j] + 4*q
                        S.add(f"ds_write_b128 v{XA}, v[{r}:{r+3}] offset:{1024*q}", lds=("us", j, q), need_vm=[("sg", j, q)])
        def issue_dma(n):
            while dmaq and n > 0:
                t, tag, it = dmaq.pop(0)
                if tag is None: S(t); continue
                S.add(t, vm=tag); n -= 1
                if it: issued.append(it)
        def issue_reads(n, maxn, lim):
            cnt = 0
            while st["rd"] < NM and M[st["rd"]]["step"] < lim and cnt < maxn:
                k = st["rd"]
                lo = cum[n + 1] - 1 if n >= 0 else 0
                if cum[k + 1] - lo > (cfg.get("look2", 6) if "h" in M[k] else cfg.get("look", NPOOL)): break
                for (i, t) in M[k]["rd"]: S.add(t, lds=i)
                if M[k]["rd"]: cnt += 1
                st["rd"] += 1
        def issue_h(maxn):
            cnt = 0
            while st["h"] < 56 and cnt < maxn:
                h = st["h"]
                lim = 56 if spare else hmax.get(st["bar"], 0 if st["bar"] < min(hmax) else 56)
                if not (h < lim and (h < st["wdead"] if h < 32 else h - 32 < st["hcons"]) and h // 4 < st["ok"]): break
                r = WR + 4 * (h % 32)
                S.add(f"buffer_load_dwordx4 v[{r}:{r+3}], v{L16}, s[{84 if cfg.get('hfake') else SH}:{87 if cfg.get('hfake') else SH+3}], s{TB + h//4} offen offset:{(h % 4)*1024} {cfg.get('hsc', 'sc1')}", vm=("h", h))
                st["h"] += 1; cnt += 1
        def issue_epi(budget):
            used = 0
            while epq and used < budget:
                e = epq[0][0].pop(0)
                put(e); used += e["cost"]
                if not epq[0][0]: epq.pop(0)
        WB = cfg.get("wb", 2)
        def mfma():
            n = st["n"]; m = M[n]
            ph2 = "h" in m
            nv = [("h", m["h"])] if ph2 else []
            if ph2: assert m["h"] < st["h"], ("h not issued", m["h"], st["h"], n)
            assert st["rd"] > n, ("reads not issued", n)
            if m["first"]:
                for e in epq: assert not (e[1] <= m["d"] < e[1] + 16), ("acc reuse", n, m["step"])
            d, nn = m["d"], m["n"]
            c = "0" if m["first"] else f"v[{d}:{d+nn-1}]"
            op = "v_mfma_f32_32x32x16_bf16" if nn == 16 else "v_mfma_f32_16x16x32_bf16"
            wb = WB * (1 if nn == 16 else 2)
            nl = [i for k in range(n, min(n + (wb if n % wb == 0 else 1), st["rd"])) for i, _ in M[k]["rd"]]
            if isB: nl += [("w", m["slot"], 0), ("w", m["slot"], 1)]
            S.add(f"{op} v[{d}:{d+nn-1}], v[{m['A']}:{m['A']+3}], v[{m['B']}:{m['B']+3}], {c}", need_lds=nl, need_vm=nv, mw=(d, d + nn - 1))
            if m.get("wdead") is not None: st["wdead"] = m["wdead"] + 1
            if m["last"]: epq.append([epi(m["g"]), ACC[accof[m["g"]]], n + 1 + 4 * MUL])
            if ph2: st["hcons"] = m["h"] + m["t"]
            st["n"] += 1
            if ph2 and NM - 3 <= n < NM - 1:
                for i in (2*(n - NM + 3), 2*(n - NM + 3) + 1):
                    S.add(f"ds_write_b128 v{VEX}, v[{A2[0]+4*i}:{A2[0]+4*i+3}] offset:{1024*i}", lds=("xw", i), vr=range(A2[0]+4*i, A2[0]+4*i+4))
        prio = cfg.get("prio", (1, 0))
        S(f"s_setprio {prio[SET]}")
        if spare and isB:
            tag_issue(); tag_check()
            points(first - 1, 99)
        lastB = max([next_bar(pc[0]) for _, pc in pts] + [first_use(("D", 13))])
        for s in range(first, NST):
            if isB and s > lastB: break
            barrier()
            end = st["n"]
            while end < NM and M[end]["step"] <= s: end += 1
            if not isB:
                BK = cfg.get("bk", 3) * (MUL if s < P2 else 1)
                if s < LAST and end > st["n"]: end -= BK
                issue_reads(st["n"] - 1, 99, next_bar(s))
                if spare and s < P2: issue_h(99)
                k = 0
                while st["n"] < end:
                    mfma(); k += 1
                    issue_reads(st["n"] - 1, 2, next_bar(s))
                    nn = M[st["n"] - 1]["n"]
                    per = cfg.get("hper_at", {}).get(s - P2, cfg.get("hper", 2)) * (MUL if s < P2 else 1)
                    if k % per == per - 1 or (s >= P2 and st["h"] < st["hcons"] + 6): issue_h(1)
                    if epq and st["n"] >= epq[0][2] and (nn == 16 or k % 2):
                        issue_epi(cfg.get("eon2", 5) if s >= P2 else cfg.get("eon_at", {}).get(s, cfg["eon"]))
                assert s == LAST or s + 1 in nobar or (spare and s < P2) or st["rd"] == end + BK, (s, st["rd"], end)
            else:
                pa = {(P2 + k_[0] if isinstance(k_, tuple) else k_): v for k_, v in cfg.get("prio_at", {}).items()}
                if s in pa: S(f"s_setprio {pa[s]}")
                lag = cfg.get("blag", 1)
                if lag:
                    while st["n"] < NM and M[st["n"]]["step"] < s:
                        mfma()
                        if M[st["n"] - 1]["n"] == 16 or st["n"] % 2 == 0: issue_dma(1)
                if s < 8 and not spare and bgroups:
                    for slot, rds in wreads(s).items():
                        for (i, t) in rds: S.add(t, lds=i)
                        issue_dma(1)
                issue_reads(st["n"] - 2 if False else st["n"] - 1, 99, s + 1)
                if lag: assert st["rd"] == end, (s, st["rd"], end)
                unstage(s)
                points(s, 0)
                issue_dma(99)
                points(s, 50)
                while not lag and st["n"] < end:
                    mfma()
                    issue_reads(st["n"] - 1, 2, s + 1)
                issue_epi(cfg.get("eoff_at", {}).get(s, cfg["eoff"]))
                points(s, 99)
        assert not epq and st["n"] == NM
        if isB:
            if not spare: assert flagged == {1, 3, 5, 6, 7}, flagged
            if cfg.get("diag") is not None and not spare:
                S(f"s_cmp_lg_u32 s2, {cfg.get('diagwg', 8)}")
                S("s_cbranch_scc1 L_end")
                for s in range(lastB + 1, NST):
                    if s not in nobar: S("s_barrier")
                S("s_barrier")
                if cfg["diag"] == 99: S("s_memrealtime s[98:99]\ns_waitcnt lgkmcnt(0)")
                if cfg["diag"] < 0: S("s_mov_b32 s98, s100")
                S("s_sub_u32 s98, s98, s100\ns_lshl_b32 s98, s98, 2\ns_add_u32 s98, s98, 3000")
                S("L_dg:")
                S("s_memrealtime s[96:97]\ns_waitcnt lgkmcnt(0)\ns_sub_u32 s96, s96, s100\ns_cmp_lt_u32 s96, s98\ns_cbranch_scc1 L_dg")
            S("s_endpgm")
            return S.render()
        assert st["h"] == 56
        R = RED; keep = A2[1]
        S.add("s_barrier", need_lds=["ALL"])
        for i in range(4):
            S.add(f"ds_read_b128 v[{R+4*i}:{R+4*i+3}], v{VEX+1} offset:{1024*i}", lds=("xr", i))
        for q in range(2):
            for i in range(8*q, 8*q + 8): S.add(f"v_add_f32 v{R+i}, v{R+i}, v{keep+i}", need_lds=[("xr", i // 4)], vr=[keep+i])
            for i in range(4): S(f"v_cvt_pk_bf16_f32 v{TMP+4*q+i}, v{R+8*q+2*i}, v{R+8*q+2*i+1}")
            S(f"buffer_store_dwordx4 v[{TMP+4*q}:{TMP+4*q+3}], v{VOUT}, s[{SW}:{SW+3}], s95 offen offset:{32*q}")
        if lite:
            for (r, v, idx) in lpend: S(f"v_writelane_b32 v{v}, s{r}, {idx}")
            S("s_memrealtime s[96:97]\ns_memtime s[36:37]\ns_waitcnt vmcnt(0)\ns_memrealtime s[98:99]\ns_waitcnt lgkmcnt(0)")
            S(f"v_writelane_b32 v{LT}, s100, 0\nv_writelane_b32 v{LT}, s96, 60\nv_writelane_b32 v{LT}, s98, 61")
            for x in range(NST + 1, 29): S(f"v_writelane_b32 v{LT+2}, s36, {x}")
            S(f"s_cmp_lg_u32 s20, {cfg.get('stwave', 1)}")
            S("s_cbranch_scc1 L_end")
            S(f"s_add_u32 s30, s{SH}, 0x8000000\ns_addc_u32 s31, s{SH+1}, 0")
            S(f"s_lshl_b32 s32, s2, 8\nv_lshrrev_b32 v0, 2, v{L16}\nv_add_u32 v0, s32, v0")
            for v in (LT, LT + 1, LT + 2):
                S(f"global_store_dword v0, v{v}, s[30:31]")
                S("v_add_u32 v0, 0x10000, v0")
        S("s_endpgm")
        return S.render()

    E = Stream()
    E("s_load_dwordx8 s[4:11], s[0:1], 0")
    E("s_load_dwordx4 s[24:27], s[0:1], 24")
    E("s_load_dwordx4 s[28:31], s[0:1], 40")
    if lite or cfg.get("diag") is not None: E("s_memrealtime s[100:101]")
    E("v_lshrrev_b32 v1, 6, v0")
    E("s_cmp_ge_u32 s2, 256")
    E("s_cbranch_scc1 L_end")
    E("v_readfirstlane_b32 s20, v1")
    E("s_and_b32 s14, s2, 7\ns_lshr_b32 s15, s2, 3")
    E("s_and_b32 s35, s15, 3\ns_lshr_b32 s19, s15, 2")
    E("s_and_b32 s32, s14, 1\ns_lshl2_add_u32 s16, s32, s35")
    E("s_lshr_b32 s17, s14, 1\ns_mul_i32 s17, s17, 7\ns_add_u32 s17, s17, s19")
    E("s_lshl2_add_u32 s18, s14, s35")
    E("s_and_b32 s21, s20, 3")
    if cfg.get("nbswap", 1):
        E("s_mov_b32 s34, s19\ns_cmp_eq_u32 s19, 3\ns_cselect_b32 s19, 7, s19\ns_cmp_eq_u32 s34, 7\ns_cselect_b32 s19, 3, s19\ns_cselect_b32 s34, 0, s34")
    else:
        E("s_cmp_eq_u32 s19, 7\ns_cselect_b32 s34, 0, s19")
    E("s_cbranch_scc1 L_spare")
    E(f"v_and_b32 v{LANE}, 63, v0")
    E("s_lshl1_add_u32 s36, s35, s32")
    if cfg.get("crot", 1): E("s_lshr_b32 s32, s17, 2\ns_add_u32 s36, s36, s32")
    if cfg.get("c3last", 1):
        E("s_sub_u32 s32, s36, 7\ns_min_u32 s36, s36, s32\ns_lshl_b32 s36, s36, 2")
        E("s_mov_b32 s96, 0x07654210\ns_mov_b32 s97, 0x65421\ns_lshr_b64 s[96:97], s[96:97], s36")
        E("s_and_b32 s36, s96, 0x0fffffff\ns_or_b32 s36, s36, 0x30000000")
    else:
        E("s_and_b32 s36, s36, 7\ns_lshl_b32 s36, s36, 2")
        E("s_mov_b32 s96, 0x76543210\ns_mov_b32 s97, s96\ns_lshr_b64 s[96:97], s[96:97], s36\ns_mov_b32 s36, s96")
    E("s_lshl_b32 s39, s16, 18")
    assert SP[0] == 0 and SP[1] in (1, 2)
    E("s_and_b32 s37, s21, 1")
    E(("s_lshl1_add_u32 s3, s17, s37" if SP[1] == 1 else "s_add_u32 s3, s17, s37\ns_lshl_b32 s3, s3, 1") + "\ns_and_b32 s3, s3, 7\ns_lshl_b32 s3, s3, 15\ns_add_u32 s3, s3, s39")
    E("s_mul_i32 s37, s37, 114688\ns_lshl_b32 s32, s17, 7\ns_add_u32 s37, s37, s32")
    E("s_and_b32 s22, s21, 2")
    E("s_lshl_b32 s33, s21, 12")
    E("s_cmp_lt_u32 s20, 4")
    E("s_cselect_b32 s37, s3, s37")
    E("s_cselect_b32 s38, 1, 1792")
    E("s_cselect_b32 s12, 3, 1\ns_cselect_b32 s13, 0, 2")
    E(f"s_cselect_b32 s23, 0, {'s22' if SH1 == 32 else '0'}")
    E(f"s_cselect_b32 s92, 64, {0 if SH1 == 32 else 32}")
    E("s_cselect_b32 s93, 2, 7")
    E(f"s_cselect_b32 s{SX+2}, 8, 7")
    E("s_cselect_b32 s94, 0, 0x10000")
    E("s_cselect_b32 s95, s22, 0")
    E(f"s_lshl_b32 s38, s38, 7\ns_lshl_b32 s93, s93, 9\ns_lshl_b32 s{SX+2}, s{SX+2}, 18")
    E(f"v_lshrrev_b32 v{T1}, 3, v{LANE}")
    E(f"v_lshrrev_b32 v{T2}, 4, v{LANE}")
    E(f"v_and_b32 v{T2}, s12, v{T2}")
    E(f"v_lshlrev_b32 v{T2}, s13, v{T2}")
    E(f"v_or_b32 v{T2}, s23, v{T2}")
    E(f"v_xor_b32 v{T2}, v{T2}, v{LANE}")
    E(f"v_and_b32 v{T2}, 7, v{T2}")
    E(f"v_mul_u32_u24 v{T1}, s93, v{T1}")
    E(f"v_lshl_add_u32 v{VX}, v{T2}, 4, v{T1}")
    E("s_lshl_b32 s93, s93, 3\ns_sub_u32 s93, s93, 1024")
    E(f"v_xor_b32 v{VX+1}, s92, v{VX}")
    E(f"v_add_u32 v{VX+1}, s93, v{VX+1}")
    E("s_lshl_b32 s93, s93, 1")
    E(f"v_add_u32 v{VX+2}, s93, v{VX}")
    E(f"v_add_u32 v{VX+3}, s93, v{VX+1}")
    E(f"s_mov_b32 s{SX+3}, 0x20000")
    E("s_add_u32 s33, s33, s94")
    E("s_lshl_b32 s95, s95, 1\ns_lshr_b32 s32, s36, s95\ns_and_b32 s32, s32, 7\ns_mul_i32 s32, s32, s38\ns_add_u32 s32, s32, s37")
    E("s_mov_b32 m0, s33")
    E("s_cmp_eq_u32 s22, 0")
    E("s_waitcnt lgkmcnt(0)")
    E(f"s_cselect_b32 s{SX}, s6, s8\ns_cselect_b32 s{SX+1}, s7, s9")
    E("s_cmp_lt_u32 s20, 4")
    E(f"s_cselect_b32 s{SX}, s4, s{SX}\ns_cselect_b32 s{SX+1}, s5, s{SX+1}")
    for q in range(4): E(f"buffer_load_dwordx4 v{VX+q}, s[{SX}:{SX+3}], s32 offen offset:{1024*q} lds")
    E("s_cbranch_scc0 L_B")
    body = E.render()
    body += ".p2align 3\n" + wave(False, False)
    body += ".p2align 6\nL_B:\n" + wave(True, False)
    body += ".p2align 6\nL_spare:\n    s_cmp_lt_u32 s20, 4\n    s_cbranch_scc0 L_Bs\n"
    body += wave(False, True)
    body += ".p2align 6\nL_Bs:\n" + wave(True, True)
    body += "L_end:\n    s_endpgm\nL_codeend:\n"
    return single_file(body, 256, 512, 163840, 256)

R = "r"
DEF = dict(sp=[0, 2], al=[3, 4, 5, 6, 7], bgroups=[(1, [1, 2, 3, 4, 5, 6, 7, 8])],
           sched={("W", 1): -1, ("Y", 0): -1, ("X", 1): 0, ("W", 2): 0, ("W", 3): 1, ("X", 2): 2, ("W", 4): 1, ("W", 5): 2, ("Y", 1): 3, ("X", 3): 4,
                  ("W", 6): 3, ("W", 7): 4, ("X", 4): 5, ("X", 5): 6},
           dsched={0: 6, 1: 7, 2: 8, 3: 9, 4: 10, 5: 11, 6: 12, 7: -2, 8: -1, 9: 0, 10: 1, 11: 1, 12: 2, 13: 2},
           stage={9: 11, 10: 13, 11: 14, 12: 14, 13: 15},
           nobar2=(6,), eon=4, eon2=5, eoff=45, prio=(1, 2), prio_at={9: 0, (0,): 2},
           tag_pts=((9, 99), (10, 99)),
           flag_pts={1: (12, 0), 3: (14, 0), 5: (-1, 0, R), 6: (1, 0, R), 7: (3, 0, R)},
           pgroups=[(0, 3), (3, 7), (7, 10), (10, 12), (12, 14)],
           ppts=[((-4, 0, R), (-3, 99, R)), ((-2, 0, R), (-1, 99, R)), ((0, 99, R), (1, 99, R)), ((2, 99, R), (3, 99, R)), ((4, 0, R), (4, 99, R))],
           ppts_s=[((-3, 99, R), (-3, 99, R)), ((-2, 99, R), (-2, 99, R)), ((1, 99, R), (1, 99, R)), ((3, 99, R), (3, 99, R)), ((4, 99, R), (4, 99, R))],
           hper_at={4: 1, 5: 1},
           hmax={-2: 5, -1: 12, 0: 20, 1: 28, 2: 36, 3: 40, 4: 56})
def emit(variants):
    for k, v in variants.items():
        open(k + ".s", "w").write(build(dict(v)))
        open(k + "_lt.s", "w").write(build(dict(v, lite=True)))
NB = dict(DEF, sp=[0, 1], al=[2, 3, 4, 5, 6, 7], bgroups=[],
          sched={("W", 1): -1, ("X", 1): -1, ("W", 2): 0, ("W", 3): 0, ("W", 4): 1, ("X", 2): 1, ("W", 5): 2, ("W", 6): 3, ("X", 3): 3, ("W", 7): 4, ("X", 4): 5, ("X", 5): 6},
          dblk=[3, 8, 9, 4, 5, 6, 7, 1, 2, 0],
          dsched={0: 6, 1: 7, 2: 8, 3: 9, 4: 10, 5: 11, 6: 12, 7: -2, 8: -1, 9: 0, 10: 1, 11: 1, 12: 2, 13: 2},
          stage={9: 13, 10: 14, 11: 15, 12: 16, 13: 17},
          prio=(1, 0), prio_at={}, tag_pts=((8, 99), (9, 99)),
          flag_pts={1: (14, 0), 3: (17, 0), 5: (0, 0, R), 6: (2, 0, R), 7: (3, 0, R)},
          ppts=[((-4, 0, R), (-3, 99, R)), ((-2, 99, R), (-1, 99, R)), ((1, 0, R), (1, 99, R)), ((3, 0, R), (3, 99, R)), ((4, 0, R), (4, 99, R))],
          eon_at={16: 6, 17: 6, 18: 6, 19: 6}, eon2=6)
NC = dict(NB, flag_pts={1: (13, 0), 3: (16, 0), 5: (-1, 0, R), 6: (1, 0, R), 7: (3, 0, R)},
          ppts=[((-4, 0, R), (-3, 99, R)), ((-2, 99, R), (-1, 99, R)), ((0, 99, R), (1, 99, R)), ((2, 99, R), (3, 99, R)), ((4, 0, R), (4, 99, R))])
ND = dict(NC, dsched={0: 8, 1: 9, 2: 10, 3: 11, 4: 12, 5: 13, 6: 14, 7: -2, 8: -1, 9: 0, 10: 1, 11: 1, 12: 2, 13: 2}, stage={9: 15, 10: 16, 11: 17, 12: 14, 13: 16})
if __name__ == "__main__":
    emit({"v12": NC, "v13": ND, "v13a": dict(ND, stage={9: 15, 10: 16, 11: 17}, dsched={**ND["dsched"], 13: 3}), "v13h": dict(ND, sh1=16)})
```

```python
import sys, struct, math, re
from common import *
from gen3 import Stream, f2u, C0, C1, isize

BLK = 16384
FO = 8 << 20
FSZ = 897 * 128
HSTR = 112
WR = 0
ACC = [128, 144, 160, 176, 192]
POOL = 208; NPOOL = 6
TMP = 232
XA = 240
WA = 244
L16 = 245
CC0 = 246
DA = 247
VOUT, VEX = 249, 250
LT = 252
VX = 192
PR = 196
VW = 200
VD = 176
VF, VF2, TAG, FV = 180, 181, 182, 183
HOLDR = VE_A = VE_B = -1000
T1, T2, T3, LANE, T4, T5 = TMP, TMP + 1, TMP + 2, TMP + 3, TMP + 4, TMP + 5
SX, SW, SD, SH, SF = 40, 44, 48, 52, 56
TB = 60
HS = 76

def build(cfg):
    SH1 = cfg.get("sh1", 32)
    MUL = 2 if SH1 == 16 else 1
    XROT = cfg.get("xrot", 0)
    SH2 = cfg.get("sh2", 32)
    MUL2 = 2 if SH2 == 16 else 1
    lite = cfg.get("lite", False)
    bgroups = cfg["bgroups"]
    SP = cfg["sp"]
    AL = cfg["al"]
    assert sorted(SP + AL + [g for g, _ in bgroups]) == list(range(8))
    P2 = 8 + 2 * len(AL); LAST = P2 + 6; NST = LAST + 1
    NS = len(SP); NA = NS + 1; XS = 2 * NS
    NX = XS + 2 * len(AL)
    groups = {0: SP + AL, 1: [g for g, _ in bgroups]}
    accof = {g: i % NA for S_ in (0, 1) for i, g in enumerate(groups[S_])}
    A2 = [ACC[(len(groups[0])) % NA], ACC[(len(groups[0]) + 1) % NA]]
    RED = ACC[(len(groups[0]) + 2) % NA]
    ES = cfg.get("es", 99)
    XR = cfg.get("xring", 3)
    vstep = lambda t: t - 1 if t >= ES else t
    blk = {("X", j): j % XR for j in range(NX)}
    blk.update({("W", i): 4 + i % 4 for i in range(8)})
    blk.update({("Y", j): 8 + j % 2 for j in range(2 * len(bgroups))})
    blk.update(cfg.get("blk", {}))
    dorder = cfg.get("dblk", [3, 4, 5, 6, 7, 8, 9, (NX - 3) % 3, (NX - 2) % 3, (NX - 1) % 3])
    blk.update({("D", j): dorder[j % 10] for j in range(14)})
    off = cfg.get("off", {})
    gend = {g: 8 for g in SP}
    gend.update({g: 10 + 2*n for n, g in enumerate(AL)})
    eowner = lambda g: 1 if (g in off or g in groups[1]) else 0
    baccof = {g: i % 3 for i, g in enumerate(sorted(off, key=lambda g: (gend[g], g)))}
    plan = {s: [] for s in range(-1, NST)}
    sched = dict(cfg["sched"])
    for j in range(XS, NX): sched.setdefault(("X", j), j - XS + 9 - XR)
    for j, s in cfg["dsched"].items(): sched[("D", j)] = s + (P2 if j >= 7 else 0)
    for k in "WXYD":
        for it in sorted(x for x in sched if x[0] == k): plan[sched[it]].append(it)
    def first_use(it):
        k, i = it
        if k == "W": return i
        if k == "X": return (i * 8 // XS) if i < XS else i - XS + 8
        if k == "Y": return min(bgroups[i // 2][1][4*(i % 2):4*(i % 2) + 4])
        return P2 + min(i, 10) // 2
    def last_use(it):
        k, i = it
        if k == "Y": return max(bgroups[i // 2][1][4*(i % 2):4*(i % 2) + 4])
        return first_use(it) + (1 if k == "X" and i < XS and NS == 2 else 0)
    nobar = set(P2 + x for x in cfg.get("nobar2", ())) | set(cfg.get("nobar", ()))
    def prev_bar(s):
        while s in nobar: s -= 1
        return s
    def next_bar(s):
        s += 1
        while s in nobar: s += 1
        return s
    occ = {0: ("X", 0), 4: ("W", 0)}
    lu = lambda it: (gend[it[1]] + 1 if it[0] == "E" else last_use(it))
    for s in range(-1, NST):
        for it in plan[s] + [("E", g) for g in off if gend[g] == s]:
            b = off[it[1]] if it[0] == "E" else blk[it]
            if b in occ: assert lu(occ[b]) < prev_bar(s), (it, s, occ[b])
            if it[0] == "E": assert s + 1 not in nobar
            else: assert next_bar(s) <= vstep(first_use(it)), it
            occ[b] = it
    assert set(sched) | {("X", 0), ("W", 0)} == set(blk), set(blk) - set(sched)
    XJ = max(j for j in range(4, 10) if first_use(("D", j)) < prev_bar(LAST))
    rel = lambda p: (p[0] + P2 if len(p) > 2 else p[0], p[1])
    flag_pts = {g: rel(p) for g, p in cfg["flag_pts"].items()}
    stage = cfg.get("stage", {})
    sreg = {j: 16 * n for n, j in enumerate(sorted(stage))}
    hmax = {P2 + s: v for s, v in cfg["hmax"].items()}
    pg = cfg["pgroups"]

    touch = {"n": 0}
    def wave(isB, spare, var=0):
        S = Stream(cfg.get("align", 0))
        sfx = ("b" if isB else "a") + ("s" if spare else "r") + str(var)
        SET = 1 if isB else 0
        VE = VE_B if isB else VE_A
        issued = []
        cut = [None]
        if not spare:
            k = "W" if isB else "X"
            for q in range(4): S.add("", vm=(k, 0, q))
            issued.append((k, 0))
        else:
            S(f"v_and_b32 v{LANE}, 63, v0")
            S("s_waitcnt lgkmcnt(0)")
        S("s_lshl_b32 s33, s21, 12")
        S(f"v_lshlrev_b32 v{L16}, 4, v{LANE}")
        S("s_lshr_b32 s23, s21, 1\ns_and_b32 s22, s21, 1")
        if cfg.get("qx", 1):
            S("s_add_u32 s34, s34, s14\ns_sub_u32 s32, s34, 7\ns_min_u32 s34, s34, s32")
        if cfg.get("codepf", True) and not isB:
            S(f"s_getpc_b64 s[{SH}:{SH+1}]")
            S(f"L_pc{sfx}:")
            S(f"s_sub_u32 s{SH}, s{SH}, L_pc{sfx}-{KNAME}")
            S(f"s_subb_u32 s{SH+1}, s{SH+1}, 0")
            S(f"s_mov_b32 s{SH+2}, L_codeend-{KNAME}")
            S(f"s_mov_b32 s{SH+3}, 0x20000")
            S("s_lshl2_add_u32 s32, s15, s21\ns_lshl_b32 s32, s32, 10")
            S.add(f"buffer_load_dwordx4 v[{PR}:{PR+3}], v{L16}, s[{SH}:{SH+3}], s32 offen", vm="pf")
        gexp = lambda p, r: (f"s_lshl1_add_u32 s{r}, s84, {p}\ns_and_b32 s{r}, s{r}, 7" if p < 6 else f"s_and_b32 s{r}, s{p-6}, 7")
        def item_ops(it):
            k, i = it
            su = ""
            if k == "X" and i < XS and NS == 4:
                su = f"s_bfe_u32 s32, s36, {0x30000 + 4*i:#x}\ns_lshl_b32 s32, s32, 7\ns_add_u32 s32, s32, s3"
                v, srd, so = VX, SX, 32
            elif k == "X" and i < XS:
                su = f"s_bfe_u32 s32, s87, {0x30000 + 8*i:#x}\ns_lshl_b32 s32, s32, 7\ns_add_u32 s32, s32, s3"
                v, srd, so = VX, SX, 32
            elif k in "XY":
                p = AL[(i - XS) // 2] if k == "X" else bgroups[i // 2][0]
                su = gexp(p, 32) + f"\ns_lshl_b32 s32, s32, 15\ns_add_u32 s32, s32, s{93 + i % 2}"
                v, srd, so = VX, SX, 32
            elif k == "W":
                su = f"s_bfe_u32 s32, s36, {0x30000 + 4*i:#x}\ns_mul_i32 s32, s32, {64*3584}\ns_add_u32 s32, s32, s38"
                v, srd, so = VW, SW, 32
            else:
                su = "s_nop 0"
                v, srd, so = VD, SD, TB + i
            su = f"s_add_u32 m0, s33, {blk[it]*BLK}\n" + su
            return su, [(f"buffer_load_dwordx4 v{v+q}, s[{srd}:{srd+3}], s{so} offen offset:{1024*q} lds", (k, i, q)) for q in range(4)]
        def item(it):
            su, dm = item_ops(it)
            S(su)
            for t, tag in dm: S.add(t, vm=tag)
            issued.append(it)
        if isB:
            S(f"s_add_u32 s{SF}, s30, {FO}\ns_addc_u32 s{SF+1}, s31, 0\ns_mov_b32 s{SF+2}, {FSZ}\ns_mov_b32 s{SF+3}, 0x20000")
            S(f"v_lshlrev_b32 v{VF}, 20, v{LANE}")
            S("s_mov_b32 s74, s28\ns_mov_b32 s75, s29")
        if spare and isB:
            S("s_cmp_eq_u32 s2, 224\ns_cselect_b32 s32, s21, 0\ns_cmp_eq_u32 s32, 1")
            S("s_cbranch_scc0 L_notag")
            S("s_mov_b32 s88, s28\ns_mov_b32 s89, s29\ns_mov_b32 s90, 256\ns_mov_b32 s91, 0x20000")
            S(f"s_mov_b32 s32, {FSZ-128}")
            S(f"buffer_load_dword v{PR}, v{VF}, s[{SF}:{SF+3}], s32 offen sc1")
            S(f"v_mov_b32 v{PR+1}, 1")
            S("s_waitcnt vmcnt(0)")
            S(f"v_add_u32 v{PR}, 1, v{PR}")
            S(f"buffer_store_dwordx2 v[{PR}:{PR+1}], v{VF}, s[88:91], 0 offen sc1")
            S(f"buffer_store_dword v{PR}, v{VF}, s[{SF}:{SF+3}], s32 offen sc1")
            S("L_notag:")
            S("s_barrier")
        if not spare:
            S(("s_bfe_u32 s32, s15, 0x10002" if XROT else "s_bfe_u32 s32, s17, 0x10002") + "\ns_lshl1_add_u32 s0, s84, s32\ns_add_u32 s0, s0, 6\ns_xor_b32 s1, s0, 1")
            for hf in range(2):
                S(f"s_lshl2_add_u32 s32, s21, {16*hf}\ns_lshr_b32 s32, s36, s32\ns_and_b32 s32, s32, 7\ns_lshl_b32 s32, s32, 7\ns_add_u32 s{93+hf}, s32, s39")
            S("s_lshl_b32 s32, s23, 2\ns_lshr_b32 s87, s36, s32")
            if isB:
                for q in range(4): S(f"v_mov_b32 v{VW+q}, v{VX+q}")
                S(f"s_mov_b32 s{SW}, s{SX}\ns_mov_b32 s{SW+1}, s{SX+1}\ns_mov_b32 s{SW+2}, 1835008\ns_mov_b32 s{SW+3}, 0x20000")
                S("s_mov_b32 s38, s37")
                S(f"s_mov_b32 s{SX}, s4\ns_mov_b32 s{SX+1}, s5\ns_mov_b32 s{SX+2}, 0x200000")
                S(f"v_lshrrev_b32 v{T1}, 3, v{LANE}\nv_lshrrev_b32 v{T2}, 4, v{LANE}")
                S(f"v_xor_b32 v{T3}, v{T2}, v{LANE}\nv_and_b32 v{T3}, 7, v{T3}\nv_lshlrev_b32 v{T1}, 10, v{T1}")
                S(f"v_lshl_add_u32 v{VX}, v{T3}, 4, v{T1}")
                S(f"v_xor_b32 v{VX+1}, 64, v{VX}")
                S(f"v_add_u32 v{VX+1}, {7*1024}, v{VX+1}")
                S(f"v_add_u32 v{VX+2}, {14*1024}, v{VX}")
                S(f"v_add_u32 v{VX+3}, {14*1024}, v{VX+1}")
            if SH1 == 32:
                S(f"v_and_b32 v{T1}, 31, v{LANE}")
                S(f"v_bfe_u32 v{T2}, v{LANE}, 1, 3")
                S(f"v_lshrrev_b32 v{T3}, 5, v{LANE}")
                S(f"v_xor_b32 v{T2}, v{T2}, v{T3}")
                S(f"v_lshlrev_b32 v{T1}, 7, v{T1}")
                if isB: S(f"v_add_u32 v{T1}, {8*BLK:#x}, v{T1}")
                for ks in range(4):
                    S(f"v_xor_b32 v{T3}, {2*ks}, v{T2}")
                    S(f"v_lshl_add_u32 v{XA+ks}, v{T3}, 4, v{T1}")
                S(f"v_lshrrev_b32 v{T1}, 5, v{LANE}")
                S(f"v_lshlrev_b32 v{T1}, 3, v{T1}")
                S(f"v_bfe_u32 v{T2}, v{LANE}, 2, 2")
                S(f"v_add_u32 v{T1}, v{T1}, v{T2}")
                S(f"v_lshlrev_b32 v{T1}, 7, v{T1}")
                S(f"v_bfe_u32 v{T2}, v{LANE}, 4, 1")
                S(f"v_lshl_add_u32 v{T1}, v{T2}, 13, v{T1}")
                S(f"v_bfe_u32 v{T3}, v{LANE}, 3, 1")
                S(f"v_lshl_add_u32 v{T2}, v{T3}, 1, v{T2}")
                S(f"v_xor_b32 v{T2}, s21, v{T2}")
                S(f"v_lshl_add_u32 v{T1}, v{T2}, 5, v{T1}")
                S(f"v_and_b32 v{T2}, 1, v{LANE}")
                S(f"v_lshl_add_u32 v{T1}, v{T2}, 4, v{T1}")
                S(f"v_bfe_u32 v{T2}, v{LANE}, 1, 1")
                S(f"v_lshl_add_u32 v{T1}, v{T2}, 3, v{T1}")
                S(f"v_add_u32 v{WA}, 0x10000, v{T1}")
            else:
                S(f"v_and_b32 v{T1}, 15, v{LANE}")
                S(f"v_bfe_u32 v{T2}, v{LANE}, 1, 3")
                S(f"v_lshrrev_b32 v{T3}, 4, v{LANE}")
                S(f"v_xor_b32 v{T2}, v{T2}, v{T3}")
                S(f"v_lshlrev_b32 v{T1}, 7, v{T1}")
                if isB: S(f"v_add_u32 v{T1}, {8*BLK:#x}, v{T1}")
                S(f"v_lshl_add_u32 v{XA}, v{T2}, 4, v{T1}")
                S(f"v_xor_b32 v{XA+1}, 64, v{XA}")
                S(f"v_lshlrev_b32 v{T1}, 3, v{T3}")
                S(f"v_bfe_u32 v{T2}, v{LANE}, 2, 2")
                S(f"v_add_u32 v{T1}, v{T1}, v{T2}")
                S(f"v_lshlrev_b32 v{T1}, 7, v{T1}")
                S(f"v_bfe_u32 v{T2}, v{LANE}, 4, 1")
                S(f"v_bfe_u32 v{T3}, v{LANE}, 3, 1")
                S(f"v_lshl_add_u32 v{T2}, v{T3}, 1, v{T2}")
                S(f"v_xor_b32 v{T2}, s21, v{T2}")
                S(f"v_lshl_add_u32 v{T1}, v{T2}, 5, v{T1}")
                S(f"v_and_b32 v{T2}, 3, v{LANE}")
                S(f"v_lshl_add_u32 v{T1}, v{T2}, 3, v{T1}")
                S(f"v_add_u32 v{WA}, 0x10000, v{T1}")
            for it in plan[-1]:
                if (it[0] == "W") == isB: item(it)
            if cfg.get("defer", 1): cut[0] = len(S.ins)
            S(f"s_mov_b32 s32, {f2u(C0):#x}\ns_mov_b32 s12, {f2u(C1):#x}")
            S(f"v_mov_b32 v{CC0}, s32")
            S(f"s_lshl2_add_u32 s13, s17, s21\ns_mul_i32 s32, s16, {8*HSTR}\ns_add_u32 s13, s13, s32")
            if off: S(f"v_add_u32 v{VE}, s33, v{L16}\nv_add_u32 v{VE+1}, 0x10000, v{VE}\nv_add_u32 v{VE+2}, 0x20000, v{VE}")
            for g in range(8):
                if eowner(g) != SET: continue
                r = HS + g
                S(gexp(g, r) + f"\ns_mul_i32 s{r}, s{r}, {HSTR}\ns_add_u32 s{r}, s{r}, s13\ns_lshl_b32 s{r}, s{r}, 10")
            if isB:
                S("s_mul_i32 s92, s16, 14336\ns_lshl_b32 s32, s17, 7\ns_add_u32 s92, s92, s32\ns_lshl2_add_u32 s92, s21, s92")
                S(f"v_lshrrev_b32 v{T1}, 1, v{LANE}\nv_lshl_add_u32 v{VF2}, v{T1}, 20, v{L16}")
        if not isB and not spare:
            for n_, ev in enumerate(sorted(set(cfg.get("aflag", {}).values()))):
                r = 4 + n_
                S(f"s_add_u32 s{r}, s17, {ev//2}\ns_and_b32 s{r}, s{r}, 3\ns_mul_i32 s{r}, s{r}, 3584\ns_add_u32 s{r}, s{r}, s92")
                if ev >= 6: S(f"s_and_b32 s32, s{ev-6}, 1\ns_lshl4_add_u32 s{r}, s32, s{r}")
        if isB or spare:
            S(f"s_mov_b32 s{SD}, s10\ns_mov_b32 s{SD+1}, s11\ns_mov_b32 s{SD+2}, {0 if cfg.get('nod') else 1835008}\ns_mov_b32 s{SD+3}, 0x20000")
        if isB:
            S(f"v_bfe_u32 v{T3}, v{LANE}, 4, 1\nv_lshlrev_b32 v{T3}, 2, v{T3}\nv_xor_b32 v{T3}, v{T3}, v{LANE}\nv_and_b32 v{T3}, 7, v{T3}")
            S(f"v_lshrrev_b32 v{T1}, 3, v{LANE}\nv_lshlrev_b32 v{T1}, 10, v{T1}")
            S(f"v_lshl_add_u32 v{VD}, v{T3}, 4, v{T1}")
            if SH2 == 32:
                for q in range(1, 4): S(f"v_add_u32 v{VD+q}, {q*7*1024}, v{VD}")
            else:
                S(f"v_xor_b32 v{VD+1}, 32, v{VD}\nv_add_u32 v{VD+1}, {7*1024}, v{VD+1}\nv_add_u32 v{VD+2}, {14*1024}, v{VD}\nv_add_u32 v{VD+3}, {14*1024}, v{VD+1}")
        S(f"v_and_b32 v{T1}, 15, v{LANE}")
        S("s_lshl_b32 s32, s22, 1\ns_xor_b32 s32, s32, 2")
        S(f"v_subrev_u32 v{T2}, 10, v{T1}\nv_xor_b32 v{T2}, s32, v{T2}\nv_add_u32 v{T2}, 10, v{T2}")
        S(f"v_cmp_le_u32 vcc, 26, v{LANE}")
        S("s_nop 1")
        S(f"v_cndmask_b32 v{T1}, v{T1}, v{T2}, vcc")
        S(f"v_lshl_add_u32 v{T1}, v{T1}, 1, s23")
        S(f"v_mul_u32_u24 v{T2}, 37, v{T1}\nv_lshrrev_b32 v{T2}, 8, v{T2}")
        S(f"v_mul_u32_u24 v{T3}, 7, v{T2}\nv_sub_u32 v{T3}, v{T1}, v{T3}")
        S(f"v_add_u32 v{T3}, s34, v{T3}")
        S(f"v_subrev_u32 v{T4}, 7, v{T3}\nv_min_u32 v{T4}, v{T3}, v{T4}")
        S(f"v_mul_u32_u24 v{T5}, 86, v{T3}\nv_lshrrev_b32 v{T5}, 8, v{T5}\nv_mul_u32_u24 v{T5}, 3, v{T5}\nv_sub_u32 v{T5}, v{T3}, v{T5}")
        S(f"v_lshl_add_u32 v{T5}, v{T5}, 1, 1")
        S(f"v_cmp_le_u32 vcc, 21, v{T1}")
        S(f"v_and_b32 v{T3}, 3, v{T3}\nv_lshlrev_b32 v{T3}, 1, v{T3}")
        S(f"v_cndmask_b32 v{T4}, v{T4}, v{T5}, vcc")
        S(f"v_cmp_le_u32 vcc, 24, v{T1}")
        S(f"v_sub_u32 v{T2}, s35, v{T2}\nv_and_b32 v{T2}, 3, v{T2}")
        S(f"v_cndmask_b32 v{T4}, v{T4}, v{T3}, vcc")
        S(f"v_mad_u32_u24 v{T1}, v{T2}, 7, v{T4}" if XROT else f"v_lshl_add_u32 v{T1}, v{T4}, 2, v{T2}")
        S("s_lshl_b32 s95, s19, 7")
        if isB:
            S("s_lshl_b32 s32, s22, 15\ns_add_u32 s32, s32, s95")
            S(f"v_lshl_add_u32 v{T2}, v{T1}, 16, s32")
            S("s_mul_i32 s32, s18, 3584\ns_lshl4_add_u32 s32, s22, s32")
            S(f"v_lshl_add_u32 v{FV}, v{T1}, 7, s32")
            for j in range(14): S(f"v_readlane_b32 s{TB+j}, v{T2}, {j}")
        else:
            S(f"s_lshl1_add_u32 s32, s18, s22\ns_mul_i32 s32, s32, {HSTR*1024}")
            if cfg.get("hfake"):
                S(f"s_lshl1_add_u32 s32, s35, s22\ns_mul_i32 s32, s32, {HSTR*1024}\ns_and_b32 s84, s14, 1\ns_lshl_b32 s84, s84, 20\ns_add_u32 s32, s32, s84")
                S("s_mov_b32 s84, s4\ns_mov_b32 s85, s5\ns_mov_b32 s86, 0x200000\ns_mov_b32 s87, 0x20000")
            S(f"v_lshl_add_u32 v{T2}, v{T1}, 12, s32")
            S(f"v_lshrrev_b32 v{T1}, 5, v{LANE}")
            for j in range(14): S(f"v_readlane_b32 s{TB+j}, v{T2}, {16+j}")
            if SH2 == 32:
                S(f"v_lshlrev_b32 v{T1}, 3, v{T1}")
                S(f"v_bfe_u32 v{T2}, v{LANE}, 2, 2")
                S(f"v_add_u32 v{T1}, v{T1}, v{T2}")
                S(f"v_lshlrev_b32 v{T1}, 7, v{T1}")
                S(f"v_bfe_u32 v{T2}, v{LANE}, 3, 1")
                S(f"v_lshl_add_u32 v{T1}, v{T2}, 6, v{T1}")
                S(f"v_bfe_u32 v{T2}, v{LANE}, 4, 1")
                S(f"v_lshl_add_u32 v{T1}, v{T2}, 5, v{T1}")
                S(f"v_and_b32 v{T2}, 1, v{LANE}")
                S(f"v_lshl_add_u32 v{T1}, v{T2}, 4, v{T1}")
                S(f"v_bfe_u32 v{T2}, v{LANE}, 1, 1")
                S(f"v_lshl_add_u32 v{T1}, v{T2}, 3, v{T1}")
                S(f"s_lshl_b32 s32, s23, 13\ns_add_u32 s32, s32, {blk[('D', 0)]*BLK}")
                S(f"v_add_u32 v{DA+1}, s32, v{T1}")
                S(f"s_lshl_b32 s32, s23, 6\nv_xor_b32 v{DA+1}, s32, v{DA+1}")
                S(f"v_xor_b32 v{DA}, 64, v{DA+1}")
                S("s_cmp_eq_u32 s22, 1")
                o1 = [blk[("D", 9)]] + [blk[("D", 10 + i)] for i in range(4)]
                o0 = [blk[("D", 9)]] + [blk[("D", 10 + (i ^ 2))] for i in range(4)]
                for i in range(4): S(f"s_cselect_b32 s{88+i}, {o1[i+1]-o1[i]}, {o0[i+1]-o0[i]}")
                for i in range(4): S(f"s_lshl_b32 s{88+i}, s{88+i}, 14")
            else:
                S(f"v_lshrrev_b32 v{T1}, 4, v{LANE}\nv_lshlrev_b32 v{T1}, 3, v{T1}")
                S(f"v_bfe_u32 v{T2}, v{LANE}, 2, 2")
                S(f"v_add_u32 v{T1}, v{T1}, v{T2}")
                S(f"v_lshlrev_b32 v{T1}, 7, v{T1}")
                S(f"v_bfe_u32 v{T2}, v{LANE}, 3, 1")
                S(f"v_lshl_add_u32 v{T1}, v{T2}, 6, v{T1}")
                S(f"v_bfe_u32 v{T2}, v{LANE}, 4, 1")
                S(f"v_lshl_add_u32 v{T1}, v{T2}, 5, v{T1}")
                S(f"v_and_b32 v{T2}, 3, v{LANE}")
                S(f"v_lshl_add_u32 v{T1}, v{T2}, 3, v{T1}")
                S(f"s_lshl_b32 s32, s23, 13\ns_add_u32 s32, s32, {blk[('D', 0)]*BLK}")
                S(f"v_add_u32 v{DA+2}, s32, v{T1}")
                S(f"s_lshl_b32 s32, s23, 6\nv_xor_b32 v{DA+2}, s32, v{DA+2}")
                S(f"v_xor_b32 v{DA+3}, 32, v{DA+2}\nv_xor_b32 v{DA}, 64, v{DA+2}\nv_xor_b32 v{DA+1}, 64, v{DA+3}")
                S(f"v_lshrrev_b32 v{T1}, 4, v{LANE}\nv_lshlrev_b32 v{T1}, 9, v{T1}\nv_and_b32 v{T2}, 0xf0, v{L16}\nv_add_u32 v{DA+4}, v{T1}, v{T2}")
                S("s_cmp_eq_u32 s22, 1")
                o1 = [blk[("D", 9)]] + [blk[("D", 10 + i)] for i in range(4)]
                o0 = [blk[("D", 9)]] + [blk[("D", 10 + (i ^ 2))] for i in range(4)]
                for i in range(4): S(f"s_cselect_b32 s{88+i}, {o1[i+1]-o1[i]}, {o0[i+1]-o0[i]}")
                for i in range(4): S(f"s_lshl_b32 s{88+i}, s{88+i}, 14")
            S(f"s_mov_b32 s{SW}, s26\ns_mov_b32 s{SW+1}, s27\ns_mov_b32 s{SW+2}, 0x200000\ns_mov_b32 s{SW+3}, 0x20000")
            S(f"v_and_b32 v{T1}, 31, v{LANE}\nv_lshlrev_b32 v{T1}, 10, v{T1}\nv_lshrrev_b32 v{T2}, 5, v{LANE}\nv_lshl_add_u32 v{VOUT}, v{T2}, 4, v{T1}")
            S("s_lshl_b32 s32, s18, 16\ns_add_u32 s95, s95, s32\ns_lshl_b32 s32, s22, 15\ns_add_u32 s95, s95, s32\ns_lshl_b32 s32, s23, 6\ns_add_u32 s95, s95, s32")
            S(f"s_add_u32 s32, s33, {blk[('D', XJ)]*BLK}\nv_add_u32 v{VEX}, s32, v{L16}\nv_xor_b32 v{VEX+1}, 0x2000, v{VEX}")
        S(f"s_mov_b32 s{SH}, s30\ns_mov_b32 s{SH+1}, s31\ns_mov_b32 s{SH+2}, {0 if cfg.get('noh') else 64*HSTR*1024}\ns_mov_b32 s{SH+3}, 0x20000")
        lateq = []
        if cut[0] is not None:
            lateq = [re.sub(r"\bs32\b", "s85", i["t"]) for i in S.ins[cut[0]:]]
            del S.ins[cut[0]:]
        def late(n):
            while lateq and n > 0:
                S(lateq.pop(0)); n -= 1
            while lateq and lateq[0].startswith(("s_cselect", "s_addc", "v_cndmask", "s_nop", "v_readlane")):
                S(lateq.pop(0))
        if lite and not isB: S(f"v_mov_b32 v{LT}, 0\nv_mov_b32 v{LT+1}, 0\nv_mov_b32 v{LT+2}, 0")
        myplan = {s: [] for s in range(NST)}
        def c3x():
            S(f"s_mov_b32 s{SX}, s4\ns_mov_b32 s{SX+1}, s5\ns_mov_b32 s{SX+2}, 0x200000\ns_mov_b32 s{SX+3}, 0x20000")
            S(f"v_lshrrev_b32 v{T1}, 3, v{LANE}\nv_lshlrev_b32 v{T1}, 10, v{T1}\nv_and_b32 v{T2}, 0x70, v{L16}\nv_add_u32 v{T1}, v{T1}, v{T2}")
            S("s_lshl2_add_u32 s32, s16, s21\ns_lshl_b32 s32, s32, 16\ns_add_u32 s32, s32, 384")
            for i in range(8):
                S.add(f"buffer_load_dwordx4 v[{64+4*i}:{67+4*i}], v{T1}, s[{SX}:{SX+3}], s32 offen", vm=("c3x", i))
                S("s_add_u32 s32, s32, 8192")
        def c3w():
            S("s_cmp_eq_u32 s22, 0")
            S(f"s_cselect_b32 s{SX}, s6, s8\ns_cselect_b32 s{SX+1}, s7, s9\ns_mov_b32 s{SX+2}, 1835008\ns_mov_b32 s{SX+3}, 0x20000")
            S(f"v_min_u32 v{T1}, 880, v{L16}")
            S("s_lshl1_add_u32 s32, s35, s23\ns_lshl_b32 s32, s32, 3\ns_add_u32 s32, s32, 192\ns_mul_i32 s32, s32, 3584\ns_lshr_b32 s96, s14, 1\ns_mul_i32 s96, s96, 896\ns_add_u32 s32, s32, s96")
            for i in range(8):
                S.add(f"buffer_load_dwordx4 v[{128+4*i}:{131+4*i}], v{T1}, s[{SX}:{SX+3}], s32 offen", vm=("c3w", i))
                S("s_add_u32 s32, s32, 3584")
        def c3p():
            S(f"s_mov_b32 s{SX}, s4\ns_mov_b32 s{SX+1}, s5\ns_mov_b32 s{SX+2}, 0x200000\ns_mov_b32 s{SX+3}, 0x20000")
            S(f"v_lshrrev_b32 v{T1}, 3, v{LANE}\nv_lshlrev_b32 v{T1}, 10, v{T1}\nv_and_b32 v{T2}, 0x70, v{L16}\nv_add_u32 v{T1}, v{T1}, v{T2}")
            for pp in range(NS // 2):
                S(f"s_add_u32 s32, s84, {pp}\ns_and_b32 s32, s32, 3\ns_lshl2_add_u32 s32, s16, s32\ns_lshl2_add_u32 s32, s32, s21\ns_lshl_b32 s32, s32, 14\ns_add_u32 s32, s32, 384")
                for i in range(2):
                    S.add(f"buffer_load_dwordx4 v[{160+8*pp+4*i}:{163+8*pp+4*i}], v{T1}, s[{SX}:{SX+3}], s32 offen", vm=("c3p", pp, i))
                    S("s_add_u32 s32, s32, 8192")
        def xpair(n_):
            S(f"s_mov_b32 s{SX}, s4\ns_mov_b32 s{SX+1}, s5\ns_mov_b32 s{SX+2}, 0x200000\ns_mov_b32 s{SX+3}, 0x20000")
            S(f"s_add_u32 s32, s84, {n_}\ns_and_b32 s32, s32, 3\ns_lshl2_add_u32 s32, s16, s32\ns_lshl_b32 s32, s32, 16\ns_lshl_b32 s96, s21, 12\ns_add_u32 s32, s32, s96")
            for i in range(16):
                if i and i % 4 == 0: S("s_add_u32 s32, s32, 16384")
                S.add(f"buffer_load_dwordx4 v[{64+4*i}:{67+4*i}], v{L16}, s[{SX}:{SX+3}], s32 offen offset:{(i%4)*1024}", vm=("xp", n_, i), need_vm=([("xp", n_-1, i)] if str(n_-1) in cfg["spare_order"] else []))
        def warm():
            S("s_sub_u32 s32, s2, 224\ns_lshl2_add_u32 s32, s32, s21\ns_mul_i32 s32, s32, 14336")
            for i in range(14):
                if i and i % 4 == 0: S("s_add_u32 s32, s32, 4096")
                S.add(f"buffer_load_dwordx4 v[{4*i}:{4*i+3}], v{L16}, s[{SD}:{SD+3}], s32 offen offset:{(i%4)*1024}", vm=("wm", i))
        if spare:
            if isB:
                S("s_barrier")
                for j in range(10): item(("D", j))
                for j in range(10, 14): myplan[sched[("D", j)]].append(("D", j))
            else:
                S("s_barrier")
                for f in cfg.get("spare_order", "wxm"): {"w": c3w, "x": c3x, "m": warm, "p": c3p, "1": lambda: xpair(1), "2": lambda: xpair(2), "3": lambda: xpair(3), "b": lambda: S("s_barrier")}[f]()
                S.add("" if "b" in cfg.get("spare_order", "wxm") else "s_barrier", need_vm=["ALL"])
        elif isB:
            myplan = {s: plan[s] for s in range(NST)}

        M = []
        pooln = [0]
        def pool():
            r = POOL + 4 * (pooln[0] % NPOOL); pooln[0] += 1; return r
        def wreads(i):
            wo = (blk[("W", i)] - 4) * BLK
            out = {}
            for sl in range(4):
                slot = 4*i + sl; wreg = WR + 4*slot
                off = wo + sl*2048 if SH1 == 32 else wo + (sl % 2)*8192 + (sl // 2)*4096
                out[slot] = [(("w", slot, j), f"ds_read_b64_tr_b16 v[{wreg+2*j}:{wreg+2*j+1}], v{WA} offset:{off + j*512}") for j in range(2)]
            return out
        def p1(step, i, g, xo, readw):
            a = ACC[accof[g]]
            wr = wreads(i) if readw else {}
            lastg = (g == groups[SET][-1])
            res = []
            if SH1 == 32:
                for ks in range(4):
                    slot = 4*i + ks
                    res.append([dict(step=step, d=a, n=16, A=WR + 4*slot, rd=wr.get(slot, []), xrd=(("x", g, slot), f"v{XA+ks} offset:{xo}"),
                                     first=(slot == 0), last=(slot == 31), g=g, wdead=(slot if lastg else None), slot=slot)])
            else:
                for k2 in range(2):
                    sub_l = []
                    for sub in range(2):
                        for mat in range(2):
                            slot = 4*i + 2*k2 + mat
                            sub_l.append(dict(step=step, d=a + 8*mat + 4*sub, n=4, A=WR + 4*slot, rd=(wr.get(slot, []) if sub == 0 else []),
                                              xrd=((("x", g, i, k2, sub), f"v{XA+k2} offset:{xo + sub*2048}") if mat == 0 else None),
                                              first=(i == 0 and k2 == 0), last=(i == 7 and k2 == 1 and sub == 1 and mat == 1), g=g,
                                              wdead=(slot if lastg and sub == 1 else None), slot=slot))
                    res.append(sub_l)
            return res
        def push(lst):
            for m in lst:
                if m["xrd"] is not None:
                    xr = pool(); push.cur = xr
                    m["rd"] = m["rd"] + [(m["xrd"][0], f"ds_read_b128 v[{xr}:{xr+3}], {m['xrd'][1]}")]
                    m["pool"] = 1
                else: m["pool"] = 0
                m["B"] = push.cur
                M.append(m)
        if not spare and not isB:
            for i in range(8):
                gs = [p1(i, i, g, (blk[("X", i // 2)]*BLK + (2*(i % 2) + u)*4096 if NS == 2 else blk[("X", i)]*BLK + u*4096), u == 0) for u, g in enumerate(SP)]
                for parts in zip(*gs):
                    for u in parts: push(u)
            for n_, g in enumerate(AL):
                for i in range(8):
                    for u in p1(8 + 2*n_ + i // 4, i, g, blk[("X", XS + 2*n_ + i // 4)]*BLK + (i % 4)*4096, False): push(u)
        if not spare and isB:
            for n_, (g, bs) in enumerate(bgroups):
                for i in range(8):
                    assert bs[i] >= i
                    for u in p1(bs[i], i, g, (blk[("Y", 2*n_ + i // 4)] - 8)*BLK + (i % 4)*4096, False): push(u)
        if not isB and SH2 == 16:
            for j in range(14):
                order = [(k2, i) for k2 in range(2) for i in range(4)] if j < 13 else [(k2, 2*t + jj) for t in range(2) for k2 in range(2) for jj in range(2)]
                seen = set()
                for k2, i in order:
                    r = pool()
                    rd = []
                    if j > 0 and i not in seen:
                        dl = f"s{88 + j - 10}" if j >= 10 else f"{((blk[('D', j)] - blk[('D', j-1)]) * BLK) & 0xffffffff:#x}"
                        rd.append((None, f"v_add_u32 v{DA+i}, {dl}, v{DA+i}"))
                    seen.add(i)
                    rd += [(("d", j, k2, i, jj), f"ds_read_b64_tr_b16 v[{r+2*jj}:{r+2*jj+1}], v{DA+i} offset:{k2*4096 + jj*512}") for jj in range(2)]
                    for sub in range(2):
                        n = 4*j + 2*k2 + sub
                        M.append(dict(step=P2 + j // 2, d=A2[i // 2] + 8*(i % 2) + 4*sub, n=4, A=r, B=WR + 4*(n % 32), first=(j == 0 and k2 == 0),
                                      rd=(rd if sub == 0 else []), h=n, hc=(n + 1 if i == 3 else 4*j + 2*k2), last=False, pool=(1 if sub == 0 else 0)))
        if not isB and SH2 == 32:
            for j in range(14):
                b = blk[("D", j)]
                order = [(ks, t) for ks in range(4) for t in range(2)] if j < 13 else [(ks, t) for t in range(2) for ks in range(4)]
                for ks, t in order:
                    n = 4*j + ks
                    r = pool()
                    rd = []
                    if j > 0 and ks == 0:
                        dl = f"s{88 + j - 10}" if j >= 10 else f"{((blk[('D', j)] - blk[('D', j-1)]) * BLK) & 0xffffffff:#x}"
                        rd.append((None, f"v_add_u32 v{DA+t}, {dl}, v{DA+t}"))
                    rd += [(("d", j, ks, t, jj), f"ds_read_b64_tr_b16 v[{r+2*jj}:{r+2*jj+1}], v{DA+t} offset:{ks*2048 + jj*512}") for jj in range(2)]
                    M.append(dict(step=P2 + j // 2, d=A2[t], n=16, A=r, B=WR + 4*(n % 32), first=(n == 0), rd=rd, h=n, t=t, last=False, pool=1))
        NM = len(M)
        cum = [0]
        for m in M: cum.append(cum[-1] + m["pool"])
        def epi(g):
            a = ACC[baccof[g] if (isB and g in off) else accof[g]]
            L = []
            if g in off and not isB:
                b = off[g]
                return [dict(text=f"ds_write_b128 v{VE + b // 4}, v[{a+4*i}:{a+4*i+3}] offset:{(b % 4)*BLK + 1024*i}", lds=("ew", g, i), vr=range(a+4*i, a+4*i+4), cost=99) for i in range(4)]
            T = lambda i: TMP + i
            idx = range(8)
            TC = cfg.get("tcost", 2)
            if cfg.get("mix", 0):
                nl = [("er", g, 3)] if g in off else []
                stg = lambda i: [dict(text=f"v_mul_f32 v{T(i)}, v{a+i}, v{a+i}", vr=[a+i], cost=1, nl=nl),
                                 dict(text=f"v_fma_f32 v{T(i)}, v{T(i)}, s12, v{CC0}", cost=1),
                                 dict(text=f"v_mul_f32 v{T(i)}, v{T(i)}, v{a+i}", cost=1),
                                 dict(text=f"v_exp_f32 v{T(i)}, v{T(i)}", cost=TC, trans=T(i)),
                                 dict(text=f"v_mul_f32 v{a+8+i}, v{a+i}, v{a+8+i}", vr=[a+8+i], cost=1),
                                 dict(text=f"v_add_f32 v{T(i)}, 1.0, v{T(i)}", vr=[T(i)], cost=1),
                                 dict(text=f"v_rcp_f32 v{T(i)}, v{T(i)}", cost=TC, trans=T(i)),
                                 dict(text=f"v_mul_f32 v{a+8+i}, v{a+8+i}, v{T(i)}", vr=[T(i)], cost=1)]
                al_ = {i: stg(i) for i in idx}
                o_ = HOLDR if g in cfg.get("hold", ()) else a
                if cfg.get("cvtspread", 1):
                    for i in range(1, 8, 2):
                        al_[i].append(None)
                        al_[i].append(dict(text=f"v_cvt_pk_bf16_f32 v{o_+i//2}, v{a+7+i}, v{a+8+i}", cost=cfg.get("ccost", 1), vw=[o_+i//2]))
                ops = sorted(((2*i + k_, i, k_) for i in idx for k_ in range(len(al_[i]))))
                L += [al_[i][k_] for _, i, k_ in ops if al_[i][k_] is not None]
                if cfg.get("noepi"): L = [dict(text="", cost=e_["cost"]) for e_ in L]
                idx = ()
            for i in idx: L.append(dict(text=f"v_mul_f32 v{T(i)}, v{a+i}, v{a+i}", vr=[a+i], cost=1, nl=([("er", g, 3)] if g in off else [])))
            for i in idx: L.append(dict(text=f"v_fma_f32 v{T(i)}, v{T(i)}, s12, v{CC0}", cost=1))
            for i in idx: L.append(dict(text=f"v_mul_f32 v{T(i)}, v{T(i)}, v{a+i}", cost=1))
            for i in idx:
                L.append(dict(text=f"v_exp_f32 v{T(i)}, v{T(i)}", cost=2, trans=T(i)))
                L.append(dict(text=f"v_mul_f32 v{a+8+i}, v{a+i}, v{a+8+i}", vr=[a+8+i], cost=1))
            for i in idx: L.append(dict(text=f"v_add_f32 v{T(i)}, 1.0, v{T(i)}", vr=[T(i)], cost=1))
            for i in idx: L.append(dict(text=f"v_rcp_f32 v{T(i)}, v{T(i)}", cost=2, trans=T(i)))
            for i in idx: L.append(dict(text=f"v_mul_f32 v{a+8+i}, v{a+8+i}, v{T(i)}", vr=[T(i)], cost=1))
            o = HOLDR if g in cfg.get("hold", ()) else a
            if not (cfg.get("mix", 0) and cfg.get("cvtspread", 1)):
                for i in range(4): L.append(dict(text=f"v_cvt_pk_bf16_f32 v{o+i}, v{a+8+2*i}, v{a+8+2*i+1}", cost=1, vw=[o+i]))
            if SH1 == 16:
                for i in range(2): L.append(dict(text=f"v_permlane16_swap_b32 v{o+i}, v{o+2+i}", cost=1, pr=[o+i, o+2+i]))
            L.append(dict(text=f"buffer_store_dwordx4 v[{o}:{o+3}], v{L16}, s[{SH}:{SH+3}], s{HS+g} offen sc1", vm=("st", g), cost=1))
            return L
        def put(e):
            if e.get("vm"):
                g = e["vm"][1]
                if g in hold:
                    assert not held; held.append((e, -100)); return
                for h_, _ in held: S.add(h_["text"], vm=h_["vm"])
                held.clear()
            S.add(e["text"], vm=e.get("vm"), lds=e.get("lds"), need_lds=e.get("nl", ()), vr=e.get("vr", ()), trans=e.get("trans"), vw=e.get("vw", ()), pr=e.get("pr", ()))
        aflag = cfg.get("aflag", {})
        hold = cfg.get("hold", ())
        held = []
        covers = lambda ev: (ev - 1, ev) if ev < 6 else (ev,)
        flagged = set()
        def flag(ev):
            nv = [("st", g) for g in covers(ev) if eowner(g) == 1]
            S(f"s_add_u32 s97, s84, {ev//2}\ns_and_b32 s97, s97, 3\ns_mul_i32 s97, s97, 3584\ns_add_u32 s97, s97, s92")
            if ev >= 6: S(f"s_and_b32 s13, s{ev-6}, 1\ns_lshl4_add_u32 s97, s13, s97")
            S.add(f"buffer_store_dword v{TAG}, v{VF2 if ev < 6 else VF}, s[{SF}:{SF+3}], s97 offen sc1", vm=("flag", ev), need_vm=nv)
            flagged.add(ev)
        def tag_issue():
            S("s_load_dwordx2 s[14:15], s[74:75], 0")
            if isB and cfg.get("swarm", 1): S(f"s_load_dword s4, s[{SF}:{SF+1}], {FSZ-64}")
        def tag_check():
            S("s_mov_b32 s97, 0")
            S.add("s_waitcnt lgkmcnt(0)", need_lds=["ALL"])
            S(f"L_tag{sfx}:")
            S("s_cmp_lg_u32 s15, 0")
            S(f"s_cbranch_scc1 L_tagok{sfx}")
            S("~s_add_u32 s97, s97, 1")
            S("~s_cmp_ge_u32 s97, 0x100000")
            S(f"~s_cbranch_scc1 L_tagok{sfx}")
            S("~s_sleep 2")
            S(f"~v_mov_b32 v{PR+2}, 0")
            S(f"~global_load_dwordx2 v[{PR}:{PR+1}], v{PR+2}, s[74:75] sc1")
            S("~s_waitcnt vmcnt(0)")
            S(f"~v_readfirstlane_b32 s14, v{PR}")
            S(f"~v_readfirstlane_b32 s15, v{PR+1}")
            S("~s_nop 1")
            S(f"~s_branch L_tag{sfx}")
            S(f"L_tagok{sfx}:")
            S(f"v_mov_b32 v{TAG}, s14")
            S("s_mov_b32 s15, s14")
        polling = [None]
        pmask = lambda c: (((1 << pg[c][1]) - 1) ^ ((1 << pg[c][0]) - 1)) << 16
        PD4 = (4, 8, 24, 28)
        def poll_loads(c, pre=""):
            for i in range(pg[c][1] - pg[c][0]):
                S(f"{pre}s_load_dwordx4 s[{PD4[i]}:{PD4[i]+3}], s[{SF}:{SF+1}], s{88+i} glc")
        def poll_issue(c):
            assert polling[0] is None; polling[0] = c
            for i, j in enumerate(range(*pg[c])): S(f"v_readlane_b32 s{88+i}, v{FV}, {16+j}")
            S.add("s_nop 3", need_lds=["ALL"])
            poll_loads(c)
        def poll_check(c):
            assert polling[0] == c; polling[0] = None
            prs = [r + d for r in PD4[:pg[c][1] - pg[c][0]] for d in (0, 2)]
            S("s_mov_b32 s96, 0")
            S(f"L_poll{sfx}{c}:")
            S.add("s_waitcnt lgkmcnt(0)", need_lds=["ALL"])
            for r in prs: S(f"s_xor_b64 s[{r}:{r+1}], s[{r}:{r+1}], s[14:15]")
            for r in prs[1:]: S(f"s_or_b64 s[4:5], s[4:5], s[{r}:{r+1}]")
            S(f"s_cbranch_scc0 L_ok{sfx}{c}")
            S("~s_add_u32 s96, s96, 1")
            S("~s_cmp_ge_u32 s96, 0x100000")
            S(f"~s_cbranch_scc1 L_ok{sfx}{c}")
            if spare: S(f"~s_sleep {8 if c == 0 else 2}")
            S("~s_and_b32 s4, s96, 63")
            S(f"~s_cbranch_scc1 L_sp{sfx}{c}")
            S(f"~s_mov_b64 exec, {pmask(c):#x}")
            S(f"~buffer_load_dwordx4 v[{PR}:{PR+3}], v{FV}, s[{SF}:{SF+3}], 0 offen sc1")
            S("~s_mov_b64 exec, -1")
            S("~s_waitcnt vmcnt(0)")
            S(f"~v_cmp_eq_u64 vcc, s[14:15], v[{PR}:{PR+1}]")
            S(f"~v_cmp_eq_u64_e64 s[4:5], s[14:15], v[{PR+2}:{PR+3}]")
            S("~s_nop 1")
            S("~s_and_b32 s4, s4, vcc_lo")
            S(f"~s_andn2_b32 s4, {pmask(c):#x}, s4")
            S(f"~s_cbranch_scc0 L_ok{sfx}{c}")
            S(f"L_sp{sfx}{c}:")
            poll_loads(c, "~")
            S(f"~s_branch L_poll{sfx}{c}")
            S(f"L_ok{sfx}{c}:")
        pts = [(rel(a), rel(b)) for a, b in (cfg["ppts_s"] if spare else cfg["ppts"])]
        def points(s, k):
            if not spare:
                if cfg["tag_pts"][0] == (s, k): tag_issue()
                if cfg["tag_pts"][1] == (s, k): tag_check()
                for ev, pt in flag_pts.items():
                    if pt == (s, k): flag(ev)
            for c, (pi, pc) in enumerate(pts):
                if pc == (s, k) and pi != pc: poll_check(c)
            for c, (pi, pc) in enumerate(pts):
                if pi == (s, k):
                    poll_issue(c)
                    if pi == pc: poll_check(c)

        first = P2 - 2 if spare else 0
        st = dict(rd=0, h=0, bar=first - 1, wdead=(32 if spare else 0), n=0, hcons=0, ok=0)
        epq = []; dmaq = []; lpend = []; wq = []
        def barrier():
            s = st["bar"] + 1
            assert not dmaq
            late(cfg.get("late_at", ({1: 70, 2: 40, 3: 0, 4: 50, 5: 999},) * 2)[SET].get(s, 0))
            nv = [(k, i, 3) for (k, i) in issued if vstep(first_use((k, i))) < next_bar(s)]
            drain = ["ALL"] if (isB or s < ES) else []
            if not spare and not isB:
                for ev, pt in flag_pts.items():
                    if s == prev_bar(pt[0]): nv += [("st", g) for g in covers(ev) if eowner(g) == 0]
            lt = lite and not isB
            if not isB and not spare and aflag and s == cfg["atag"][1]: tag_check()
            if s not in nobar:
                if lt:
                    S.add("s_waitcnt lgkmcnt(0)" if drain else "", need_lds=drain, need_vm=nv)
                    for (r, v, idx) in lpend: S(f"v_writelane_b32 v{v}, s{r}, {idx}")
                    lpend.clear()
                    S("s_memtime s[8:9]"); lpend.append((8, LT + 1, s + 1))
                S.add("s_barrier", need_lds=drain, need_vm=nv)
            if lt:
                r = [x for x in (98, 96, 6) if not any(y[0] == x for y in lpend)][0]
                S(f"s_memtime s[{r}:{r+1}]"); lpend.append((r, LT + 2, s + 1))
                if s not in nobar: S("s_memrealtime s[10:11]"); lpend.append((10, LT, s + 1))
            st["bar"] = s
            if not isB and not spare and aflag and s == cfg["atag"][0]: tag_issue()
            if isB and cfg.get("diag") == s: S("s_memrealtime s[98:99]\ns_waitcnt lgkmcnt(0)")
            for c, (pi, pc) in enumerate(pts):
                if s == next_bar(pc[0]): st["ok"] = max(st["ok"], pg[c][1])
            for it in myplan[s]:
                if it[0] == "D": assert not lateq
                if it[0] == "D" and it[1] in stage and not spare: continue
                su, dm = item_ops(it)
                dmaq.append((su, None, None))
                for k, (t, tag) in enumerate(dm): dmaq.append((t, tag, it if k == 3 else None))
            if isB and not spare:
                for j, ss in stage.items():
                    if ss == s:
                        assert st["n"] == NM, "W registers of set B still in use"
                        for q in range(4):
                            r = sreg[j] + 4*q
                            dmaq.append((f"buffer_load_dwordx4 v[{r}:{r+3}], v{VD+q}, s[{SD}:{SD+3}], s{TB+j} offen offset:{1024*q}", ("sg", j, q), None))
        def unstage(s):
            for it in myplan[s]:
                if it[0] == "D" and it[1] in stage and not spare:
                    j = it[1]
                    S(f"s_add_u32 s32, s33, {blk[it]*BLK}\nv_add_u32 v{XA}, s32, v{L16}")
                    for q in range(4):
                        r = sreg[j] + 4*q
                        S.add(f"ds_write_b128 v{XA}, v[{r}:{r+3}] offset:{1024*q}", lds=("us", j, q), need_vm=[("sg", j, q)])
        def issue_dma(n):
            while dmaq and n > 0:
                t, tag, it = dmaq.pop(0)
                if tag is None: S(t); continue
                S.add(t, vm=tag); n -= 1
                if it: issued.append(it)
        def issue_reads(n, maxn, lim):
            cnt = 0
            while st["rd"] < NM and (M[st["rd"]]["step"] if isB else vstep(M[st["rd"]]["step"])) < lim and cnt < maxn:
                k = st["rd"]
                lo = cum[n + 1] - 1 if n >= 0 else 0
                if cum[k + 1] - lo > (cfg.get("look2", 6) if "h" in M[k] else cfg.get("look", NPOOL)): break
                for (i, t) in M[k]["rd"]: S.add(t, lds=i)
                if M[k]["rd"]: cnt += 1
                st["rd"] += 1
        def issue_h(maxn):
            cnt = 0
            while st["h"] < 56 and cnt < maxn:
                h = st["h"]
                lim = 56 if spare else hmax.get(st["bar"], 0 if st["bar"] < min(hmax) else 56)
                if not (h < lim and (h < st["wdead"] if h < 32 else h - 32 < st["hcons"]) and h // 4 < st["ok"]): break
                r = WR + 4 * (h % 32)
                S.add(f"buffer_load_dwordx4 v[{r}:{r+3}], v{L16 if SH2 == 32 else DA+4}, s[{SH}:{SH+3}], s{TB + h//4} offen offset:{(h % 4)*1024 if SH2 == 32 else (h % 4 // 2)*2048 + (h % 2)*256} sc1", vm=("h", h))
                st["h"] += 1; cnt += 1
        def issue_epi(budget):
            used = 0
            while epq and used < budget:
                e = epq[0][0].pop(0)
                put(e); used += e["cost"]
                if not epq[0][0]: epq.pop(0)
            return used
        WB = cfg.get("wb", 2)
        def mfma():
            n = st["n"]; m = M[n]
            ph2 = "h" in m
            nv = [("h", m["h"])] if ph2 else []
            if ph2: assert m["h"] < st["h"], ("h not issued", m["h"], st["h"], n)
            assert st["rd"] > n, ("reads not issued", n)
            if m["first"]:
                for e in epq + held + wq: assert not (e[1] <= m["d"] < e[1] + 16), ("acc reuse", n, m["step"])
            d, nn = m["d"], m["n"]
            c = "0" if m["first"] else f"v[{d}:{d+nn-1}]"
            op = "v_mfma_f32_32x32x16_bf16" if nn == 16 else "v_mfma_f32_16x16x32_bf16"
            wb = WB * (1 if nn == 16 else 2)
            nl = [i for k in range(n, min(n + (wb if n % wb == 0 else 1), st["rd"])) for i, _ in M[k]["rd"] if i is not None]
            if isB: nl += [("w", m["slot"], 0), ("w", m["slot"], 1)]
            S.add(f"{op} v[{d}:{d+nn-1}], v[{m['A']}:{m['A']+3}], v[{m['B']}:{m['B']+3}], {c}" if not (cfg.get("nomf") and n % 2) else "", need_lds=nl, need_vm=nv, mw=(d, d + nn - 1))
            if m.get("wdead") is not None: st["wdead"] = m["wdead"] + 1
            if m["last"]:
                ent = [epi(m["g"]), ACC[accof[m["g"]]], n + 1 + 4 * MUL, m["g"]]
                if m["g"] in off: wq.append(ent)
                else: epq.append(ent)
            if ph2: st["hcons"] = max(st["hcons"], m["hc"]) if "hc" in m else m["h"] + m["t"]
            st["n"] += 1
            if ph2 and n in ((NM - 3, NM - 2) if SH2 == 32 else (NM - 5, NM - 3)):
                fi = 0 if n == (NM - 3 if SH2 == 32 else NM - 5) else 2
                for i in (fi, fi + 1):
                    S.add(f"ds_write_b128 v{VEX}, v[{A2[0]+4*i}:{A2[0]+4*i+3}] offset:{1024*i}", lds=("xw", i), vr=range(A2[0]+4*i, A2[0]+4*i+4))
        if isB and not spare and cfg.get("pages", 0) == 1:
            for p_ in range(1, touch["n"]):
                if (p_ - 1) % 4 // 2 != var: continue
                S(f"s_cmp_eq_u32 s22, {(p_ - 1) % 2}")
                S(f"s_cbranch_scc0 L_nt{sfx}{p_}")
                S(f"s_call_b64 s[98:99], L_stub{p_}")
                S(f"L_nt{sfx}{p_}:")
        if not isB and not spare and cfg.get("pages", 0) == 3: S("@TOUCH@")
        prio = cfg.get("prio", (1, 0))
        S(f"s_setprio {prio[SET]}")
        if spare and isB:
            tag_issue(); tag_check()
            points(first - 1, 99)
        lastB = max([next_bar(pc[0]) for _, pc in pts] + [vstep(first_use(("D", 13)))])
        for s in range(first, NST):
            if isB and s > lastB: break
            barrier()
            end = st["n"]
            while end < NM and M[end]["step"] <= s: end += 1
            if not isB:
                BK = cfg.get("bk", 3) * (MUL if s < P2 else MUL2)
                if s + 1 >= ES: BK = 0
                if s < LAST and end > st["n"]: end -= BK
                issue_reads(st["n"] - 1, 99, next_bar(s))
                if spare and s < P2: issue_h(99)
                k = 0
                while st["n"] < end:
                    mfma(); k += 1
                    if lite and s in cfg.get("fine", ()) and k % 2 == 0 and k <= 16:
                        r = (36, 38, 40, 42, 48, 50, 86, 88)[k // 2 - 1]
                        S(f"s_memtime s[{r}:{r+1}]"); lpend.append((r, LT + 2, 30 + 8 * cfg["fine"].index(s) + k // 2 - 1))
                    issue_reads(st["n"] - 1, 2, next_bar(s))
                    nn = M[st["n"] - 1]["n"]
                    per = cfg.get("hper_at", {}).get(s - P2, cfg.get("hper", 2)) * (MUL if s < P2 else MUL2)
                    if k % per == per - 1 or (s >= P2 and st["h"] < st["hcons"] + 6): issue_h(1)
                    if wq and st["n"] >= wq[0][2] and (nn == 16 or k % 2):
                        put(wq[0][0].pop(0))
                        if not wq[0][0]: wq.pop(0)
                    elif epq and st["n"] >= epq[0][2]:
                        eb = cfg.get("eon2", 5) if s >= P2 else cfg.get("eon_at", {}).get(s, cfg["eon"])
                        if nn == 16: issue_epi(eb)
                        elif cfg.get("split16", 0):
                            st["cr"] = min(st.get("cr", 0), 0) + (eb // 2 if M[st["n"] - 1]["pool"] else eb - eb // 2)
                            if st["cr"] > 0: st["cr"] -= issue_epi(st["cr"])
                        elif k % 2: issue_epi(eb)
                assert not wq, ("hand-over not finished", s)
                assert s == LAST or s + 1 in nobar or (spare and s < P2) or s + 1 >= ES or st["rd"] == end + BK, (s, st["rd"], end)
            else:
                pa = {(P2 + k_[0] if isinstance(k_, tuple) else k_): v for k_, v in cfg.get("prio_at", {}).items()}
                if s in pa: S(f"s_setprio {pa[s]}")
                lag = cfg.get("blag", 1)
                if lag:
                    while st["n"] < NM and M[st["n"]]["step"] < s:
                        mfma()
                        if M[st["n"] - 1]["n"] == 16 or st["n"] % 2 == 0: issue_dma(1)
                if s < 8 and not spare and bgroups:
                    for slot, rds in wreads(s).items():
                        for (i, t) in rds: S.add(t, lds=i)
                        issue_dma(1)
                issue_reads(st["n"] - 2 if False else st["n"] - 1, 99, s + 1)
                if lag: assert st["rd"] == end, (s, st["rd"], end)
                if not spare:
                    for g in sorted(off):
                        if gend[g] + 1 == s:
                            a = ACC[baccof[g]]; b = off[g]
                            assert polling[0] is None, ("scalar poll in flight over LDS reads", s)
                            for e in epq: assert e[1] != a, ("B acc reuse", g)
                            for i in range(4):
                                S.add(f"ds_read_b128 v[{a+4*i}:{a+4*i+3}], v{VE + b // 4} offset:{(b % 4)*BLK + 1024*i}", lds=("er", g, i))
                            epq.append([epi(g), a, 0, g])
                eb = cfg.get("eoff_at", {}).get(s, cfg["eoff"])
                efirst = (var == 1 or s in cfg.get("epi_first", ()))
                points(s, 0)
                if efirst: issue_epi(eb)
                unstage(s)
                issue_dma(99)
                points(s, 50)
                while not lag and st["n"] < end:
                    mfma()
                    issue_reads(st["n"] - 1, 2, s + 1)
                if not efirst: issue_epi(eb)
                points(s, 99)
                if cfg.get("pages") == 4 and not spare:
                    for p_, bi in enumerate(touch["at"]):
                        if s == max(0, bi - cfg.get("tdist", 3)):
                            S(f"s_cmp_eq_u32 s21, {p_ % 4}\ns_cbranch_scc0 L_nt{sfx}{p_}\n~s_call_b64 s[98:99], L_stub{p_}\nL_nt{sfx}{p_}:")
        assert not epq and st["n"] == NM
        if isB:
            if not spare: assert flagged | set(aflag.values()) == {1, 3, 5, 6, 7} and not flagged & set(aflag.values()), flagged
            if cfg.get("diag") is not None and not spare:
                S(f"s_cmp_lg_u32 s2, {cfg.get('diagwg', 8)}")
                S("s_cbranch_scc1 L_end")
                for s in range(lastB + 1, NST):
                    if s not in nobar: S("s_barrier")
                S("s_barrier")
                if cfg["diag"] == 99: S("s_memrealtime s[98:99]\ns_waitcnt lgkmcnt(0)")
                if cfg["diag"] < 0: S("s_mov_b32 s98, s100")
                S("s_sub_u32 s98, s98, s100\ns_lshl_b32 s98, s98, 2\ns_add_u32 s98, s98, 3000")
                S(f"L_dg{sfx}:")
                S("s_memrealtime s[96:97]\ns_waitcnt lgkmcnt(0)\ns_sub_u32 s96, s96, s100\ns_cmp_lt_u32 s96, s98\ns_cbranch_scc1 L_dg" + sfx)
            S("s_endpgm")
            return S.render()
        assert st["h"] == 56
        R = RED; keep = A2[1]
        S.add("s_barrier", need_lds=["ALL"])
        for i in range(4):
            S.add(f"ds_read_b128 v[{R+4*i}:{R+4*i+3}], v{VEX+1} offset:{1024*i}", lds=("xr", i))
        for q in range(2):
            for i in range(8*q, 8*q + 8): S.add(f"v_add_f32 v{R+i}, v{R+i}, v{keep+i}", need_lds=[("xr", i // 4)], vr=[keep+i])
            for i in range(4): S.add(f"v_cvt_pk_bf16_f32 v{TMP+4*q+i}, v{R+8*q+2*i}, v{R+8*q+2*i+1}", vw=[TMP+4*q+i])
            if SH2 == 16:
                for i in range(2): S.add(f"v_permlane16_swap_b32 v{TMP+4*q+i}, v{TMP+4*q+2+i}", pr=[TMP+4*q+i, TMP+4*q+2+i])
            S(f"buffer_store_dwordx4 v[{TMP+4*q}:{TMP+4*q+3}], v{VOUT}, s[{SW}:{SW+3}], s95 offen offset:{32*q}")
        if lite:
            for (r, v, idx) in lpend: S(f"v_writelane_b32 v{v}, s{r}, {idx}")
            S("s_memrealtime s[96:97]\ns_memtime s[36:37]\ns_waitcnt vmcnt(0)\ns_memrealtime s[98:99]\ns_waitcnt lgkmcnt(0)")
            S(f"v_writelane_b32 v{LT}, s100, 0\nv_writelane_b32 v{LT}, s96, 60\nv_writelane_b32 v{LT}, s98, 61")
            for x in range(NST + 1, 29): S(f"v_writelane_b32 v{LT+2}, s36, {x}")
            S(f"s_cmp_lg_u32 s20, {cfg.get('stwave', 1)}")
            S("s_cbranch_scc1 L_end")
            S(f"s_add_u32 s30, s{SH}, 0x8000000\ns_addc_u32 s31, s{SH+1}, 0")
            S(f"s_lshl_b32 s32, s2, 8\nv_lshrrev_b32 v0, 2, v{L16}\nv_add_u32 v0, s32, v0")
            for v in (LT, LT + 1, LT + 2):
                S(f"global_store_dword v0, v{v}, s[30:31]")
                S("v_add_u32 v0, 0x10000, v0")
        S("s_endpgm")
        return S.render()

    E = Stream()
    E("s_load_dwordx8 s[4:11], s[0:1], 0")
    E("s_load_dwordx4 s[24:27], s[0:1], 24")
    E("s_load_dwordx4 s[28:31], s[0:1], 40")
    if lite or cfg.get("diag") is not None: E("s_memrealtime s[100:101]")
    E("v_lshrrev_b32 v1, 6, v0")
    E("s_cmp_ge_u32 s2, 256")
    E("s_cbranch_scc1 L_end")
    E("v_readfirstlane_b32 s20, v1")
    E("s_and_b32 s14, s2, 7\ns_lshr_b32 s15, s2, 3")
    E("s_and_b32 s35, s15, 3\ns_lshr_b32 s19, s15, 2")
    E("s_and_b32 s32, s14, 1\ns_lshl2_add_u32 s16, s32, s35")
    E("s_lshr_b32 s84, s14, 1\ns_mul_i32 s17, s84, 7\ns_add_u32 s17, s17, s19")
    if not XROT: E("s_mov_b32 s84, s17")
    E("s_lshl2_add_u32 s18, s14, s35")
    E("s_and_b32 s21, s20, 3")
    if cfg.get("nbswap", 1):
        E("s_mov_b32 s34, s19\ns_cmp_eq_u32 s19, 3\ns_cselect_b32 s19, 7, s19\ns_cmp_eq_u32 s34, 7\ns_cselect_b32 s19, 3, s19\ns_cselect_b32 s34, 0, s34")
    else:
        E("s_cmp_eq_u32 s19, 7\ns_cselect_b32 s34, 0, s19")
    E("s_cbranch_scc1 L_spare")
    E(f"v_and_b32 v{LANE}, 63, v0")
    CM = cfg.get("cmode", 0)
    if CM == 0: E("s_lshl1_add_u32 s36, s35, s32")
    elif CM == 1: E("s_lshr_b32 s36, s35, 1\ns_mul_i32 s36, s36, 3\ns_lshl1_add_u32 s36, s32, s36\ns_add_u32 s36, s36, s32")
    elif CM == 2: E("s_mul_i32 s36, s32, 3")
    elif CM == 3: E("s_min_u32 s36, s14, 6")
    if cfg.get("crot", 1) == 1: E("s_lshr_b32 s32, s17, 2\ns_add_u32 s36, s36, s32")
    if cfg.get("crot", 1) == 2: E("s_add_u32 s36, s36, s34")
    if cfg.get("c3last", 1):
        E("s_sub_u32 s32, s36, 7\ns_min_u32 s36, s36, s32\ns_lshl_b32 s36, s36, 2")
        E("s_mov_b32 s96, 0x07654210\ns_mov_b32 s97, 0x65421\ns_lshr_b64 s[96:97], s[96:97], s36")
        E("s_and_b32 s36, s96, 0x0fffffff\ns_or_b32 s36, s36, 0x30000000")
    else:
        E("s_and_b32 s36, s36, 7\ns_lshl_b32 s36, s36, 2")
        E("s_mov_b32 s96, 0x76543210\ns_mov_b32 s97, s96\ns_lshr_b64 s[96:97], s[96:97], s36\ns_mov_b32 s36, s96")
    E("s_lshl_b32 s39, s16, 18")
    assert SP in ([0, 1], [0, 1, 2, 3])
    E("s_and_b32 s37, s21, 1")
    E(("s_lshl1_add_u32 s3, s84, s37" if NS == 2 else "s_lshl1_add_u32 s3, s84, s21") + "\ns_and_b32 s3, s3, 7\ns_lshl_b32 s3, s3, 15\ns_add_u32 s3, s3, s39")
    E("s_mul_i32 s37, s37, 114688\ns_lshl_b32 s32, s17, 7\ns_add_u32 s37, s37, s32")
    E("s_and_b32 s22, s21, 2")
    E("s_lshl_b32 s33, s21, 12")
    E("s_cmp_lt_u32 s20, 4")
    E("s_cselect_b32 s37, s3, s37")
    E("s_cselect_b32 s38, 1, 1792")
    E("s_cselect_b32 s12, 3, 1\ns_cselect_b32 s13, 0, 2")
    E(f"s_cselect_b32 s23, 0, {'s22' if SH1 == 32 else '0'}")
    E(f"s_cselect_b32 s92, 64, {0 if SH1 == 32 else 32}")
    E("s_cselect_b32 s93, 2, 7")
    E(f"s_cselect_b32 s{SX+2}, 8, 7")
    E("s_cselect_b32 s94, 0, 0x10000")
    E("s_cselect_b32 s95, s22, 0" if NS == 2 else "s_mov_b32 s95, 0")
    E(f"s_lshl_b32 s38, s38, 7\ns_lshl_b32 s93, s93, 9\ns_lshl_b32 s{SX+2}, s{SX+2}, 18")
    E(f"v_lshrrev_b32 v{T1}, 3, v{LANE}")
    E(f"v_lshrrev_b32 v{T2}, 4, v{LANE}")
    E(f"v_and_b32 v{T2}, s12, v{T2}")
    E(f"v_lshlrev_b32 v{T2}, s13, v{T2}")
    E(f"v_or_b32 v{T2}, s23, v{T2}")
    E(f"v_xor_b32 v{T2}, v{T2}, v{LANE}")
    E(f"v_and_b32 v{T2}, 7, v{T2}")
    E(f"v_mul_u32_u24 v{T1}, s93, v{T1}")
    E(f"v_lshl_add_u32 v{VX}, v{T2}, 4, v{T1}")
    E("s_lshl_b32 s93, s93, 3\ns_sub_u32 s93, s93, 1024")
    E(f"v_xor_b32 v{VX+1}, s92, v{VX}")
    E(f"v_add_u32 v{VX+1}, s93, v{VX+1}")
    E("s_lshl_b32 s93, s93, 1")
    E(f"v_add_u32 v{VX+2}, s93, v{VX}")
    E(f"v_add_u32 v{VX+3}, s93, v{VX+1}")
    E(f"s_mov_b32 s{SX+3}, 0x20000")
    E("s_add_u32 s33, s33, s94")
    E("s_lshl_b32 s95, s95, 1\ns_lshr_b32 s32, s36, s95\ns_and_b32 s32, s32, 7\ns_mul_i32 s32, s32, s38\ns_add_u32 s32, s32, s37")
    E("s_mov_b32 m0, s33")
    E("s_cmp_eq_u32 s22, 0")
    E("s_waitcnt lgkmcnt(0)")
    E(f"s_cselect_b32 s{SX}, s6, s8\ns_cselect_b32 s{SX+1}, s7, s9")
    E("s_cmp_lt_u32 s20, 4")
    E(f"s_cselect_b32 s{SX}, s4, s{SX}\ns_cselect_b32 s{SX+1}, s5, s{SX+1}")
    for q in range(4): E(f"buffer_load_dwordx4 v{VX+q}, s[{SX}:{SX+3}], s32 offen offset:{1024*q} lds")
    E("s_cbranch_scc0 L_B")
    body = E.render()
    atext = wave(False, False)
    nstub = 0
    if cfg.get("pages", 0):
        lines = atext.split("\n")
        bars = [i for i, l in enumerate(lines) if l.strip() == "s_barrier"]
        sz = [isize(l.strip()) if l.strip() else 0 for l in lines]
        cumsz = [0]
        for x in sz: cumsz.append(cumsz[-1] + x)
        cuts = [bars[0]]
        if cfg["pages"] == 4:
            esz = 0x300 + sum(isize(l.strip()) for l in body.split("\n") if l.strip())
            cuts = [[b for b in bars if esz + cumsz[b] <= 4070][-1]]
            if "cut0" in cfg: cuts = [bars[cfg["cut0"]]]
        while cumsz[-1] - cumsz[cuts[-1]] > 4080:
            ok = [b for b in bars if b > cuts[-1] and cumsz[b] - cumsz[cuts[-1]] <= 4080]
            cuts.append(ok[-1])
        touch["at"] = [bars.index(c) for c in cuts]
        out = []
        for i, l in enumerate(lines):
            if i in cuts:
                out += [f"    s_branch L_pg{nstub}", ".p2align 12", f"L_stub{nstub}:", "    s_setpc_b64 s[98:99]", f"L_pg{nstub}:"]
                nstub += 1
            out.append(l)
        atext = "\n".join(out)
        tt = ""
        for p_ in range(1, nstub):
            tt += f"    s_cmp_eq_u32 s21, {(p_ - 1) % 4}\n    s_cbranch_scc0 L_nta{p_}\n    s_call_b64 s[98:99], L_stub{p_}\nL_nta{p_}:\n"
        atext = atext.replace("    @TOUCH@\n", tt)
    touch["n"] = nstub
    body += ".p2align 3\n" + atext
    def bpage(t, nm):
        if not cfg.get("bpages", 0): return t
        i_ = t.index("    s_setprio")
        return t[:i_] + f"    s_branch L_bp{nm}\n.p2align 12\nL_bp{nm}:\n" + t[i_:]
    if off:
        body += ".p2align 6\nL_B:\n    s_cmp_eq_u32 s22, 0\n    s_cbranch_scc0 L_B1\n" + bpage(wave(True, False, 0), 0)
        body += ".p2align 6\nL_B1:\n" + bpage(wave(True, False, 1), 1)
    else:
        body += ".p2align 6\nL_B:\n" + bpage(wave(True, False, 0), 0)
    body += ".p2align 6\nL_spare:\n    s_cmp_lt_u32 s20, 4\n    s_cbranch_scc0 L_Bs\n"
    body += wave(False, True)
    body += ".p2align 6\nL_Bs:\n" + wave(True, True)
    body += "L_end:\n    s_endpgm\nL_codeend:\n"
    return single_file(body, 256, 512, 163840, 256)

R = "r"
DEF = dict(sp=[0, 2], al=[3, 4, 5, 6, 7], bgroups=[(1, [1, 2, 3, 4, 5, 6, 7, 8])],
           sched={("W", 1): -1, ("Y", 0): -1, ("X", 1): 0, ("W", 2): 0, ("W", 3): 1, ("X", 2): 2, ("W", 4): 1, ("W", 5): 2, ("Y", 1): 3, ("X", 3): 4,
                  ("W", 6): 3, ("W", 7): 4, ("X", 4): 5, ("X", 5): 6},
           dsched={0: 6, 1: 7, 2: 8, 3: 9, 4: 10, 5: 11, 6: 12, 7: -2, 8: -1, 9: 0, 10: 1, 11: 1, 12: 2, 13: 2},
           stage={9: 11, 10: 13, 11: 14, 12: 14, 13: 15},
           nobar2=(6,), eon=4, eon2=5, eoff=45, prio=(1, 2), prio_at={9: 0, (0,): 2},
           tag_pts=((9, 99), (10, 99)),
           flag_pts={1: (12, 0), 3: (14, 0), 5: (-1, 0, R), 6: (1, 0, R), 7: (3, 0, R)},
           pgroups=[(0, 3), (3, 7), (7, 10), (10, 12), (12, 14)],
           ppts=[((-4, 0, R), (-3, 99, R)), ((-2, 0, R), (-1, 99, R)), ((0, 99, R), (1, 99, R)), ((2, 99, R), (3, 99, R)), ((4, 0, R), (4, 99, R))],
           ppts_s=[((-3, 99, R), (-3, 99, R)), ((-2, 99, R), (-2, 99, R)), ((1, 99, R), (1, 99, R)), ((3, 99, R), (3, 99, R)), ((4, 99, R), (4, 99, R))],
           hper_at={4: 1, 5: 1},
           hmax={-2: 5, -1: 12, 0: 20, 1: 28, 2: 36, 3: 40, 4: 56})
def emit(variants):
    for k, v in variants.items():
        open(k + ".s", "w").write(build(dict(v)))
        open(k + "_lt.s", "w").write(build(dict(v, lite=True)))
NB = dict(DEF, sp=[0, 1], al=[2, 3, 4, 5, 6, 7], bgroups=[],
          sched={("W", 1): -1, ("X", 1): -1, ("W", 2): 0, ("W", 3): 0, ("W", 4): 1, ("X", 2): 1, ("W", 5): 2, ("W", 6): 3, ("X", 3): 3, ("W", 7): 4, ("X", 4): 5, ("X", 5): 6},
          dblk=[3, 8, 9, 4, 5, 6, 7, 1, 2, 0],
          dsched={0: 6, 1: 7, 2: 8, 3: 9, 4: 10, 5: 11, 6: 12, 7: -2, 8: -1, 9: 0, 10: 1, 11: 1, 12: 2, 13: 2},
          stage={9: 13, 10: 14, 11: 15, 12: 16, 13: 17},
          prio=(1, 0), prio_at={}, tag_pts=((8, 99), (9, 99)),
          flag_pts={1: (14, 0), 3: (17, 0), 5: (0, 0, R), 6: (2, 0, R), 7: (3, 0, R)},
          ppts=[((-4, 0, R), (-3, 99, R)), ((-2, 99, R), (-1, 99, R)), ((1, 0, R), (1, 99, R)), ((3, 0, R), (3, 99, R)), ((4, 0, R), (4, 99, R))],
          eon_at={16: 6, 17: 6, 18: 6, 19: 6}, eon2=6)
NC = dict(NB, flag_pts={1: (13, 0), 3: (16, 0), 5: (-1, 0, R), 6: (1, 0, R), 7: (3, 0, R)},
          ppts=[((-4, 0, R), (-3, 99, R)), ((-2, 99, R), (-1, 99, R)), ((0, 99, R), (1, 99, R)), ((2, 99, R), (3, 99, R)), ((4, 0, R), (4, 99, R))])
ND = dict(NC, dsched={0: 8, 1: 9, 2: 10, 3: 11, 4: 12, 5: 13, 6: 14, 7: -2, 8: -1, 9: 0, 10: 1, 11: 1, 12: 2, 13: 2}, stage={9: 15, 10: 16, 11: 17, 12: 14, 13: 16})
NE = dict(NC, dsched={0: 4, 1: 6, 2: 7, 3: 7, 4: 9, 5: 10, 6: 11, 7: -2, 8: -1, 9: 0, 10: 1, 11: 1, 12: 2, 13: 2}, stage={9: 12, 10: 13, 11: 14, 12: 15, 13: 16},
          spare_order="wx", look=6)
NF = dict(NE, hold=(0, 2, 4), aflag={3: 1, 5: 3, 6: 5, 7: 6}, atag=(7, 8), flag_pts={7: (3, 0, R)})
SG = {("W", 1): -1, ("X", 1): -1, ("W", 2): 0, ("W", 3): 0, ("W", 4): 1, ("X", 2): 1, ("W", 5): 2, ("X", 3): 2, ("W", 6): 3, ("W", 7): 4, ("X", 4): 4, ("X", 5): 5}
NG = dict(NE, hold=(0, 2, 4), nobar=(6, 7), sched=SG, blk={("X", 5): 3},
          dblk=[8, 9, 4, 5, 6, 7, 3, 1, 2, 0],
          dsched={0: 5, 1: 5, 2: 8, 3: 8, 4: 10, 5: 11, 6: 12, 7: -2, 8: -1, 9: 0, 10: 1, 11: 1, 12: 2, 13: 2},
          stage={9: 13, 10: 14, 11: 15, 12: 16, 13: 17})
OF = dict(NC, look=6, off={0: 3, 2: 3, 3: 3, 4: 3, 5: 3, 6: 3, 7: 3}, eon=3, eon_at={}, eoff=46,
          dblk=[8, 9, 4, 5, 6, 7, 1, 2, 0, 3],
          dsched={0: 6, 1: 7, 2: 8, 3: 9, 4: 10, 5: 11, 6: 18, 7: -1, 8: 0, 9: 2, 10: 1, 11: 1, 12: 2, 13: 3},
          stage={8: 12, 9: 13, 10: 14, 11: 15, 12: 16, 13: 17},
          tag_pts=((7, 99), (8, 99)), eoff_at={21: 90}, epi_first=(21,), prio_at={21: 2},
          flag_pts={1: (12, 99), 3: (16, 50), 5: (0, 50, R), 6: (2, 0, R), 7: (3, 0, R)},
          ppts=[((-5, 99, R), (-4, 99, R)), ((-1, 0, R), (-1, 99, R)), ((1, 50, R), (1, 99, R)), ((3, 0, R), (3, 99, R)), ((4, 0, R), (4, 99, R))])
O1 = dict(NC, look=6, off={0: 7}, eon=3, eoff=30, mix=1, tag_pts=((7, 99), (8, 99)),
          flag_pts={1: (13, 99), 3: (16, 0), 5: (-1, 0, R), 6: (1, 0, R), 7: (3, 0, R)}, eon_at={16: 5, 17: 5, 18: 5, 19: 5})
T1_ = dict(NE, hold=(0, 2, 4), tag_pts=((6, 99), (11, 99)), mix=1)
T2_ = dict(NC, look=6, tag_pts=((6, 99), (11, 99)), mix=1)
SE = {("W", 1): -1, ("X", 1): -1, ("W", 2): 0, ("W", 3): 0, ("W", 4): 1, ("X", 2): 1, ("W", 5): 2, ("W", 6): 3, ("X", 3): 3, ("W", 7): 4, ("X", 4): 5, ("X", 5): 5, ("X", 6): 6}
E1 = dict(T2_, defer=0, es=9, xring=4, sched=SE, look=8, look2=7,
          dblk=[8, 9, 4, 5, 6, 7, 0, 1, 2, 3],
          dsched={0: 6, 1: 7, 2: 8, 3: 9, 4: 10, 5: 11, 6: 17, 7: -2, 8: -1, 9: 0, 10: 1, 11: 1, 12: 2, 13: 2},
          stage={9: 12, 10: 13, 11: 14, 12: 15, 13: 16})
ORD = [0, 4, 7, 11, 1, 5, 8, 12, 2, 6, 9, 13, 3, 10]
def inter(base, start, xr4):
    ds = dict(base["dsched"]); stg = {}
    for n, j in enumerate(ORD):
        if j >= (6 if xr4 else 7): stg[j] = start + n
        else: ds[j] = start + n
    return dict(base, dsched=ds, stage=stg)
if __name__ == "__main__":
    B0_ = dict(T2_, defer=0, sh1=16, look=6, dblk=[3, 4, 5, 6, 8, 7, 9, 1, 2, 0])
    I1 = dict(inter(B0_, 6, False), split16=1, eon_at={}, eon2=4)
    O2 = dict(I1, off={0: 9}, eon=3, eoff=30, tag_pts=((6, 99), (8, 99)), flag_pts={1: (13, 99), 3: (16, 0), 5: (0, 0, R), 6: (2, 0, R), 7: (3, 0, R)})
    O3 = dict(O2, eon_at={16: 4, 17: 4, 18: 4, 19: 4}, flag_pts={1: (13, 99), 3: (16, 0), 5: (-1, 0, R), 6: (1, 0, R), 7: (3, 0, R)})
    P_ = dict(I1, pages=3, bpages=1)
    F1 = dict(P_, eon2=99, flag_pts={1: (13, 0), 3: (16, 0), 5: (-1, 0, R), 6: (1, 0, R), 7: (2, 0, R)},
              ppts=[((-4, 0, R), (-3, 99, R)), ((-2, 99, R), (-1, 99, R)), ((0, 99, R), (1, 99, R)), ((2, 99, R), (3, 99, R)), ((3, 99, R), (4, 99, R))])
    F2 = dict(F1, eon2=12)
    F3 = dict(F1, flag_pts={1: (13, 0), 3: (16, 0), 5: (-1, 0, R), 6: (2, 0, R), 7: (2, 0, R)},
              ppts=[((-4, 0, R), (-3, 99, R)), ((-2, 99, R), (-1, 99, R)), ((0, 99, R), (1, 99, R)), ((3, 0, R), (3, 99, R)), ((3, 99, R), (4, 99, R))])
    F4 = dict(F1, dsched={**F1["dsched"], 10: 1, 11: 2, 12: 3, 13: 4})
    def reord(base, order, start, staged):
        ds = dict(base["dsched"]); stg = {}
        for n, j in enumerate(order):
            if j is None: continue
            if j in staged: stg[j] = start + n
            else: ds[j] = start + n
        return dict(base, dsched=ds, stage=stg)
    G1 = reord(F4, [0, 4, 11, 9, 1, 5, 12, None, 2, 6, 13, 3], 6, (9, 11, 12, 13))
    G2 = dict(F4, hmax={-2: 3, -1: 8, 0: 16, 1: 26, 2: 34, 3: 40, 4: 56}, hper_at={1: 1, 4: 1, 5: 1})
    G3 = dict(F4, eon2=12)
    G4 = dict(F4, eon_at={16: 5, 17: 5, 18: 3, 19: 3})
    G5 = dict(G1, hmax=G2["hmax"], hper_at=G2["hper_at"], eon2=12)
    G6 = dict(F4, nobar=(5, 7), sched={**F4["sched"], ("X", 4): 4}, dsched={**F4["dsched"]})
    X1 = dict(F4, xrot=1, spare_order="pw12b3", crot=2)
    X2 = dict(X1, spare_order="pw1b23")
    ST = (7, 8, 9, 10, 11, 12, 13)
    def fix(c):
        return dict(c, dsched={**c["dsched"], **{j: F4["dsched"][j] for j in ST}})
    Y1 = fix(reord(X1, [0, None, 4, 7, 11, 1, 5, 8, 12, 2, 6, 9, 13, 3, 10], 4, ST))
    Y2 = fix(reord(X1, ORD, 5, ST))
    Y3 = dict(X1, nobar=(5, 7), sched={**F4["sched"], ("X", 4): 4})
    Y4 = dict(Y2, nobar=(3, 5, 7), sched={("W", 1): -1, ("X", 1): -1, ("W", 2): 0, ("W", 3): 0, ("W", 4): 1, ("X", 2): 1, ("W", 5): 2, ("X", 3): 2, ("W", 6): 4, ("W", 7): 4, ("X", 4): 4, ("X", 5): 6})
    Y5 = dict(X1, bk=4)
    Z = dict(X1, spare_order="pwm", pages=0, bpages=0)
    S4 = {("W", 1): -1, ("X", 1): -1}
    for i_ in range(2, 8): S4[("W", i_)] = i_ - 2; S4[("X", i_)] = i_ - 2
    N4 = dict(Z, sp=[0, 1, 2, 3], al=[4, 5, 6, 7], sched=S4, eon=6, tag_pts=((5, 99), (9, 99)),
              flag_pts={1: (12, 0), 3: (13, 99), 5: (-1, 0, R), 6: (1, 0, R), 7: (2, 0, R)},
              ppts=[((-3, 0, R), (-3, 99, R)), ((-2, 99, R), (-1, 99, R)), ((0, 99, R), (1, 99, R)), ((2, 99, R), (3, 99, R)), ((3, 99, R), (4, 99, R))])
    def pack(base, slots):
        ds = dict(base["dsched"]); stg = {}
        for st_, js in slots.items():
            for j in js:
                if j >= 7: stg[j] = st_
                else: ds[j] = st_
        return dict(base, dsched=ds, stage=stg)
    N4a = pack(N4, {6: [0], 7: [4], 8: [7, 11], 9: [1], 10: [5, 8], 11: [12, 2], 12: [6, 9], 13: [13, 3], 14: [10]})
    N4b = pack(N4, {6: [0], 7: [4], 8: [11], 9: [1], 10: [5], 11: [12], 12: [2], 13: [6], 14: [3]})
    D1 = dict(Z, defer=1, late_at=({0: 999}, {3: 30, 5: 999}))
    D2 = dict(Z, defer=1, late_at=({0: 80, 1: 40, 2: 15, 4: 999}, {3: 30, 5: 999}))
    D3 = dict(Z, defer=1, late_at=({1: 40, 2: 20, 4: 20, 6: 20, 7: 20, 8: 999}, {3: 30, 5: 999}))
    D4 = dict(D2, cmode=1, crot=0)
    D5 = dict(D2, spare_order="pw")
    D6 = dict(Z, defer=1, late_at=({0: 90, 1: 999}, {1: 999}))
    D7 = dict(Z, defer=1, late_at=({0: 999}, {1: 999}))
    SQ = {("W", 1): -1, ("W", 2): -1, ("X", 1): 0, ("W", 3): 0, ("W", 4): 1, ("X", 2): 1, ("W", 5): 2, ("W", 6): 3, ("X", 3): 3, ("W", 7): 4, ("X", 4): 5, ("X", 5): 6}
    D8 = dict(D6, sched=SQ)
    D9 = dict(D6, pages=3)
    def keep(c): return dict(c, dsched={**c["dsched"], **{j: Z["dsched"][j] for j in range(7, 14)}})
    K1 = keep(reord(Z, [0, 4, 11, 10, 1, 5, 12, 9, 2, 6, 13, 3], 6, (9, 10, 11, 12, 13)))
    K2 = keep(reord(Z, [0, 4, 11, None, 1, 5, 12, None, 2, 6, 13, 3], 6, (11, 12, 13)))
    K3 = dict(K1, dsched={**K1["dsched"], 9: 0, 10: 1, 11: 1, 12: 2, 13: 2}, nobar2=(6,))
    K4 = dict(K1, eon2=16)
    K5 = dict(K1, hmax={-2: 6, -1: 12, 0: 18, 1: 28, 2: 36, 3: 40, 4: 56}, hper_at={1: 1, 4: 1, 5: 1})
    K6 = dict(K1, prio=(2, 0))
    ST7 = (7, 8, 9, 10, 11, 12, 13)
    L1 = keep(reord(Z, [0, 7, 4, 1, 8, 5, 2, 9, 6, 3, 10, 11, 12, 13], 6, ST7))
    L2 = keep(reord(Z, [0, 7, 4, 1, 8, 5, 2, 9, 6, 3, 10, 11, 12, 13], 5, ST7))
    L3 = keep(reord(Z, [0, None, 4, 1, None, 5, 2, 9, 6, 3, 10, 11], 6, (9, 10, 11)))
    L4 = keep(reord(Z, [0, 4, 1, 5, 2, 9, 6, 3, 10, 11, 12, 13], 6, (9, 10, 11, 12, 13)))
    L5 = dict(L1, pages=3)
    W1 = dict(L1, spare_order="pwmx")
    emit({"v41b": W1, "v42a": dict(W1, pages=4), "v42b": dict(W1, pages=4, cut0=4, tdist=4), "v42c": dict(W1, pages=4, bpages=1)})
```

```python
import sys, struct, math, re
from common import *
from gen3 import Stream, f2u, C0, C1, isize

BLK = 16384
FO = 8 << 20
FSZ = 897 * 128
HSTR = 112
WR = 0
ACC = [128, 144, 160, 176, 192]
POOL = 208; NPOOL = 6
TMP = 232
XA = 240
WA = 244
L16 = 245
CC0 = 246
DA = 247
VOUT, VEX = 249, 250
LT = 252
VX = 192
PR = 196
VW = 200
VD = 176
VF, VF2, TAG, FV = 180, 181, 182, 183
HOLDR = VE_A = VE_B = -1000
T1, T2, T3, LANE, T4, T5 = TMP, TMP + 1, TMP + 2, TMP + 3, TMP + 4, TMP + 5
SX, SW, SD, SH, SF = 40, 44, 48, 52, 56
TB = 60
HS = 76

def build(cfg):
    SH1 = cfg.get("sh1", 32)
    MUL = 2 if SH1 == 16 else 1
    XROT = cfg.get("xrot", 0)
    SH2 = cfg.get("sh2", 32)
    MUL2 = 2 if SH2 == 16 else 1
    lite = cfg.get("lite", False)
    bgroups = cfg["bgroups"]
    SP = cfg["sp"]
    AL = cfg["al"]
    assert sorted(SP + AL + [g for g, _ in bgroups]) == list(range(8))
    P2 = 8 + 2 * len(AL); LAST = P2 + 6; NST = LAST + 1
    NS = len(SP); NA = NS + 1; XS = 2 * NS
    NX = XS + 2 * len(AL)
    groups = {0: SP + AL, 1: [g for g, _ in bgroups]}
    accof = {g: i % NA for S_ in (0, 1) for i, g in enumerate(groups[S_])}
    A2 = [ACC[(len(groups[0])) % NA], ACC[(len(groups[0]) + 1) % NA]]
    RED = ACC[(len(groups[0]) + 2) % NA]
    ES = cfg.get("es", 99)
    XR = cfg.get("xring", 3)
    vstep = lambda t: t - 1 if t >= ES else t
    blk = {("X", j): j % XR for j in range(NX)}
    blk.update({("W", i): 4 + i % 4 for i in range(8)})
    blk.update({("Y", j): 8 + j % 2 for j in range(2 * len(bgroups))})
    blk.update(cfg.get("blk", {}))
    dorder = cfg.get("dblk", [3, 4, 5, 6, 7, 8, 9, (NX - 3) % 3, (NX - 2) % 3, (NX - 1) % 3])
    blk.update({("D", j): dorder[j % 10] for j in range(14)})
    off = cfg.get("off", {})
    gend = {g: 8 for g in SP}
    gend.update({g: 10 + 2*n for n, g in enumerate(AL)})
    eowner = lambda g: 1 if (g in off or g in groups[1]) else 0
    baccof = {g: i % 3 for i, g in enumerate(sorted(off, key=lambda g: (gend[g], g)))}
    plan = {s: [] for s in range(-1, NST)}
    sched = dict(cfg["sched"])
    for j in range(XS, NX): sched.setdefault(("X", j), j - XS + 9 - XR)
    for j, s in cfg["dsched"].items(): sched[("D", j)] = s + (P2 if j >= 7 else 0)
    for k in "WXYD":
        for it in sorted(x for x in sched if x[0] == k): plan[sched[it]].append(it)
    def first_use(it):
        k, i = it
        if k == "W": return i
        if k == "X": return (i * 8 // XS) if i < XS else i - XS + 8
        if k == "Y": return min(bgroups[i // 2][1][4*(i % 2):4*(i % 2) + 4])
        return P2 + min(i, 10) // 2
    def last_use(it):
        k, i = it
        if k == "Y": return max(bgroups[i // 2][1][4*(i % 2):4*(i % 2) + 4])
        return first_use(it) + (1 if k == "X" and i < XS and NS == 2 else 0)
    nobar = set(P2 + x for x in cfg.get("nobar2", ())) | set(cfg.get("nobar", ()))
    def prev_bar(s):
        while s in nobar: s -= 1
        return s
    def next_bar(s):
        s += 1
        while s in nobar: s += 1
        return s
    occ = {0: ("X", 0), 4: ("W", 0)}
    lu = lambda it: (gend[it[1]] + 1 if it[0] == "E" else last_use(it))
    for s in range(-1, NST):
        for it in plan[s] + [("E", g) for g in off if gend[g] == s]:
            b = off[it[1]] if it[0] == "E" else blk[it]
            if b in occ: assert lu(occ[b]) < prev_bar(s), (it, s, occ[b])
            if it[0] == "E": assert s + 1 not in nobar
            else: assert next_bar(s) <= vstep(first_use(it)), it
            occ[b] = it
    assert set(sched) | {("X", 0), ("W", 0)} == set(blk), set(blk) - set(sched)
    XJ = max(j for j in range(4, 10) if first_use(("D", j)) < prev_bar(LAST))
    rel = lambda p: (p[0] + P2 if len(p) > 2 else p[0], p[1])
    flag_pts = {g: rel(p) for g, p in cfg["flag_pts"].items()}
    stage = cfg.get("stage", {})
    bend = max([max(bs) + 1 for _, bs in bgroups] + [-1])
    early = sorted(j for j in stage if stage[j] <= bend)
    assert len(early) <= 2
    sreg = {j: 144 + 16 * n for n, j in enumerate(early)}
    sreg.update({j: 16 * n for n, j in enumerate(sorted(j for j in stage if j not in early))})
    hmax = {P2 + s: v for s, v in cfg["hmax"].items()}
    pg = cfg["pgroups"]

    touch = {"n": 0}
    def wave(isB, spare, var=0):
        S = Stream(cfg.get("align", 0))
        sfx = ("b" if isB else "a") + ("s" if spare else "r") + str(var)
        SET = 1 if isB else 0
        VE = VE_B if isB else VE_A
        issued = []
        cut = [None]
        if not spare:
            k = "W" if isB else "X"
            for q in range(4): S.add("", vm=(k, 0, q))
            issued.append((k, 0))
        else:
            S(f"v_and_b32 v{LANE}, 63, v0")
            S("s_waitcnt lgkmcnt(0)")
        S("s_lshl_b32 s33, s21, 12")
        S(f"v_lshlrev_b32 v{L16}, 4, v{LANE}")
        S("s_lshr_b32 s23, s21, 1\ns_and_b32 s22, s21, 1")
        if cfg.get("qx", 1):
            S("s_add_u32 s34, s34, s14\ns_sub_u32 s32, s34, 7\ns_min_u32 s34, s34, s32")
        if cfg.get("codepf", True) and not isB:
            S(f"s_getpc_b64 s[{SH}:{SH+1}]")
            S(f"L_pc{sfx}:")
            S(f"s_sub_u32 s{SH}, s{SH}, L_pc{sfx}-{KNAME}")
            S(f"s_subb_u32 s{SH+1}, s{SH+1}, 0")
            S(f"s_mov_b32 s{SH+2}, L_codeend-{KNAME}")
            S(f"s_mov_b32 s{SH+3}, 0x20000")
            S("s_lshl2_add_u32 s32, s15, s21\ns_lshl_b32 s32, s32, 10")
            S.add(f"buffer_load_dwordx4 v[{PR}:{PR+3}], v{L16}, s[{SH}:{SH+3}], s32 offen", vm="pf")
        gexp = lambda p, r: (f"s_lshl1_add_u32 s{r}, s84, {p}\ns_and_b32 s{r}, s{r}, 7" if p < 6 else f"s_and_b32 s{r}, s{p-6}, 7")
        def item_ops(it):
            k, i = it
            su = ""
            if k == "X" and i < XS and NS == 4:
                su = f"s_bfe_u32 s32, s36, {0x30000 + 4*i:#x}\ns_lshl_b32 s32, s32, 7\ns_add_u32 s32, s32, s3"
                v, srd, so = VX, SX, 32
            elif k == "X" and i < XS:
                su = f"s_bfe_u32 s32, s87, {0x30000 + 8*i:#x}\ns_lshl_b32 s32, s32, 7\ns_add_u32 s32, s32, s3"
                v, srd, so = VX, SX, 32
            elif k in "XY":
                p = AL[(i - XS) // 2] if k == "X" else bgroups[i // 2][0]
                su = gexp(p, 32) + f"\ns_lshl_b32 s32, s32, 15\ns_add_u32 s32, s32, s{93 + i % 2}"
                v, srd, so = VX, SX, 32
            elif k == "W":
                su = f"s_bfe_u32 s32, s36, {0x30000 + 4*i:#x}\ns_mul_i32 s32, s32, {64*3584}\ns_add_u32 s32, s32, s38"
                v, srd, so = VW, SW, 32
            else:
                su = "s_nop 0"
                v, srd, so = VD, SD, TB + i
            su = f"s_add_u32 m0, s33, {blk[it]*BLK}\n" + su
            return su, [(f"buffer_load_dwordx4 v{v+q}, s[{srd}:{srd+3}], s{so} offen offset:{1024*q} lds", (k, i, q)) for q in range(4)]
        def item(it):
            su, dm = item_ops(it)
            S(su)
            for t, tag in dm: S.add(t, vm=tag)
            issued.append(it)
        if isB:
            S(f"s_add_u32 s{SF}, s30, {FO}\ns_addc_u32 s{SF+1}, s31, 0\ns_mov_b32 s{SF+2}, {FSZ}\ns_mov_b32 s{SF+3}, 0x20000")
            S(f"v_lshlrev_b32 v{VF}, 20, v{LANE}")
            S("s_mov_b32 s74, s28\ns_mov_b32 s75, s29")
        if spare and isB:
            S("s_cmp_eq_u32 s2, 224\ns_cselect_b32 s32, s21, 0\ns_cmp_eq_u32 s32, 1")
            S("s_cbranch_scc0 L_notag")
            S("s_mov_b32 s88, s28\ns_mov_b32 s89, s29\ns_mov_b32 s90, 256\ns_mov_b32 s91, 0x20000")
            S(f"s_mov_b32 s32, {FSZ-128}")
            S(f"buffer_load_dword v{PR}, v{VF}, s[{SF}:{SF+3}], s32 offen sc1")
            S(f"v_mov_b32 v{PR+1}, 1")
            S("s_waitcnt vmcnt(0)")
            S(f"v_add_u32 v{PR}, 1, v{PR}")
            S(f"buffer_store_dwordx2 v[{PR}:{PR+1}], v{VF}, s[88:91], 0 offen sc1")
            S(f"buffer_store_dword v{PR}, v{VF}, s[{SF}:{SF+3}], s32 offen sc1")
            S("L_notag:")
            S("s_barrier")
        if not spare:
            S(("s_bfe_u32 s32, s15, 0x10002" if XROT else "s_bfe_u32 s32, s17, 0x10002") + "\ns_lshl1_add_u32 s0, s84, s32\ns_add_u32 s0, s0, 6\ns_xor_b32 s1, s0, 1")
            for hf in range(2):
                S(f"s_lshl2_add_u32 s32, s21, {16*hf}\ns_lshr_b32 s32, s36, s32\ns_and_b32 s32, s32, 7\ns_lshl_b32 s32, s32, 7\ns_add_u32 s{93+hf}, s32, s39")
            S("s_lshl_b32 s32, s23, 2\ns_lshr_b32 s87, s36, s32")
            if isB:
                for q in range(4): S(f"v_mov_b32 v{VW+q}, v{VX+q}")
                S(f"s_mov_b32 s{SW}, s{SX}\ns_mov_b32 s{SW+1}, s{SX+1}\ns_mov_b32 s{SW+2}, 1835008\ns_mov_b32 s{SW+3}, 0x20000")
                S("s_mov_b32 s38, s37")
                S(f"s_mov_b32 s{SX}, s4\ns_mov_b32 s{SX+1}, s5\ns_mov_b32 s{SX+2}, 0x200000")
                S(f"v_lshrrev_b32 v{T1}, 3, v{LANE}\nv_lshrrev_b32 v{T2}, 4, v{LANE}")
                S(f"v_xor_b32 v{T3}, v{T2}, v{LANE}\nv_and_b32 v{T3}, 7, v{T3}\nv_lshlrev_b32 v{T1}, 10, v{T1}")
                S(f"v_lshl_add_u32 v{VX}, v{T3}, 4, v{T1}")
                S(f"v_xor_b32 v{VX+1}, 64, v{VX}")
                S(f"v_add_u32 v{VX+1}, {7*1024}, v{VX+1}")
                S(f"v_add_u32 v{VX+2}, {14*1024}, v{VX}")
                S(f"v_add_u32 v{VX+3}, {14*1024}, v{VX+1}")
            if SH1 == 32:
                S(f"v_and_b32 v{T1}, 31, v{LANE}")
                S(f"v_bfe_u32 v{T2}, v{LANE}, 1, 3")
                S(f"v_lshrrev_b32 v{T3}, 5, v{LANE}")
                S(f"v_xor_b32 v{T2}, v{T2}, v{T3}")
                S(f"v_lshlrev_b32 v{T1}, 7, v{T1}")
                if isB: S(f"v_add_u32 v{T1}, {8*BLK:#x}, v{T1}")
                for ks in range(4):
                    S(f"v_xor_b32 v{T3}, {2*ks}, v{T2}")
                    S(f"v_lshl_add_u32 v{XA+ks}, v{T3}, 4, v{T1}")
                S(f"v_lshrrev_b32 v{T1}, 5, v{LANE}")
                S(f"v_lshlrev_b32 v{T1}, 3, v{T1}")
                S(f"v_bfe_u32 v{T2}, v{LANE}, 2, 2")
                S(f"v_add_u32 v{T1}, v{T1}, v{T2}")
                S(f"v_lshlrev_b32 v{T1}, 7, v{T1}")
                S(f"v_bfe_u32 v{T2}, v{LANE}, 4, 1")
                S(f"v_lshl_add_u32 v{T1}, v{T2}, 13, v{T1}")
                S(f"v_bfe_u32 v{T3}, v{LANE}, 3, 1")
                S(f"v_lshl_add_u32 v{T2}, v{T3}, 1, v{T2}")
                S(f"v_xor_b32 v{T2}, s21, v{T2}")
                S(f"v_lshl_add_u32 v{T1}, v{T2}, 5, v{T1}")
                S(f"v_and_b32 v{T2}, 1, v{LANE}")
                S(f"v_lshl_add_u32 v{T1}, v{T2}, 4, v{T1}")
                S(f"v_bfe_u32 v{T2}, v{LANE}, 1, 1")
                S(f"v_lshl_add_u32 v{T1}, v{T2}, 3, v{T1}")
                S(f"v_add_u32 v{WA}, 0x10000, v{T1}")
            else:
                S(f"v_and_b32 v{T1}, 15, v{LANE}")
                S(f"v_bfe_u32 v{T2}, v{LANE}, 1, 3")
                S(f"v_lshrrev_b32 v{T3}, 4, v{LANE}")
                S(f"v_xor_b32 v{T2}, v{T2}, v{T3}")
                S(f"v_lshlrev_b32 v{T1}, 7, v{T1}")
                if isB: S(f"v_add_u32 v{T1}, {8*BLK:#x}, v{T1}")
                S(f"v_lshl_add_u32 v{XA}, v{T2}, 4, v{T1}")
                S(f"v_xor_b32 v{XA+1}, 64, v{XA}")
                S(f"v_lshlrev_b32 v{T1}, 3, v{T3}")
                S(f"v_bfe_u32 v{T2}, v{LANE}, 2, 2")
                S(f"v_add_u32 v{T1}, v{T1}, v{T2}")
                S(f"v_lshlrev_b32 v{T1}, 7, v{T1}")
                S(f"v_bfe_u32 v{T2}, v{LANE}, 4, 1")
                S(f"v_bfe_u32 v{T3}, v{LANE}, 3, 1")
                S(f"v_lshl_add_u32 v{T2}, v{T3}, 1, v{T2}")
                S(f"v_xor_b32 v{T2}, s21, v{T2}")
                S(f"v_lshl_add_u32 v{T1}, v{T2}, 5, v{T1}")
                S(f"v_and_b32 v{T2}, 3, v{LANE}")
                S(f"v_lshl_add_u32 v{T1}, v{T2}, 3, v{T1}")
                S(f"v_add_u32 v{WA}, 0x10000, v{T1}")
            for it in plan[-1]:
                if (it[0] == "W") == isB: item(it)
            if cfg.get("defer", 1): cut[0] = len(S.ins)
            S(f"s_mov_b32 s32, {f2u(C0):#x}\ns_mov_b32 s12, {f2u(C1):#x}")
            S(f"v_mov_b32 v{CC0}, s32")
            if cfg.get("pk", 0): S("v_mov_b32 v242, s32")
            S(f"s_lshl2_add_u32 s13, s17, s21\ns_mul_i32 s32, s16, {8*HSTR}\ns_add_u32 s13, s13, s32")
            if off: S(f"v_add_u32 v{VE}, s33, v{L16}\nv_add_u32 v{VE+1}, 0x10000, v{VE}\nv_add_u32 v{VE+2}, 0x20000, v{VE}")
            for g in range(8):
                if eowner(g) != SET: continue
                r = HS + g
                S(gexp(g, r) + f"\ns_mul_i32 s{r}, s{r}, {HSTR}\ns_add_u32 s{r}, s{r}, s13\ns_lshl_b32 s{r}, s{r}, 10")
            if isB:
                S("s_mul_i32 s92, s16, 14336\ns_lshl_b32 s32, s17, 7\ns_add_u32 s92, s92, s32\ns_lshl2_add_u32 s92, s21, s92")
                S(f"v_lshrrev_b32 v{T1}, 1, v{LANE}\nv_lshl_add_u32 v{VF2}, v{T1}, 20, v{L16}")
        if not isB and not spare:
            for n_, ev in enumerate(sorted(set(cfg.get("aflag", {}).values()))):
                r = 4 + n_
                S(f"s_add_u32 s{r}, s17, {ev//2}\ns_and_b32 s{r}, s{r}, 3\ns_mul_i32 s{r}, s{r}, 3584\ns_add_u32 s{r}, s{r}, s92")
                if ev >= 6: S(f"s_and_b32 s32, s{ev-6}, 1\ns_lshl4_add_u32 s{r}, s32, s{r}")
        if isB or spare:
            S(f"s_mov_b32 s{SD}, s10\ns_mov_b32 s{SD+1}, s11\ns_mov_b32 s{SD+2}, {0 if cfg.get('nod') else 1835008}\ns_mov_b32 s{SD+3}, 0x20000")
        if isB:
            S(f"v_bfe_u32 v{T3}, v{LANE}, 4, 1\nv_lshlrev_b32 v{T3}, 2, v{T3}\nv_xor_b32 v{T3}, v{T3}, v{LANE}\nv_and_b32 v{T3}, 7, v{T3}")
            S(f"v_lshrrev_b32 v{T1}, 3, v{LANE}\nv_lshlrev_b32 v{T1}, 10, v{T1}")
            S(f"v_lshl_add_u32 v{VD}, v{T3}, 4, v{T1}")
            if SH2 == 32:
                for q in range(1, 4): S(f"v_add_u32 v{VD+q}, {q*7*1024}, v{VD}")
            else:
                S(f"v_xor_b32 v{VD+1}, 32, v{VD}\nv_add_u32 v{VD+1}, {7*1024}, v{VD+1}\nv_add_u32 v{VD+2}, {14*1024}, v{VD}\nv_add_u32 v{VD+3}, {14*1024}, v{VD+1}")
        S(f"v_and_b32 v{T1}, 15, v{LANE}")
        S("s_lshl_b32 s32, s22, 1\ns_xor_b32 s32, s32, 2")
        S(f"v_subrev_u32 v{T2}, 10, v{T1}\nv_xor_b32 v{T2}, s32, v{T2}\nv_add_u32 v{T2}, 10, v{T2}")
        S(f"v_cmp_le_u32 vcc, 26, v{LANE}")
        S("s_nop 1")
        S(f"v_cndmask_b32 v{T1}, v{T1}, v{T2}, vcc")
        S(f"v_lshl_add_u32 v{T1}, v{T1}, 1, s23")
        S(f"v_mul_u32_u24 v{T2}, 37, v{T1}\nv_lshrrev_b32 v{T2}, 8, v{T2}")
        S(f"v_mul_u32_u24 v{T3}, 7, v{T2}\nv_sub_u32 v{T3}, v{T1}, v{T3}")
        S(f"v_add_u32 v{T3}, s34, v{T3}")
        S(f"v_subrev_u32 v{T4}, 7, v{T3}\nv_min_u32 v{T4}, v{T3}, v{T4}")
        S(f"v_mul_u32_u24 v{T5}, 86, v{T3}\nv_lshrrev_b32 v{T5}, 8, v{T5}\nv_mul_u32_u24 v{T5}, 3, v{T5}\nv_sub_u32 v{T5}, v{T3}, v{T5}")
        S(f"v_lshl_add_u32 v{T5}, v{T5}, 1, 1")
        S(f"v_cmp_le_u32 vcc, 21, v{T1}")
        S(f"v_and_b32 v{T3}, 3, v{T3}\nv_lshlrev_b32 v{T3}, 1, v{T3}")
        S(f"v_cndmask_b32 v{T4}, v{T4}, v{T5}, vcc")
        S(f"v_cmp_le_u32 vcc, 24, v{T1}")
        S(f"v_sub_u32 v{T2}, s35, v{T2}\nv_and_b32 v{T2}, 3, v{T2}")
        S(f"v_cndmask_b32 v{T4}, v{T4}, v{T3}, vcc")
        S(f"v_mad_u32_u24 v{T1}, v{T2}, 7, v{T4}" if XROT else f"v_lshl_add_u32 v{T1}, v{T4}, 2, v{T2}")
        S("s_lshl_b32 s95, s19, 7")
        if isB:
            S("s_lshl_b32 s32, s22, 15\ns_add_u32 s32, s32, s95")
            S(f"v_lshl_add_u32 v{T2}, v{T1}, 16, s32")
            S("s_mul_i32 s32, s18, 3584\ns_lshl4_add_u32 s32, s22, s32")
            S(f"v_lshl_add_u32 v{FV}, v{T1}, 7, s32")
            for j in range(14): S(f"v_readlane_b32 s{TB+j}, v{T2}, {j}")
        else:
            S(f"s_lshl1_add_u32 s32, s18, s22\ns_mul_i32 s32, s32, {HSTR*1024}")
            if cfg.get("hfake"):
                S(f"s_lshl1_add_u32 s32, s35, s22\ns_mul_i32 s32, s32, {HSTR*1024}\ns_and_b32 s84, s14, 1\ns_lshl_b32 s84, s84, 20\ns_add_u32 s32, s32, s84")
                S("s_mov_b32 s84, s4\ns_mov_b32 s85, s5\ns_mov_b32 s86, 0x200000\ns_mov_b32 s87, 0x20000")
            S(f"v_lshl_add_u32 v{T2}, v{T1}, 12, s32")
            S(f"v_lshrrev_b32 v{T1}, 5, v{LANE}")
            for j in range(14): S(f"v_readlane_b32 s{TB+j}, v{T2}, {16+j}")
            if SH2 == 32:
                S(f"v_lshlrev_b32 v{T1}, 3, v{T1}")
                S(f"v_bfe_u32 v{T2}, v{LANE}, 2, 2")
                S(f"v_add_u32 v{T1}, v{T1}, v{T2}")
                S(f"v_lshlrev_b32 v{T1}, 7, v{T1}")
                S(f"v_bfe_u32 v{T2}, v{LANE}, 3, 1")
                S(f"v_lshl_add_u32 v{T1}, v{T2}, 6, v{T1}")
                S(f"v_bfe_u32 v{T2}, v{LANE}, 4, 1")
                S(f"v_lshl_add_u32 v{T1}, v{T2}, 5, v{T1}")
                S(f"v_and_b32 v{T2}, 1, v{LANE}")
                S(f"v_lshl_add_u32 v{T1}, v{T2}, 4, v{T1}")
                S(f"v_bfe_u32 v{T2}, v{LANE}, 1, 1")
                S(f"v_lshl_add_u32 v{T1}, v{T2}, 3, v{T1}")
                S(f"s_lshl_b32 s32, s23, 13\ns_add_u32 s32, s32, {blk[('D', 0)]*BLK}")
                S(f"v_add_u32 v{DA+1}, s32, v{T1}")
                S(f"s_lshl_b32 s32, s23, 6\nv_xor_b32 v{DA+1}, s32, v{DA+1}")
                S(f"v_xor_b32 v{DA}, 64, v{DA+1}")
                S("s_cmp_eq_u32 s22, 1")
                o1 = [blk[("D", 9)]] + [blk[("D", 10 + i)] for i in range(4)]
                o0 = [blk[("D", 9)]] + [blk[("D", 10 + (i ^ 2))] for i in range(4)]
                for i in range(4): S(f"s_cselect_b32 s{88+i}, {o1[i+1]-o1[i]}, {o0[i+1]-o0[i]}")
                for i in range(4): S(f"s_lshl_b32 s{88+i}, s{88+i}, 14")
            else:
                S(f"v_lshrrev_b32 v{T1}, 4, v{LANE}\nv_lshlrev_b32 v{T1}, 3, v{T1}")
                S(f"v_bfe_u32 v{T2}, v{LANE}, 2, 2")
                S(f"v_add_u32 v{T1}, v{T1}, v{T2}")
                S(f"v_lshlrev_b32 v{T1}, 7, v{T1}")
                S(f"v_bfe_u32 v{T2}, v{LANE}, 3, 1")
                S(f"v_lshl_add_u32 v{T1}, v{T2}, 6, v{T1}")
                S(f"v_bfe_u32 v{T2}, v{LANE}, 4, 1")
                S(f"v_lshl_add_u32 v{T1}, v{T2}, 5, v{T1}")
                S(f"v_and_b32 v{T2}, 3, v{LANE}")
                S(f"v_lshl_add_u32 v{T1}, v{T2}, 3, v{T1}")
                S(f"s_lshl_b32 s32, s23, 13\ns_add_u32 s32, s32, {blk[('D', 0)]*BLK}")
                S(f"v_add_u32 v{DA+2}, s32, v{T1}")
                S(f"s_lshl_b32 s32, s23, 6\nv_xor_b32 v{DA+2}, s32, v{DA+2}")
                S(f"v_xor_b32 v{DA+3}, 32, v{DA+2}\nv_xor_b32 v{DA}, 64, v{DA+2}\nv_xor_b32 v{DA+1}, 64, v{DA+3}")
                S(f"v_lshrrev_b32 v{T1}, 4, v{LANE}\nv_lshlrev_b32 v{T1}, 9, v{T1}\nv_and_b32 v{T2}, 0xf0, v{L16}\nv_add_u32 v{DA+4}, v{T1}, v{T2}")
                S("s_cmp_eq_u32 s22, 1")
                o1 = [blk[("D", 9)]] + [blk[("D", 10 + i)] for i in range(4)]
                o0 = [blk[("D", 9)]] + [blk[("D", 10 + (i ^ 2))] for i in range(4)]
                for i in range(4): S(f"s_cselect_b32 s{88+i}, {o1[i+1]-o1[i]}, {o0[i+1]-o0[i]}")
                for i in range(4): S(f"s_lshl_b32 s{88+i}, s{88+i}, 14")
            S(f"s_mov_b32 s{SW}, s26\ns_mov_b32 s{SW+1}, s27\ns_mov_b32 s{SW+2}, 0x200000\ns_mov_b32 s{SW+3}, 0x20000")
            if cfg.get("o64", 0):
                S(f"v_and_b32 v{T1}, 15, v{LANE}\nv_lshlrev_b32 v{T1}, 10, v{T1}\nv_lshrrev_b32 v{T2}, 5, v{LANE}\nv_lshl_add_u32 v{T1}, v{T2}, 4, v{T1}\nv_bfe_u32 v{T2}, v{LANE}, 4, 1\nv_lshl_add_u32 v{VOUT}, v{T2}, 5, v{T1}")
            else:
                S(f"v_and_b32 v{T1}, 31, v{LANE}\nv_lshlrev_b32 v{T1}, 10, v{T1}\nv_lshrrev_b32 v{T2}, 5, v{LANE}\nv_lshl_add_u32 v{VOUT}, v{T2}, 4, v{T1}")
            S("s_lshl_b32 s32, s18, 16\ns_add_u32 s95, s95, s32\ns_lshl_b32 s32, s22, 15\ns_add_u32 s95, s95, s32\ns_lshl_b32 s32, s23, 6\ns_add_u32 s95, s95, s32")
            S(f"s_add_u32 s32, s33, {blk[('D', XJ)]*BLK}\nv_add_u32 v{VEX}, s32, v{L16}\nv_xor_b32 v{VEX+1}, 0x2000, v{VEX}")
        S(f"s_mov_b32 s{SH}, s30\ns_mov_b32 s{SH+1}, s31\ns_mov_b32 s{SH+2}, {0 if cfg.get('noh') else 64*HSTR*1024}\ns_mov_b32 s{SH+3}, 0x20000")
        lateq = []
        if cut[0] is not None:
            lateq = [re.sub(r"\bs32\b", "s85", i["t"]) for i in S.ins[cut[0]:]]
            del S.ins[cut[0]:]
        def late(n):
            while lateq and n > 0:
                S(lateq.pop(0)); n -= 1
            while lateq and lateq[0].startswith(("s_cselect", "s_addc", "v_cndmask", "s_nop", "v_readlane")):
                S(lateq.pop(0))
        if lite and not isB: S(f"v_mov_b32 v{LT}, 0\nv_mov_b32 v{LT+1}, 0\nv_mov_b32 v{LT+2}, 0")
        myplan = {s: [] for s in range(NST)}
        def c3x():
            S(f"s_mov_b32 s{SX}, s4\ns_mov_b32 s{SX+1}, s5\ns_mov_b32 s{SX+2}, 0x200000\ns_mov_b32 s{SX+3}, 0x20000")
            S(f"v_lshrrev_b32 v{T1}, 3, v{LANE}\nv_lshlrev_b32 v{T1}, 10, v{T1}\nv_and_b32 v{T2}, 0x70, v{L16}\nv_add_u32 v{T1}, v{T1}, v{T2}")
            S("s_lshl2_add_u32 s32, s16, s21\ns_lshl_b32 s32, s32, 16\ns_add_u32 s32, s32, 384")
            for i in range(8):
                S.add(f"buffer_load_dwordx4 v[{64+4*i}:{67+4*i}], v{T1}, s[{SX}:{SX+3}], s32 offen", vm=("c3x", i))
                S("s_add_u32 s32, s32, 8192")
        def c3w():
            S("s_cmp_eq_u32 s22, 0")
            S(f"s_cselect_b32 s{SX}, s6, s8\ns_cselect_b32 s{SX+1}, s7, s9\ns_mov_b32 s{SX+2}, 1835008\ns_mov_b32 s{SX+3}, 0x20000")
            S(f"v_min_u32 v{T1}, 880, v{L16}")
            S("s_lshl1_add_u32 s32, s35, s23\ns_lshl_b32 s32, s32, 3\ns_add_u32 s32, s32, 192\ns_mul_i32 s32, s32, 3584\ns_lshr_b32 s96, s14, 1\ns_mul_i32 s96, s96, 896\ns_add_u32 s32, s32, s96")
            for i in range(8):
                S.add(f"buffer_load_dwordx4 v[{128+4*i}:{131+4*i}], v{T1}, s[{SX}:{SX+3}], s32 offen", vm=("c3w", i))
                S("s_add_u32 s32, s32, 3584")
        def c3p():
            S(f"s_mov_b32 s{SX}, s4\ns_mov_b32 s{SX+1}, s5\ns_mov_b32 s{SX+2}, 0x200000\ns_mov_b32 s{SX+3}, 0x20000")
            S(f"v_lshrrev_b32 v{T1}, 3, v{LANE}\nv_lshlrev_b32 v{T1}, 10, v{T1}\nv_and_b32 v{T2}, 0x70, v{L16}\nv_add_u32 v{T1}, v{T1}, v{T2}")
            for pp in range(NS // 2):
                S(f"s_add_u32 s32, s84, {pp}\ns_and_b32 s32, s32, 3\ns_lshl2_add_u32 s32, s16, s32\ns_lshl2_add_u32 s32, s32, s21\ns_lshl_b32 s32, s32, 14\ns_add_u32 s32, s32, 384")
                for i in range(2):
                    S.add(f"buffer_load_dwordx4 v[{160+8*pp+4*i}:{163+8*pp+4*i}], v{T1}, s[{SX}:{SX+3}], s32 offen", vm=("c3p", pp, i))
                    S("s_add_u32 s32, s32, 8192")
        def xpair(n_):
            S(f"s_mov_b32 s{SX}, s4\ns_mov_b32 s{SX+1}, s5\ns_mov_b32 s{SX+2}, 0x200000\ns_mov_b32 s{SX+3}, 0x20000")
            S(f"s_add_u32 s32, s84, {n_}\ns_and_b32 s32, s32, 3\ns_lshl2_add_u32 s32, s16, s32\ns_lshl_b32 s32, s32, 16\ns_lshl_b32 s96, s21, 12\ns_add_u32 s32, s32, s96")
            for i in range(16):
                if i and i % 4 == 0: S("s_add_u32 s32, s32, 16384")
                S.add(f"buffer_load_dwordx4 v[{64+4*i}:{67+4*i}], v{L16}, s[{SX}:{SX+3}], s32 offen offset:{(i%4)*1024}", vm=("xp", n_, i), need_vm=([("xp", n_-1, i)] if str(n_-1) in cfg["spare_order"] else []))
        def warm():
            S("s_sub_u32 s32, s2, 224\ns_lshl2_add_u32 s32, s32, s21\ns_mul_i32 s32, s32, 14336")
            for i in range(14):
                if i and i % 4 == 0: S("s_add_u32 s32, s32, 4096")
                S.add(f"buffer_load_dwordx4 v[{4*i}:{4*i+3}], v{L16}, s[{SD}:{SD+3}], s32 offen offset:{(i%4)*1024}", vm=("wm", i))
        if spare:
            if isB:
                S("s_barrier")
                for j in range(10): item(("D", j))
                for j in range(10, 14): myplan[sched[("D", j)]].append(("D", j))
            else:
                S("s_barrier")
                for f in cfg.get("spare_order", "wxm"): {"w": c3w, "x": c3x, "m": warm, "p": c3p, "1": lambda: xpair(1), "2": lambda: xpair(2), "3": lambda: xpair(3), "b": lambda: S("s_barrier")}[f]()
                S.add("" if "b" in cfg.get("spare_order", "wxm") else "s_barrier", need_vm=["ALL"])
        elif isB:
            myplan = {s: plan[s] for s in range(NST)}

        M = []
        pooln = [0]
        def pool():
            r = POOL + 4 * (pooln[0] % NPOOL); pooln[0] += 1; return r
        def wreads(i):
            wo = (blk[("W", i)] - 4) * BLK
            out = {}
            for sl in range(4):
                slot = 4*i + sl; wreg = WR + 4*slot
                off = wo + sl*2048 if SH1 == 32 else wo + (sl % 2)*8192 + (sl // 2)*4096
                out[slot] = [(("w", slot, j), f"ds_read_b64_tr_b16 v[{wreg+2*j}:{wreg+2*j+1}], v{WA} offset:{off + j*512}") for j in range(2)]
            return out
        def p1(step, i, g, xo, readw):
            a = ACC[accof[g]]
            wr = wreads(i) if readw else {}
            lastg = (g == groups[SET][-1])
            res = []
            if SH1 == 32:
                for ks in range(4):
                    slot = 4*i + ks
                    res.append([dict(step=step, d=a, n=16, A=WR + 4*slot, rd=wr.get(slot, []), xrd=(("x", g, slot), f"v{XA+ks} offset:{xo}"),
                                     first=(slot == 0), last=(slot == 31), g=g, wdead=(slot if lastg else None), slot=slot)])
            else:
                for k2 in range(2):
                    sub_l = []
                    for sub in range(2):
                        for mat in range(2):
                            slot = 4*i + 2*k2 + mat
                            sub_l.append(dict(step=step, d=a + 8*mat + 4*sub, n=4, A=WR + 4*slot, rd=(wr.get(slot, []) if sub == 0 else []),
                                              xrd=((("x", g, i, k2, sub), f"v{XA+k2} offset:{xo + sub*2048}") if mat == 0 else None),
                                              first=(i == 0 and k2 == 0), last=(i == 7 and k2 == 1 and sub == 1 and mat == 1), g=g,
                                              wdead=(slot if lastg and sub == 1 else None), slot=slot))
                    res.append(sub_l)
            return res
        def push(lst):
            for m in lst:
                if m["xrd"] is not None:
                    xr = pool(); push.cur = xr
                    m["rd"] = m["rd"] + [(m["xrd"][0], f"ds_read_b128 v[{xr}:{xr+3}], {m['xrd'][1]}")]
                    m["pool"] = 1
                else: m["pool"] = 0
                m["B"] = push.cur
                M.append(m)
        if not spare and not isB:
            for i in range(8):
                gs = [p1(i, i, g, (blk[("X", i // 2)]*BLK + (2*(i % 2) + u)*4096 if NS == 2 else blk[("X", i)]*BLK + u*4096), u == 0) for u, g in enumerate(SP)]
                for parts in zip(*gs):
                    for u in parts: push(u)
            for n_, g in enumerate(AL):
                for i in range(8):
                    for u in p1(8 + 2*n_ + i // 4, i, g, blk[("X", XS + 2*n_ + i // 4)]*BLK + (i % 4)*4096, False): push(u)
        if not spare and isB:
            for n_, (g, bs) in enumerate(bgroups):
                for i in range(8):
                    assert bs[i] >= i
                    for u in p1(bs[i], i, g, (blk[("Y", 2*n_ + i // 4)] - 8)*BLK + (i % 4)*4096, False): push(u)
        if not isB and SH2 == 16:
            for j in range(14):
                order = [(k2, i) for k2 in range(2) for i in range(4)] if j < 13 else [(k2, 2*t + jj) for t in range(2) for k2 in range(2) for jj in range(2)]
                seen = set()
                for k2, i in order:
                    r = pool()
                    rd = []
                    if j > 0 and i not in seen:
                        dl = f"s{88 + j - 10}" if j >= 10 else f"{((blk[('D', j)] - blk[('D', j-1)]) * BLK) & 0xffffffff:#x}"
                        rd.append((None, f"v_add_u32 v{DA+i}, {dl}, v{DA+i}"))
                    seen.add(i)
                    rd += [(("d", j, k2, i, jj), f"ds_read_b64_tr_b16 v[{r+2*jj}:{r+2*jj+1}], v{DA+i} offset:{k2*4096 + jj*512}") for jj in range(2)]
                    for sub in range(2):
                        n = 4*j + 2*k2 + sub
                        M.append(dict(step=P2 + j // 2, d=A2[i // 2] + 8*(i % 2) + 4*sub, n=4, A=r, B=WR + 4*(n % 32), first=(j == 0 and k2 == 0),
                                      rd=(rd if sub == 0 else []), h=n, hc=(n + 1 if i == 3 else 4*j + 2*k2), last=False, pool=(1 if sub == 0 else 0)))
        TK = cfg.get("tk", 4)
        if not isB and SH2 == 32:
            order = [(n, t) for n in range(56 - TK) for t in range(2)] + [(n, t) for t in range(2) for n in range(56 - TK, 56)]
            for n, t in order:
                j, ks = n // 4, n % 4
                r = pool()
                rd = []
                if j > 0 and ks == 0:
                    dl = f"s{88 + j - 10}" if j >= 10 else f"{((blk[('D', j)] - blk[('D', j-1)]) * BLK) & 0xffffffff:#x}"
                    rd.append((None, f"v_add_u32 v{DA+t}, {dl}, v{DA+t}"))
                rd += [(("d", j, ks, t, jj), f"ds_read_b64_tr_b16 v[{r+2*jj}:{r+2*jj+1}], v{DA+t} offset:{ks*2048 + jj*512}") for jj in range(2)]
                M.append(dict(step=P2 + j // 2, d=A2[t], n=16, A=r, B=WR + 4*(n % 32), first=(n == 0), rd=rd, h=n, t=t, last=False, pool=1))
        NM = len(M)
        cum = [0]
        for m in M: cum.append(cum[-1] + m["pool"])
        def epi(g):
            a = ACC[baccof[g] if (isB and g in off) else accof[g]]
            L = []
            if g in off and not isB:
                b = off[g]
                return [dict(text=f"ds_write_b128 v{VE + b // 4}, v[{a+4*i}:{a+4*i+3}] offset:{(b % 4)*BLK + 1024*i}", lds=("ew", g, i), vr=range(a+4*i, a+4*i+4), cost=99) for i in range(4)]
            T = lambda i: TMP + i
            idx = range(8)
            TC = cfg.get("tcost", 2)
            if cfg.get("mix", 0):
                nl = [("er", g, 3)] if g in off else []
                stg = lambda i: [dict(text=f"v_mul_f32 v{T(i)}, v{a+i}, v{a+i}", vr=[a+i], cost=1, nl=nl),
                                 dict(text=f"v_fma_f32 v{T(i)}, v{T(i)}, s12, v{CC0}", cost=1),
                                 dict(text=f"v_mul_f32 v{T(i)}, v{T(i)}, v{a+i}", cost=1),
                                 dict(text=f"v_exp_f32 v{T(i)}, v{T(i)}", cost=TC, trans=T(i)),
                                 dict(text=f"v_mul_f32 v{a+8+i}, v{a+i}, v{a+8+i}", vr=[a+8+i], cost=1),
                                 dict(text=f"v_add_f32 v{T(i)}, 1.0, v{T(i)}", vr=[T(i)], cost=1),
                                 dict(text=f"v_rcp_f32 v{T(i)}, v{T(i)}", cost=TC, trans=T(i)),
                                 dict(text=f"v_mul_f32 v{a+8+i}, v{a+8+i}, v{T(i)}", vr=[T(i)], cost=1)]
                al_ = {i: stg(i) for i in idx}
                if cfg.get("pk", 0):
                    P = lambda r: f"v[{r}:{r+1}]"
                    PC = cfg.get("pcost", 1)
                    which = cfg["pk"]
                    for i in range(0, 8, 2):
                        pkop = {0: dict(text=f"v_pk_mul_f32 {P(T(i))}, {P(a+i)}, {P(a+i)}", vr=[a+i, a+i+1], cost=PC),
                                1: dict(text=f"v_pk_fma_f32 {P(T(i))}, {P(T(i))}, s[12:13], {P(242)} op_sel_hi:[1,0,0]", cost=PC),
                                2: dict(text=f"v_pk_mul_f32 {P(T(i))}, {P(T(i))}, {P(a+i)}", cost=PC),
                                4: dict(text=f"v_pk_mul_f32 {P(a+8+i)}, {P(a+i)}, {P(a+8+i)}", vr=[a+8+i, a+9+i], cost=PC)}
                        for k_ in which:
                            al_[i][k_] = pkop[k_]; al_[i+1][k_] = None
                o_ = HOLDR if g in cfg.get("hold", ()) else a
                if cfg.get("cvtspread", 1):
                    for i in range(1, 8, 2):
                        al_[i].append(None)
                        al_[i].append(dict(text=f"v_cvt_pk_bf16_f32 v{o_+i//2}, v{a+7+i}, v{a+8+i}", cost=cfg.get("ccost", 1), vw=[o_+i//2]))
                ops = sorted(((2*i + k_, i, k_) for i in idx for k_ in range(len(al_[i]))))
                L += [al_[i][k_] for _, i, k_ in ops if al_[i][k_] is not None]
                if cfg.get("noepi"): L = [dict(text="", cost=e_["cost"]) for e_ in L]
                idx = ()
            for i in idx: L.append(dict(text=f"v_mul_f32 v{T(i)}, v{a+i}, v{a+i}", vr=[a+i], cost=1, nl=([("er", g, 3)] if g in off else [])))
            for i in idx: L.append(dict(text=f"v_fma_f32 v{T(i)}, v{T(i)}, s12, v{CC0}", cost=1))
            for i in idx: L.append(dict(text=f"v_mul_f32 v{T(i)}, v{T(i)}, v{a+i}", cost=1))
            for i in idx:
                L.append(dict(text=f"v_exp_f32 v{T(i)}, v{T(i)}", cost=2, trans=T(i)))
                L.append(dict(text=f"v_mul_f32 v{a+8+i}, v{a+i}, v{a+8+i}", vr=[a+8+i], cost=1))
            for i in idx: L.append(dict(text=f"v_add_f32 v{T(i)}, 1.0, v{T(i)}", vr=[T(i)], cost=1))
            for i in idx: L.append(dict(text=f"v_rcp_f32 v{T(i)}, v{T(i)}", cost=2, trans=T(i)))
            for i in idx: L.append(dict(text=f"v_mul_f32 v{a+8+i}, v{a+8+i}, v{T(i)}", vr=[T(i)], cost=1))
            o = HOLDR if g in cfg.get("hold", ()) else a
            if not (cfg.get("mix", 0) and cfg.get("cvtspread", 1)):
                for i in range(4): L.append(dict(text=f"v_cvt_pk_bf16_f32 v{o+i}, v{a+8+2*i}, v{a+8+2*i+1}", cost=1, vw=[o+i]))
            if SH1 == 16:
                for i in range(2): L.append(dict(text=f"v_permlane16_swap_b32 v{o+i}, v{o+2+i}", cost=1, pr=[o+i, o+2+i]))
            L.append(dict(text=f"buffer_store_dwordx4 v[{o}:{o+3}], v{L16}, s[{SH}:{SH+3}], s{HS+g} offen sc1", vm=("st", g), cost=1))
            return L
        def put(e):
            if e.get("vm"):
                g = e["vm"][1]
                if g in hold:
                    assert not held; held.append((e, -100)); return
                for h_, _ in held: S.add(h_["text"], vm=h_["vm"])
                held.clear()
            S.add(e["text"], vm=e.get("vm"), lds=e.get("lds"), need_lds=e.get("nl", ()), vr=e.get("vr", ()), trans=e.get("trans"), vw=e.get("vw", ()), pr=e.get("pr", ()))
        aflag = cfg.get("aflag", {})
        hold = cfg.get("hold", ())
        held = []
        covers = lambda ev: (ev - 1, ev) if ev < 6 else (ev,)
        flagged = set()
        def flag(ev):
            nv = [("st", g) for g in covers(ev) if eowner(g) == 1]
            S(f"s_add_u32 s97, s84, {ev//2}\ns_and_b32 s97, s97, 3\ns_mul_i32 s97, s97, 3584\ns_add_u32 s97, s97, s92")
            if ev >= 6: S(f"s_and_b32 s13, s{ev-6}, 1\ns_lshl4_add_u32 s97, s13, s97")
            S.add(f"buffer_store_dword v{TAG}, v{VF2 if ev < 6 else VF}, s[{SF}:{SF+3}], s97 offen sc1", vm=("flag", ev), need_vm=nv)
            flagged.add(ev)
        def tag_issue():
            S("s_load_dwordx2 s[14:15], s[74:75], 0")
            if isB and cfg.get("swarm", 1): S(f"s_load_dword s4, s[{SF}:{SF+1}], {FSZ-64}")
        def tag_check():
            S("s_mov_b32 s97, 0")
            S.add("s_waitcnt lgkmcnt(0)", need_lds=["ALL"])
            S(f"L_tag{sfx}:")
            S("s_cmp_lg_u32 s15, 0")
            S(f"s_cbranch_scc1 L_tagok{sfx}")
            S("~s_add_u32 s97, s97, 1")
            S("~s_cmp_ge_u32 s97, 0x100000")
            S(f"~s_cbranch_scc1 L_tagok{sfx}")
            S("~s_sleep 2")
            S(f"~v_mov_b32 v{PR+2}, 0")
            S(f"~global_load_dwordx2 v[{PR}:{PR+1}], v{PR+2}, s[74:75] sc1")
            S("~s_waitcnt vmcnt(0)")
            S(f"~v_readfirstlane_b32 s14, v{PR}")
            S(f"~v_readfirstlane_b32 s15, v{PR+1}")
            S("~s_nop 1")
            S(f"~s_branch L_tag{sfx}")
            S(f"L_tagok{sfx}:")
            S(f"v_mov_b32 v{TAG}, s14")
            S("s_mov_b32 s15, s14")
        polling = [None]
        pmask = lambda c: (((1 << pg[c][1]) - 1) ^ ((1 << pg[c][0]) - 1)) << 16
        PD4 = (4, 8, 24, 28)
        def poll_loads(c, pre=""):
            for i in range(pg[c][1] - pg[c][0]):
                S(f"{pre}s_load_dwordx4 s[{PD4[i]}:{PD4[i]+3}], s[{SF}:{SF+1}], s{88+i} glc")
        def poll_issue(c):
            assert polling[0] is None; polling[0] = c
            for i, j in enumerate(range(*pg[c])): S(f"v_readlane_b32 s{88+i}, v{FV}, {16+j}")
            S.add("s_nop 3", need_lds=["ALL"])
            poll_loads(c)
        def poll_check(c):
            assert polling[0] == c; polling[0] = None
            prs = [r + d for r in PD4[:pg[c][1] - pg[c][0]] for d in (0, 2)]
            S("s_mov_b32 s96, 0")
            S(f"L_poll{sfx}{c}:")
            S.add("s_waitcnt lgkmcnt(0)", need_lds=["ALL"])
            for r in prs: S(f"s_xor_b64 s[{r}:{r+1}], s[{r}:{r+1}], s[14:15]")
            for r in prs[1:]: S(f"s_or_b64 s[4:5], s[4:5], s[{r}:{r+1}]")
            S(f"s_cbranch_scc0 L_ok{sfx}{c}")
            S("~s_add_u32 s96, s96, 1")
            S("~s_cmp_ge_u32 s96, 0x100000")
            S(f"~s_cbranch_scc1 L_ok{sfx}{c}")
            if spare: S(f"~s_sleep {8 if c == 0 else 2}")
            S("~s_and_b32 s4, s96, 63")
            S(f"~s_cbranch_scc1 L_sp{sfx}{c}")
            S(f"~s_mov_b64 exec, {pmask(c):#x}")
            S(f"~buffer_load_dwordx4 v[{PR}:{PR+3}], v{FV}, s[{SF}:{SF+3}], 0 offen sc1")
            S("~s_mov_b64 exec, -1")
            S("~s_waitcnt vmcnt(0)")
            S(f"~v_cmp_eq_u64 vcc, s[14:15], v[{PR}:{PR+1}]")
            S(f"~v_cmp_eq_u64_e64 s[4:5], s[14:15], v[{PR+2}:{PR+3}]")
            S("~s_nop 1")
            S("~s_and_b32 s4, s4, vcc_lo")
            S(f"~s_andn2_b32 s4, {pmask(c):#x}, s4")
            S(f"~s_cbranch_scc0 L_ok{sfx}{c}")
            S(f"L_sp{sfx}{c}:")
            poll_loads(c, "~")
            S(f"~s_branch L_poll{sfx}{c}")
            S(f"L_ok{sfx}{c}:")
        pts = [(rel(a), rel(b)) for a, b in (cfg["ppts_s"] if spare else cfg["ppts"])]
        def points(s, k):
            if not spare:
                if cfg["tag_pts"][0] == (s, k): tag_issue()
                if cfg["tag_pts"][1] == (s, k): tag_check()
                for ev, pt in flag_pts.items():
                    if pt == (s, k): flag(ev)
            for c, (pi, pc) in enumerate(pts):
                if pc == (s, k) and pi != pc: poll_check(c)
            for c, (pi, pc) in enumerate(pts):
                if pi == (s, k):
                    poll_issue(c)
                    if pi == pc: poll_check(c)

        first = P2 - 2 if spare else 0
        st = dict(rd=0, h=0, bar=first - 1, wdead=(32 if spare else 0), n=0, hcons=0, ok=0)
        epq = []; dmaq = []; lpend = []; wq = []
        def barrier():
            s = st["bar"] + 1
            assert not dmaq
            late(cfg.get("late_at", ({1: 70, 2: 40, 3: 0, 4: 50, 5: 999},) * 2)[SET].get(s, 0))
            nv = [(k, i, 3) for (k, i) in issued if vstep(first_use((k, i))) < next_bar(s)]
            drain = ["ALL"] if (isB or s < ES) else []
            if not spare and not isB:
                for ev, pt in flag_pts.items():
                    if s == prev_bar(pt[0]): nv += [("st", g) for g in covers(ev) if eowner(g) == 0]
            lt = lite and not isB
            if not isB and not spare and aflag and s == cfg["atag"][1]: tag_check()
            if s not in nobar:
                if lt:
                    S.add("s_waitcnt lgkmcnt(0)" if drain else "", need_lds=drain, need_vm=nv)
                    for (r, v, idx) in lpend: S(f"v_writelane_b32 v{v}, s{r}, {idx}")
                    lpend.clear()
                    S("s_memtime s[8:9]"); lpend.append((8, LT + 1, s + 1))
                S.add("s_barrier", need_lds=drain, need_vm=nv)
            if lt:
                r = [x for x in (98, 96, 6) if not any(y[0] == x for y in lpend)][0]
                S(f"s_memtime s[{r}:{r+1}]"); lpend.append((r, LT + 2, s + 1))
                if s not in nobar: S("s_memrealtime s[10:11]"); lpend.append((10, LT, s + 1))
            st["bar"] = s
            if not isB and not spare and aflag and s == cfg["atag"][0]: tag_issue()
            if isB and cfg.get("diag") == s: S("s_memrealtime s[98:99]\ns_waitcnt lgkmcnt(0)")
            for c, (pi, pc) in enumerate(pts):
                if s == next_bar(pc[0]): st["ok"] = max(st["ok"], pg[c][1])
            for it in myplan[s]:
                if it[0] == "D": assert not lateq
                if it[0] == "D" and it[1] in stage and not spare: continue
                su, dm = item_ops(it)
                dmaq.append((su, None, None))
                for k, (t, tag) in enumerate(dm): dmaq.append((t, tag, it if k == 3 else None))
            if isB and not spare:
                for j, ss in stage.items():
                    if ss == s:
                        assert st["n"] == NM or sreg[j] >= 128, "W registers of set B still in use"
                        for q in range(4):
                            r = sreg[j] + 4*q
                            dmaq.append((f"buffer_load_dwordx4 v[{r}:{r+3}], v{VD+q}, s[{SD}:{SD+3}], s{TB+j} offen offset:{1024*q}", ("sg", j, q), None))
        def unstage(s):
            for it in myplan[s]:
                if it[0] == "D" and it[1] in stage and not spare:
                    j = it[1]
                    S(f"s_add_u32 s32, s33, {blk[it]*BLK}\nv_add_u32 v{XA+3}, s32, v{L16}")
                    for q in range(4):
                        r = sreg[j] + 4*q
                        S.add(f"ds_write_b128 v{XA+3}, v[{r}:{r+3}] offset:{1024*q}", lds=("us", j, q), need_vm=[("sg", j, q)])
        def issue_dma(n):
            while dmaq and n > 0:
                t, tag, it = dmaq.pop(0)
                if tag is None: S(t); continue
                S.add(t, vm=tag); n -= 1
                if it: issued.append(it)
        def issue_reads(n, maxn, lim):
            cnt = 0
            while st["rd"] < NM and (M[st["rd"]]["step"] if isB else vstep(M[st["rd"]]["step"])) < lim and cnt < maxn:
                k = st["rd"]
                lo = cum[n + 1] - 1 if n >= 0 else 0
                if cum[k + 1] - lo > (cfg.get("look2", 6) if "h" in M[k] else cfg.get("look", NPOOL)): break
                for (i, t) in M[k]["rd"]: S.add(t, lds=i)
                if M[k]["rd"]: cnt += 1
                st["rd"] += 1
        def issue_h(maxn):
            cnt = 0
            while st["h"] < 56 and cnt < maxn:
                h = st["h"]
                lim = 56 if spare else hmax.get(st["bar"], 0 if st["bar"] < min(hmax) else 56)
                if not (h < lim and (h < st["wdead"] if h < 32 else h - 32 < st["hcons"]) and h // 4 < st["ok"]): break
                r = WR + 4 * (h % 32)
                S.add(f"buffer_load_dwordx4 v[{r}:{r+3}], v{L16 if SH2 == 32 else DA+4}, s[{SH}:{SH+3}], s{TB + h//4} offen offset:{(h % 4)*1024 if SH2 == 32 else (h % 4 // 2)*2048 + (h % 2)*256} sc1", vm=("h", h))
                st["h"] += 1; cnt += 1
        def issue_epi(budget):
            used = 0
            while epq and used < budget:
                e = epq[0][0].pop(0)
                put(e); used += e["cost"]
                if not epq[0][0]: epq.pop(0)
            return used
        WB = cfg.get("wb", 2)
        def mfma():
            n = st["n"]; m = M[n]
            ph2 = "h" in m
            nv = [("h", m["h"])] if ph2 else []
            if ph2: assert m["h"] < st["h"], ("h not issued", m["h"], st["h"], n)
            assert st["rd"] > n, ("reads not issued", n)
            if m["first"]:
                for e in epq + held + wq: assert not (e[1] <= m["d"] < e[1] + 16), ("acc reuse", n, m["step"])
            d, nn = m["d"], m["n"]
            c = "0" if m["first"] else f"v[{d}:{d+nn-1}]"
            op = "v_mfma_f32_32x32x16_bf16" if nn == 16 else "v_mfma_f32_16x16x32_bf16"
            wb = WB * (1 if nn == 16 else 2)
            nl = [i for k in range(n, min(n + (wb if n % wb == 0 else 1), st["rd"])) for i, _ in M[k]["rd"] if i is not None]
            if isB: nl += [("w", m["slot"], 0), ("w", m["slot"], 1)]
            S.add(f"{op} v[{d}:{d+nn-1}], v[{m['A']}:{m['A']+3}], v[{m['B']}:{m['B']+3}], {c}" if not (cfg.get("nomf") and n % 2) else "", need_lds=nl, need_vm=nv, mw=(d, d + nn - 1))
            if m.get("wdead") is not None: st["wdead"] = m["wdead"] + 1
            if m["last"]:
                ent = [epi(m["g"]), ACC[accof[m["g"]]], n + 1 + (cfg.get("elast", 4 * MUL) if m["g"] == groups[0][-1] else cfg.get("estart", 4) * MUL), m["g"]]
                if m["g"] in off: wq.append(ent)
                else: epq.append(ent)
            if ph2: st["hcons"] = max(st["hcons"], m["hc"]) if "hc" in m else m["h"] + m["t"]
            st["n"] += 1
            if ph2:
                w0 = NM - TK + 1
                if n in (w0, w0 + 1):
                    for i in (2*(n - w0), 2*(n - w0) + 1):
                        S.add(f"ds_write_b128 v{VEX}, v[{A2[0]+4*i}:{A2[0]+4*i+3}] offset:{1024*i}", lds=("xw", i), vr=range(A2[0]+4*i, A2[0]+4*i+4))
                if n == NM - 1 - cfg.get("tb", 0): exch()
        def exch():
            assert st["rd"] == NM
            S.add("s_barrier", need_lds=["ALL"])
            for i in range(4):
                S.add(f"ds_read_b128 v[{RED+4*i}:{RED+4*i+3}], v{VEX+1} offset:{1024*i}", lds=("xr", i))
        if isB and not spare and cfg.get("pages", 0) == 1:
            for p_ in range(1, touch["n"]):
                if (p_ - 1) % 4 // 2 != var: continue
                S(f"s_cmp_eq_u32 s22, {(p_ - 1) % 2}")
                S(f"s_cbranch_scc0 L_nt{sfx}{p_}")
                S(f"s_call_b64 s[98:99], L_stub{p_}")
                S(f"L_nt{sfx}{p_}:")
        if not isB and not spare and cfg.get("pages", 0) == 3: S("@TOUCH@")
        prio = cfg.get("prio", (1, 0))
        S(f"s_setprio {prio[SET]}")
        if spare and isB:
            tag_issue(); tag_check()
            points(first - 1, 99)
        lastB = max([next_bar(pc[0]) for _, pc in pts] + [vstep(first_use(("D", 13)))])
        for s in range(first, NST):
            if isB and s > lastB: break
            barrier()
            end = st["n"]
            while end < NM and M[end]["step"] <= s: end += 1
            if not isB:
                BK = cfg.get("bk", 3) * (MUL if s < P2 else MUL2)
                if s + 1 >= ES: BK = 0
                if s < LAST and end > st["n"]: end -= BK
                issue_reads(st["n"] - 1, 99, next_bar(s))
                if spare and s < P2: issue_h(99)
                k = 0
                while st["n"] < end:
                    mfma(); k += 1
                    if lite and s in cfg.get("fine", ()) and k % 2 == 0 and k <= 16:
                        r = (36, 38, 40, 42, 48, 50, 56, 58)[k // 2 - 1]
                        S(f"s_memtime s[{r}:{r+1}]"); lpend.append((r, LT + 2, 30 + 8 * cfg["fine"].index(s) + k // 2 - 1))
                    issue_reads(st["n"] - 1, 2, next_bar(s))
                    nn = M[st["n"] - 1]["n"]
                    per = cfg.get("hper_at", {}).get(s - P2, cfg.get("hper", 2)) * (MUL if s < P2 else MUL2)
                    if k % per == per - 1 or (s >= P2 and st["h"] < st["hcons"] + 6): issue_h(1)
                    if wq and st["n"] >= wq[0][2] and (nn == 16 or k % 2):
                        put(wq[0][0].pop(0))
                        if not wq[0][0]: wq.pop(0)
                    elif epq and st["n"] >= epq[0][2]:
                        eb = cfg.get("eon2", 5) if s >= P2 else cfg.get("eon_at", {}).get(s, cfg["eon"])
                        if nn == 16: issue_epi(eb)
                        elif cfg.get("split16", 0):
                            st["cr"] = min(st.get("cr", 0), 0) + (eb // 2 if M[st["n"] - 1]["pool"] else eb - eb // 2)
                            if st["cr"] > 0: st["cr"] -= issue_epi(st["cr"])
                        elif k % 2: issue_epi(eb)
                assert not wq, ("hand-over not finished", s)
                assert s == LAST or s + 1 in nobar or (spare and s < P2) or s + 1 >= ES or st["rd"] == end + BK, (s, st["rd"], end)
            else:
                pa = {(P2 + k_[0] if isinstance(k_, tuple) else k_): v for k_, v in cfg.get("prio_at", {}).items()}
                if s in pa: S(f"s_setprio {pa[s]}")
                lag = cfg.get("blag", 1)
                if lag:
                    while st["n"] < NM and M[st["n"]]["step"] < s:
                        mfma()
                        if M[st["n"] - 1]["n"] == 16 or st["n"] % 2 == 0: issue_dma(1)
                if s < 8 and not spare and bgroups:
                    for slot, rds in wreads(s).items():
                        for (i, t) in rds: S.add(t, lds=i)
                        issue_dma(1)
                issue_reads(st["n"] - 2 if False else st["n"] - 1, 99, s + 1)
                if lag: assert st["rd"] == end, (s, st["rd"], end)
                if not spare:
                    for g in sorted(off):
                        if gend[g] + 1 == s:
                            a = ACC[baccof[g]]; b = off[g]
                            assert polling[0] is None, ("scalar poll in flight over LDS reads", s)
                            for e in epq: assert e[1] != a, ("B acc reuse", g)
                            for i in range(4):
                                S.add(f"ds_read_b128 v[{a+4*i}:{a+4*i+3}], v{VE + b // 4} offset:{(b % 4)*BLK + 1024*i}", lds=("er", g, i))
                            epq.append([epi(g), a, 0, g])
                eb = cfg.get("eoff_at", {}).get(s, cfg["eoff"])
                efirst = (var == 1 or s in cfg.get("epi_first", ()))
                points(s, 0)
                if efirst: issue_epi(eb)
                unstage(s)
                issue_dma(99)
                points(s, 50)
                while not lag and st["n"] < end:
                    mfma()
                    issue_reads(st["n"] - 1, 2, s + 1)
                if not efirst: issue_epi(eb)
                points(s, 99)
                if cfg.get("pages") == 4 and not spare:
                    for p_, bi in enumerate(touch["at"]):
                        if s == max(0, bi - cfg.get("tdist", 3)):
                            S(f"s_cmp_eq_u32 s21, {p_ % 4}\ns_cbranch_scc0 L_nt{sfx}{p_}\n~s_call_b64 s[98:99], L_stub{p_}\nL_nt{sfx}{p_}:")
        assert not epq and st["n"] == NM
        if isB:
            if not spare: assert flagged | set(aflag.values()) == {1, 3, 5, 6, 7} and not flagged & set(aflag.values()), flagged
            if cfg.get("diag") is not None and not spare:
                S(f"s_cmp_lg_u32 s2, {cfg.get('diagwg', 8)}")
                S("s_cbranch_scc1 L_end")
                for s in range(lastB + 1, NST):
                    if s not in nobar: S("s_barrier")
                S("s_barrier")
                if cfg["diag"] == 99: S("s_memrealtime s[98:99]\ns_waitcnt lgkmcnt(0)")
                if cfg["diag"] < 0: S("s_mov_b32 s98, s100")
                S("s_sub_u32 s98, s98, s100\ns_lshl_b32 s98, s98, 2\ns_add_u32 s98, s98, 3000")
                S(f"L_dg{sfx}:")
                S("s_memrealtime s[96:97]\ns_waitcnt lgkmcnt(0)\ns_sub_u32 s96, s96, s100\ns_cmp_lt_u32 s96, s98\ns_cbranch_scc1 L_dg" + sfx)
            S("s_endpgm")
            return S.render()
        assert st["h"] == 56
        R = RED; keep = A2[1]
        for q in range(2):
            for i in range(8*q, 8*q + 8): S.add(f"v_add_f32 v{R+i}, v{R+i}, v{keep+i}", need_lds=[("xr", i // 4)], vr=[keep+i])
            for i in range(4): S.add(f"v_cvt_pk_bf16_f32 v{TMP+4*q+i}, v{R+8*q+2*i}, v{R+8*q+2*i+1}", vw=[TMP+4*q+i])
            if SH2 == 16:
                for i in range(2): S.add(f"v_permlane16_swap_b32 v{TMP+4*q+i}, v{TMP+4*q+2+i}", pr=[TMP+4*q+i, TMP+4*q+2+i])
            if not cfg.get("o64", 0): S(f"buffer_store_dwordx4 v[{TMP+4*q}:{TMP+4*q+3}], v{VOUT}, s[{SW}:{SW+3}], s95 offen offset:{32*q}")
        if cfg.get("o64", 0):
            S("s_add_u32 s94, s95, 16384")
            for i in range(4): S.add(f"v_permlane16_swap_b32 v{TMP+i}, v{TMP+4+i}", pr=[TMP+i, TMP+4+i])
            for q in range(2): S(f"buffer_store_dwordx4 v[{TMP+4*q}:{TMP+4*q+3}], v{VOUT}, s[{SW}:{SW+3}], s{95-q} offen {cfg.get('outsc', '')}")
        if lite:
            for (r, v, idx) in lpend: S(f"v_writelane_b32 v{v}, s{r}, {idx}")
            S("s_memrealtime s[96:97]\ns_memtime s[36:37]\ns_waitcnt vmcnt(0)\ns_memrealtime s[98:99]\ns_waitcnt lgkmcnt(0)")
            S(f"v_writelane_b32 v{LT}, s100, 0\nv_writelane_b32 v{LT}, s96, 60\nv_writelane_b32 v{LT}, s98, 61")
            for x in range(NST + 1, 29): S(f"v_writelane_b32 v{LT+2}, s36, {x}")
            S(f"s_cmp_lg_u32 s20, {cfg.get('stwave', 1)}")
            S("s_cbranch_scc1 L_end")
            S(f"s_add_u32 s30, s{SH}, 0x8000000\ns_addc_u32 s31, s{SH+1}, 0")
            S(f"s_lshl_b32 s32, s2, 8\nv_lshrrev_b32 v0, 2, v{L16}\nv_add_u32 v0, s32, v0")
            for v in (LT, LT + 1, LT + 2):
                S(f"global_store_dword v0, v{v}, s[30:31]")
                S("v_add_u32 v0, 0x10000, v0")
        S("s_endpgm")
        return S.render()

    E = Stream()
    E("s_load_dwordx8 s[4:11], s[0:1], 0")
    E("s_load_dwordx4 s[24:27], s[0:1], 24")
    E("s_load_dwordx4 s[28:31], s[0:1], 40")
    if lite or cfg.get("diag") is not None: E("s_memrealtime s[100:101]")
    E("v_lshrrev_b32 v1, 6, v0")
    E("s_cmp_ge_u32 s2, 256")
    E("s_cbranch_scc1 L_end")
    E("v_readfirstlane_b32 s20, v1")
    E("s_and_b32 s14, s2, 7\ns_lshr_b32 s15, s2, 3")
    E("s_and_b32 s35, s15, 3\ns_lshr_b32 s19, s15, 2")
    E("s_and_b32 s32, s14, 1\ns_lshl2_add_u32 s16, s32, s35")
    E("s_lshr_b32 s84, s14, 1\ns_mul_i32 s17, s84, 7\ns_add_u32 s17, s17, s19")
    if not XROT: E("s_mov_b32 s84, s17")
    E("s_lshl2_add_u32 s18, s14, s35")
    E("s_and_b32 s21, s20, 3")
    if cfg.get("nbswap", 1):
        E("s_mov_b32 s34, s19\ns_cmp_eq_u32 s19, 3\ns_cselect_b32 s19, 7, s19\ns_cmp_eq_u32 s34, 7\ns_cselect_b32 s19, 3, s19\ns_cselect_b32 s34, 0, s34")
    else:
        E("s_cmp_eq_u32 s19, 7\ns_cselect_b32 s34, 0, s19")
    E("s_cbranch_scc1 L_spare")
    E(f"v_and_b32 v{LANE}, 63, v0")
    CM = cfg.get("cmode", 0)
    if CM == 0: E("s_lshl1_add_u32 s36, s35, s32")
    elif CM == 1: E("s_lshr_b32 s36, s35, 1\ns_mul_i32 s36, s36, 3\ns_lshl1_add_u32 s36, s32, s36\ns_add_u32 s36, s36, s32")
    elif CM == 2: E("s_mul_i32 s36, s32, 3")
    elif CM == 3: E("s_min_u32 s36, s14, 6")
    if cfg.get("crot", 1) == 1: E("s_lshr_b32 s32, s17, 2\ns_add_u32 s36, s36, s32")
    if cfg.get("crot", 1) == 2: E("s_add_u32 s36, s36, s34")
    if cfg.get("c3last", 1):
        E("s_sub_u32 s32, s36, 7\ns_min_u32 s36, s36, s32\ns_lshl_b32 s36, s36, 2")
        E("s_mov_b32 s96, 0x07654210\ns_mov_b32 s97, 0x65421\ns_lshr_b64 s[96:97], s[96:97], s36")
        E("s_and_b32 s36, s96, 0x0fffffff\ns_or_b32 s36, s36, 0x30000000")
    else:
        E("s_and_b32 s36, s36, 7\ns_lshl_b32 s36, s36, 2")
        E("s_mov_b32 s96, 0x76543210\ns_mov_b32 s97, s96\ns_lshr_b64 s[96:97], s[96:97], s36\ns_mov_b32 s36, s96")
    E("s_lshl_b32 s39, s16, 18")
    assert SP in ([0, 1], [0, 1, 2, 3])
    E("s_and_b32 s37, s21, 1")
    E(("s_lshl1_add_u32 s3, s84, s37" if NS == 2 else "s_lshl1_add_u32 s3, s84, s21") + "\ns_and_b32 s3, s3, 7\ns_lshl_b32 s3, s3, 15\ns_add_u32 s3, s3, s39")
    E("s_mul_i32 s37, s37, 114688\ns_lshl_b32 s32, s17, 7\ns_add_u32 s37, s37, s32")
    E("s_and_b32 s22, s21, 2")
    E("s_lshl_b32 s33, s21, 12")
    E("s_cmp_lt_u32 s20, 4")
    E("s_cselect_b32 s37, s3, s37")
    E("s_cselect_b32 s38, 1, 1792")
    E("s_cselect_b32 s12, 3, 1\ns_cselect_b32 s13, 0, 2")
    E(f"s_cselect_b32 s23, 0, {'s22' if SH1 == 32 else '0'}")
    E(f"s_cselect_b32 s92, 64, {0 if SH1 == 32 else 32}")
    E("s_cselect_b32 s93, 2, 7")
    E(f"s_cselect_b32 s{SX+2}, 8, 7")
    E("s_cselect_b32 s94, 0, 0x10000")
    E("s_cselect_b32 s95, s22, 0" if NS == 2 else "s_mov_b32 s95, 0")
    E(f"s_lshl_b32 s38, s38, 7\ns_lshl_b32 s93, s93, 9\ns_lshl_b32 s{SX+2}, s{SX+2}, 18")
    E(f"v_lshrrev_b32 v{T1}, 3, v{LANE}")
    E(f"v_lshrrev_b32 v{T2}, 4, v{LANE}")
    E(f"v_and_b32 v{T2}, s12, v{T2}")
    E(f"v_lshlrev_b32 v{T2}, s13, v{T2}")
    E(f"v_or_b32 v{T2}, s23, v{T2}")
    E(f"v_xor_b32 v{T2}, v{T2}, v{LANE}")
    E(f"v_and_b32 v{T2}, 7, v{T2}")
    E(f"v_mul_u32_u24 v{T1}, s93, v{T1}")
    E(f"v_lshl_add_u32 v{VX}, v{T2}, 4, v{T1}")
    E("s_lshl_b32 s93, s93, 3\ns_sub_u32 s93, s93, 1024")
    E(f"v_xor_b32 v{VX+1}, s92, v{VX}")
    E(f"v_add_u32 v{VX+1}, s93, v{VX+1}")
    E("s_lshl_b32 s93, s93, 1")
    E(f"v_add_u32 v{VX+2}, s93, v{VX}")
    E(f"v_add_u32 v{VX+3}, s93, v{VX+1}")
    E(f"s_mov_b32 s{SX+3}, 0x20000")
    E("s_add_u32 s33, s33, s94")
    E("s_lshl_b32 s95, s95, 1\ns_lshr_b32 s32, s36, s95\ns_and_b32 s32, s32, 7\ns_mul_i32 s32, s32, s38\ns_add_u32 s32, s32, s37")
    E("s_mov_b32 m0, s33")
    E("s_cmp_eq_u32 s22, 0")
    E("s_waitcnt lgkmcnt(0)")
    E(f"s_cselect_b32 s{SX}, s6, s8\ns_cselect_b32 s{SX+1}, s7, s9")
    E("s_cmp_lt_u32 s20, 4")
    E(f"s_cselect_b32 s{SX}, s4, s{SX}\ns_cselect_b32 s{SX+1}, s5, s{SX+1}")
    for q in range(4): E(f"buffer_load_dwordx4 v{VX+q}, s[{SX}:{SX+3}], s32 offen offset:{1024*q} lds")
    E("s_cbranch_scc0 L_B")
    body = E.render()
    atext = wave(False, False)
    nstub = 0
    if cfg.get("pages", 0):
        lines = atext.split("\n")
        bars = [i for i, l in enumerate(lines) if l.strip() == "s_barrier"]
        sz = [isize(l.strip()) if l.strip() else 0 for l in lines]
        cumsz = [0]
        for x in sz: cumsz.append(cumsz[-1] + x)
        cuts = [bars[0]]
        if cfg["pages"] == 4:
            esz = 0x300 + sum(isize(l.strip()) for l in body.split("\n") if l.strip())
            cuts = [[b for b in bars if esz + cumsz[b] <= 4070][-1]]
            if "cut0" in cfg: cuts = [bars[cfg["cut0"]]]
        while cumsz[-1] - cumsz[cuts[-1]] > 4080:
            ok = [b for b in bars if b > cuts[-1] and cumsz[b] - cumsz[cuts[-1]] <= 4080]
            cuts.append(ok[-1])
        touch["at"] = [bars.index(c) for c in cuts]
        out = []
        for i, l in enumerate(lines):
            if i in cuts:
                out += [f"    s_branch L_pg{nstub}", ".p2align 12", f"L_stub{nstub}:", "    s_setpc_b64 s[98:99]", f"L_pg{nstub}:"]
                nstub += 1
            out.append(l)
        atext = "\n".join(out)
        tt = ""
        for p_ in range(1, nstub):
            tt += f"    s_cmp_eq_u32 s21, {(p_ - 1) % 4}\n    s_cbranch_scc0 L_nta{p_}\n    s_call_b64 s[98:99], L_stub{p_}\nL_nta{p_}:\n"
        atext = atext.replace("    @TOUCH@\n", tt)
    touch["n"] = nstub
    body += ".p2align 3\n" + atext
    def bpage(t, nm):
        if not cfg.get("bpages", 0): return t
        i_ = t.index("    s_setprio")
        return t[:i_] + f"    s_branch L_bp{nm}\n.p2align 12\nL_bp{nm}:\n" + t[i_:]
    if off:
        body += ".p2align 6\nL_B:\n    s_cmp_eq_u32 s22, 0\n    s_cbranch_scc0 L_B1\n" + bpage(wave(True, False, 0), 0)
        body += ".p2align 6\nL_B1:\n" + bpage(wave(True, False, 1), 1)
    else:
        body += ".p2align 6\nL_B:\n" + bpage(wave(True, False, 0), 0)
    body += ".p2align 6\nL_spare:\n    s_cmp_lt_u32 s20, 4\n    s_cbranch_scc0 L_Bs\n"
    body += wave(False, True)
    body += ".p2align 6\nL_Bs:\n" + wave(True, True)
    body += "L_end:\n    s_endpgm\nL_codeend:\n"
    return single_file(body, 256, 512, 163840, 256)

R = "r"
DEF = dict(sp=[0, 2], al=[3, 4, 5, 6, 7], bgroups=[(1, [1, 2, 3, 4, 5, 6, 7, 8])],
           sched={("W", 1): -1, ("Y", 0): -1, ("X", 1): 0, ("W", 2): 0, ("W", 3): 1, ("X", 2): 2, ("W", 4): 1, ("W", 5): 2, ("Y", 1): 3, ("X", 3): 4,
                  ("W", 6): 3, ("W", 7): 4, ("X", 4): 5, ("X", 5): 6},
           dsched={0: 6, 1: 7, 2: 8, 3: 9, 4: 10, 5: 11, 6: 12, 7: -2, 8: -1, 9: 0, 10: 1, 11: 1, 12: 2, 13: 2},
           stage={9: 11, 10: 13, 11: 14, 12: 14, 13: 15},
           nobar2=(6,), eon=4, eon2=5, eoff=45, prio=(1, 2), prio_at={9: 0, (0,): 2},
           tag_pts=((9, 99), (10, 99)),
           flag_pts={1: (12, 0), 3: (14, 0), 5: (-1, 0, R), 6: (1, 0, R), 7: (3, 0, R)},
           pgroups=[(0, 3), (3, 7), (7, 10), (10, 12), (12, 14)],
           ppts=[((-4, 0, R), (-3, 99, R)), ((-2, 0, R), (-1, 99, R)), ((0, 99, R), (1, 99, R)), ((2, 99, R), (3, 99, R)), ((4, 0, R), (4, 99, R))],
           ppts_s=[((-3, 99, R), (-3, 99, R)), ((-2, 99, R), (-2, 99, R)), ((1, 99, R), (1, 99, R)), ((3, 99, R), (3, 99, R)), ((4, 99, R), (4, 99, R))],
           hper_at={4: 1, 5: 1},
           hmax={-2: 5, -1: 12, 0: 20, 1: 28, 2: 36, 3: 40, 4: 56})
def emit(variants):
    for k, v in variants.items():
        open(k + ".s", "w").write(build(dict(v)))
        open(k + "_lt.s", "w").write(build(dict(v, lite=True)))
NB = dict(DEF, sp=[0, 1], al=[2, 3, 4, 5, 6, 7], bgroups=[],
          sched={("W", 1): -1, ("X", 1): -1, ("W", 2): 0, ("W", 3): 0, ("W", 4): 1, ("X", 2): 1, ("W", 5): 2, ("W", 6): 3, ("X", 3): 3, ("W", 7): 4, ("X", 4): 5, ("X", 5): 6},
          dblk=[3, 8, 9, 4, 5, 6, 7, 1, 2, 0],
          dsched={0: 6, 1: 7, 2: 8, 3: 9, 4: 10, 5: 11, 6: 12, 7: -2, 8: -1, 9: 0, 10: 1, 11: 1, 12: 2, 13: 2},
          stage={9: 13, 10: 14, 11: 15, 12: 16, 13: 17},
          prio=(1, 0), prio_at={}, tag_pts=((8, 99), (9, 99)),
          flag_pts={1: (14, 0), 3: (17, 0), 5: (0, 0, R), 6: (2, 0, R), 7: (3, 0, R)},
          ppts=[((-4, 0, R), (-3, 99, R)), ((-2, 99, R), (-1, 99, R)), ((1, 0, R), (1, 99, R)), ((3, 0, R), (3, 99, R)), ((4, 0, R), (4, 99, R))],
          eon_at={16: 6, 17: 6, 18: 6, 19: 6}, eon2=6)
NC = dict(NB, flag_pts={1: (13, 0), 3: (16, 0), 5: (-1, 0, R), 6: (1, 0, R), 7: (3, 0, R)},
          ppts=[((-4, 0, R), (-3, 99, R)), ((-2, 99, R), (-1, 99, R)), ((0, 99, R), (1, 99, R)), ((2, 99, R), (3, 99, R)), ((4, 0, R), (4, 99, R))])
ND = dict(NC, dsched={0: 8, 1: 9, 2: 10, 3: 11, 4: 12, 5: 13, 6: 14, 7: -2, 8: -1, 9: 0, 10: 1, 11: 1, 12: 2, 13: 2}, stage={9: 15, 10: 16, 11: 17, 12: 14, 13: 16})
NE = dict(NC, dsched={0: 4, 1: 6, 2: 7, 3: 7, 4: 9, 5: 10, 6: 11, 7: -2, 8: -1, 9: 0, 10: 1, 11: 1, 12: 2, 13: 2}, stage={9: 12, 10: 13, 11: 14, 12: 15, 13: 16},
          spare_order="wx", look=6)
NF = dict(NE, hold=(0, 2, 4), aflag={3: 1, 5: 3, 6: 5, 7: 6}, atag=(7, 8), flag_pts={7: (3, 0, R)})
SG = {("W", 1): -1, ("X", 1): -1, ("W", 2): 0, ("W", 3): 0, ("W", 4): 1, ("X", 2): 1, ("W", 5): 2, ("X", 3): 2, ("W", 6): 3, ("W", 7): 4, ("X", 4): 4, ("X", 5): 5}
NG = dict(NE, hold=(0, 2, 4), nobar=(6, 7), sched=SG, blk={("X", 5): 3},
          dblk=[8, 9, 4, 5, 6, 7, 3, 1, 2, 0],
          dsched={0: 5, 1: 5, 2: 8, 3: 8, 4: 10, 5: 11, 6: 12, 7: -2, 8: -1, 9: 0, 10: 1, 11: 1, 12: 2, 13: 2},
          stage={9: 13, 10: 14, 11: 15, 12: 16, 13: 17})
OF = dict(NC, look=6, off={0: 3, 2: 3, 3: 3, 4: 3, 5: 3, 6: 3, 7: 3}, eon=3, eon_at={}, eoff=46,
          dblk=[8, 9, 4, 5, 6, 7, 1, 2, 0, 3],
          dsched={0: 6, 1: 7, 2: 8, 3: 9, 4: 10, 5: 11, 6: 18, 7: -1, 8: 0, 9: 2, 10: 1, 11: 1, 12: 2, 13: 3},
          stage={8: 12, 9: 13, 10: 14, 11: 15, 12: 16, 13: 17},
          tag_pts=((7, 99), (8, 99)), eoff_at={21: 90}, epi_first=(21,), prio_at={21: 2},
          flag_pts={1: (12, 99), 3: (16, 50), 5: (0, 50, R), 6: (2, 0, R), 7: (3, 0, R)},
          ppts=[((-5, 99, R), (-4, 99, R)), ((-1, 0, R), (-1, 99, R)), ((1, 50, R), (1, 99, R)), ((3, 0, R), (3, 99, R)), ((4, 0, R), (4, 99, R))])
O1 = dict(NC, look=6, off={0: 7}, eon=3, eoff=30, mix=1, tag_pts=((7, 99), (8, 99)),
          flag_pts={1: (13, 99), 3: (16, 0), 5: (-1, 0, R), 6: (1, 0, R), 7: (3, 0, R)}, eon_at={16: 5, 17: 5, 18: 5, 19: 5})
T1_ = dict(NE, hold=(0, 2, 4), tag_pts=((6, 99), (11, 99)), mix=1)
T2_ = dict(NC, look=6, tag_pts=((6, 99), (11, 99)), mix=1)
SE = {("W", 1): -1, ("X", 1): -1, ("W", 2): 0, ("W", 3): 0, ("W", 4): 1, ("X", 2): 1, ("W", 5): 2, ("W", 6): 3, ("X", 3): 3, ("W", 7): 4, ("X", 4): 5, ("X", 5): 5, ("X", 6): 6}
E1 = dict(T2_, defer=0, es=9, xring=4, sched=SE, look=8, look2=7,
          dblk=[8, 9, 4, 5, 6, 7, 0, 1, 2, 3],
          dsched={0: 6, 1: 7, 2: 8, 3: 9, 4: 10, 5: 11, 6: 17, 7: -2, 8: -1, 9: 0, 10: 1, 11: 1, 12: 2, 13: 2},
          stage={9: 12, 10: 13, 11: 14, 12: 15, 13: 16})
ORD = [0, 4, 7, 11, 1, 5, 8, 12, 2, 6, 9, 13, 3, 10]
def inter(base, start, xr4):
    ds = dict(base["dsched"]); stg = {}
    for n, j in enumerate(ORD):
        if j >= (6 if xr4 else 7): stg[j] = start + n
        else: ds[j] = start + n
    return dict(base, dsched=ds, stage=stg)
if __name__ == "__main__":
    B0_ = dict(T2_, defer=0, sh1=16, look=6, dblk=[3, 4, 5, 6, 8, 7, 9, 1, 2, 0])
    I1 = dict(inter(B0_, 6, False), split16=1, eon_at={}, eon2=4)
    O2 = dict(I1, off={0: 9}, eon=3, eoff=30, tag_pts=((6, 99), (8, 99)), flag_pts={1: (13, 99), 3: (16, 0), 5: (0, 0, R), 6: (2, 0, R), 7: (3, 0, R)})
    O3 = dict(O2, eon_at={16: 4, 17: 4, 18: 4, 19: 4}, flag_pts={1: (13, 99), 3: (16, 0), 5: (-1, 0, R), 6: (1, 0, R), 7: (3, 0, R)})
    P_ = dict(I1, pages=3, bpages=1)
    F1 = dict(P_, eon2=99, flag_pts={1: (13, 0), 3: (16, 0), 5: (-1, 0, R), 6: (1, 0, R), 7: (2, 0, R)},
              ppts=[((-4, 0, R), (-3, 99, R)), ((-2, 99, R), (-1, 99, R)), ((0, 99, R), (1, 99, R)), ((2, 99, R), (3, 99, R)), ((3, 99, R), (4, 99, R))])
    F2 = dict(F1, eon2=12)
    F3 = dict(F1, flag_pts={1: (13, 0), 3: (16, 0), 5: (-1, 0, R), 6: (2, 0, R), 7: (2, 0, R)},
              ppts=[((-4, 0, R), (-3, 99, R)), ((-2, 99, R), (-1, 99, R)), ((0, 99, R), (1, 99, R)), ((3, 0, R), (3, 99, R)), ((3, 99, R), (4, 99, R))])
    F4 = dict(F1, dsched={**F1["dsched"], 10: 1, 11: 2, 12: 3, 13: 4})
    def reord(base, order, start, staged):
        ds = dict(base["dsched"]); stg = {}
        for n, j in enumerate(order):
            if j is None: continue
            if j in staged: stg[j] = start + n
            else: ds[j] = start + n
        return dict(base, dsched=ds, stage=stg)
    G1 = reord(F4, [0, 4, 11, 9, 1, 5, 12, None, 2, 6, 13, 3], 6, (9, 11, 12, 13))
    G2 = dict(F4, hmax={-2: 3, -1: 8, 0: 16, 1: 26, 2: 34, 3: 40, 4: 56}, hper_at={1: 1, 4: 1, 5: 1})
    G3 = dict(F4, eon2=12)
    G4 = dict(F4, eon_at={16: 5, 17: 5, 18: 3, 19: 3})
    G5 = dict(G1, hmax=G2["hmax"], hper_at=G2["hper_at"], eon2=12)
    G6 = dict(F4, nobar=(5, 7), sched={**F4["sched"], ("X", 4): 4}, dsched={**F4["dsched"]})
    X1 = dict(F4, xrot=1, spare_order="pw12b3", crot=2)
    X2 = dict(X1, spare_order="pw1b23")
    ST = (7, 8, 9, 10, 11, 12, 13)
    def fix(c):
        return dict(c, dsched={**c["dsched"], **{j: F4["dsched"][j] for j in ST}})
    Y1 = fix(reord(X1, [0, None, 4, 7, 11, 1, 5, 8, 12, 2, 6, 9, 13, 3, 10], 4, ST))
    Y2 = fix(reord(X1, ORD, 5, ST))
    Y3 = dict(X1, nobar=(5, 7), sched={**F4["sched"], ("X", 4): 4})
    Y4 = dict(Y2, nobar=(3, 5, 7), sched={("W", 1): -1, ("X", 1): -1, ("W", 2): 0, ("W", 3): 0, ("W", 4): 1, ("X", 2): 1, ("W", 5): 2, ("X", 3): 2, ("W", 6): 4, ("W", 7): 4, ("X", 4): 4, ("X", 5): 6})
    Y5 = dict(X1, bk=4)
    Z = dict(X1, spare_order="pwm", pages=0, bpages=0)
    S4 = {("W", 1): -1, ("X", 1): -1}
    for i_ in range(2, 8): S4[("W", i_)] = i_ - 2; S4[("X", i_)] = i_ - 2
    N4 = dict(Z, sp=[0, 1, 2, 3], al=[4, 5, 6, 7], sched=S4, eon=6, tag_pts=((5, 99), (9, 99)),
              flag_pts={1: (12, 0), 3: (13, 99), 5: (-1, 0, R), 6: (1, 0, R), 7: (2, 0, R)},
              ppts=[((-3, 0, R), (-3, 99, R)), ((-2, 99, R), (-1, 99, R)), ((0, 99, R), (1, 99, R)), ((2, 99, R), (3, 99, R)), ((3, 99, R), (4, 99, R))])
    def pack(base, slots):
        ds = dict(base["dsched"]); stg = {}
        for st_, js in slots.items():
            for j in js:
                if j >= 7: stg[j] = st_
                else: ds[j] = st_
        return dict(base, dsched=ds, stage=stg)
    N4a = pack(N4, {6: [0], 7: [4], 8: [7, 11], 9: [1], 10: [5, 8], 11: [12, 2], 12: [6, 9], 13: [13, 3], 14: [10]})
    N4b = pack(N4, {6: [0], 7: [4], 8: [11], 9: [1], 10: [5], 11: [12], 12: [2], 13: [6], 14: [3]})
    D1 = dict(Z, defer=1, late_at=({0: 999}, {3: 30, 5: 999}))
    D2 = dict(Z, defer=1, late_at=({0: 80, 1: 40, 2: 15, 4: 999}, {3: 30, 5: 999}))
    D3 = dict(Z, defer=1, late_at=({1: 40, 2: 20, 4: 20, 6: 20, 7: 20, 8: 999}, {3: 30, 5: 999}))
    D4 = dict(D2, cmode=1, crot=0)
    D5 = dict(D2, spare_order="pw")
    D6 = dict(Z, defer=1, late_at=({0: 90, 1: 999}, {1: 999}))
    D7 = dict(Z, defer=1, late_at=({0: 999}, {1: 999}))
    SQ = {("W", 1): -1, ("W", 2): -1, ("X", 1): 0, ("W", 3): 0, ("W", 4): 1, ("X", 2): 1, ("W", 5): 2, ("W", 6): 3, ("X", 3): 3, ("W", 7): 4, ("X", 4): 5, ("X", 5): 6}
    D8 = dict(D6, sched=SQ)
    D9 = dict(D6, pages=3)
    def keep(c): return dict(c, dsched={**c["dsched"], **{j: Z["dsched"][j] for j in range(7, 14)}})
    K1 = keep(reord(Z, [0, 4, 11, 10, 1, 5, 12, 9, 2, 6, 13, 3], 6, (9, 10, 11, 12, 13)))
    K2 = keep(reord(Z, [0, 4, 11, None, 1, 5, 12, None, 2, 6, 13, 3], 6, (11, 12, 13)))
    K3 = dict(K1, dsched={**K1["dsched"], 9: 0, 10: 1, 11: 1, 12: 2, 13: 2}, nobar2=(6,))
    K4 = dict(K1, eon2=16)
    K5 = dict(K1, hmax={-2: 6, -1: 12, 0: 18, 1: 28, 2: 36, 3: 40, 4: 56}, hper_at={1: 1, 4: 1, 5: 1})
    K6 = dict(K1, prio=(2, 0))
    ST7 = (7, 8, 9, 10, 11, 12, 13)
    L1 = keep(reord(Z, [0, 7, 4, 1, 8, 5, 2, 9, 6, 3, 10, 11, 12, 13], 6, ST7))
    L2 = keep(reord(Z, [0, 7, 4, 1, 8, 5, 2, 9, 6, 3, 10, 11, 12, 13], 5, ST7))
    L3 = keep(reord(Z, [0, None, 4, 1, None, 5, 2, 9, 6, 3, 10, 11], 6, (9, 10, 11)))
    L4 = keep(reord(Z, [0, 4, 1, 5, 2, 9, 6, 3, 10, 11, 12, 13], 6, (9, 10, 11, 12, 13)))
    L5 = dict(L1, pages=3)
    W1 = dict(L1, spare_order="pwmx")
    W2 = dict(W1, pages=4, cut0=4, tdist=4, bpages=1)
    W3 = dict(W2, tk=8, tb=3)
    W4 = dict(W3, o64=1, outsc="sc1")
    W5 = dict(W4, elast=3)
    W6 = dict(W5, es=21, dsched={**W5["dsched"], 10: 1, 11: 2, 12: 2, 13: 3})
    W7 = dict(W5, es=20, dsched={**W5["dsched"], 10: 1, 11: 2, 12: 2, 13: 3})
    W8 = dict(W5, estart=3)
    W9 = dict(W5, flag_pts={1: (13, 0), 3: (16, 0), 5: (0, 0, R), 6: (2, 0, R), 7: (2, 0, R)},
              ppts=[((-4, 0, R), (-3, 99, R)), ((-2, 99, R), (-1, 99, R)), ((1, 0, R), (1, 99, R)), ((3, 0, R), (3, 99, R)), ((3, 99, R), (4, 99, R))])
    def slots(base, sl, staged):
        ds = dict(base["dsched"]); stg = {}
        for st_, js in sl.items():
            for j in js:
                if j in staged: stg[j] = st_
                else: ds[j] = st_
        return dict(base, dsched=ds, stage=stg)
    BF = dict(W5, al=[2, 3, 4, 6, 7], bgroups=[(5, [5, 6, 7, 8, 9, 10, 11, 12])], dblk=[3, 4, 5, 9, 6, 7, 8, 2, 0, 1],
              sched={**W5["sched"], ("Y", 0): 2, ("Y", 1): 7}, eoff=45, prio=(1, 0), tag_pts=((12, 99), (13, 50)),
              flag_pts={1: (13, 50), 3: (15, 99), 5: (-1, 99, R), 6: (1, 0, R), 7: (2, 0, R)},
              ppts=[((-4, 99, R), (-3, 99, R)), ((-1, 0, R), (-1, 99, R)), ((0, 99, R), (1, 99, R)), ((2, 99, R), (3, 99, R)), ((3, 99, R), (4, 99, R))])
    BF1 = slots(BF, {6: [0], 8: [7], 9: [4], 10: [1], 11: [8], 12: [5], 13: [2], 14: [9, 6], 15: [3, 10], 16: [11, 12], 17: [13]}, (7, 8, 9, 10, 11, 12, 13))
    emit({"v46a": W5, "v48a": dict(W5, codepf=False)})
```

```python
import sys, struct, math, re
from common import *
from gen3 import Stream, f2u, C0, C1, isize

BLK = 16384
FO = 8 << 20
FSZ = 897 * 128
HSTR = 112
WR = 0
ACC = [128, 144, 160, 176, 192]
POOL = 208; NPOOL = 6
TMP = 232
XA = 240
WA = 244
L16 = 245
CC0 = 246
DA = 247
VOUT, VEX = 249, 250
LT = 252
VX = 192
PR = 196
VW = 200
VD = 176
VF, VF2, TAG, FV = 180, 181, 182, 183
HOLDR = VE_A = VE_B = -1000
T1, T2, T3, LANE, T4, T5 = TMP, TMP + 1, TMP + 2, TMP + 3, TMP + 4, TMP + 5
SX, SW, SD, SH, SF = 40, 44, 48, 52, 56
TB = 60
HS = 76

def build(cfg):
    SH1 = cfg.get("sh1", 32)
    MUL = 2 if SH1 == 16 else 1
    XROT = cfg.get("xrot", 0)
    SH2 = cfg.get("sh2", 32)
    MUL2 = 2 if SH2 == 16 else 1
    lite = cfg.get("lite", False)
    bgroups = cfg["bgroups"]
    SP = cfg["sp"]
    AL = cfg["al"]
    assert sorted(SP + AL + [g for g, _ in bgroups]) == list(range(8))
    P2 = 8 + 2 * len(AL); LAST = P2 + 6; NST = LAST + 1
    NS = len(SP); NA = NS + 1; XS = 2 * NS
    NX = XS + 2 * len(AL)
    groups = {0: SP + AL, 1: [g for g, _ in bgroups]}
    accof = {g: i % NA for S_ in (0, 1) for i, g in enumerate(groups[S_])}
    A2 = [ACC[(len(groups[0])) % NA], ACC[(len(groups[0]) + 1) % NA]]
    RED = ACC[(len(groups[0]) + 2) % NA]
    ES = cfg.get("es", 99)
    XR = cfg.get("xring", 3)
    vstep = lambda t: t - 1 if t >= ES else t
    blk = {("X", j): j % XR for j in range(NX)}
    blk.update({("W", i): 4 + i % 4 for i in range(8)})
    blk.update({("Y", j): 8 + j % 2 for j in range(2 * len(bgroups))})
    blk.update(cfg.get("blk", {}))
    dorder = cfg.get("dblk", [3, 4, 5, 6, 7, 8, 9, (NX - 3) % 3, (NX - 2) % 3, (NX - 1) % 3])
    blk.update({("D", j): dorder[j % 10] for j in range(14)})
    off = cfg.get("off", {})
    gend = {g: 8 for g in SP}
    gend.update({g: 10 + 2*n for n, g in enumerate(AL)})
    eowner = lambda g: 1 if (g in off or g in groups[1]) else 0
    baccof = {g: i % 3 for i, g in enumerate(sorted(off, key=lambda g: (gend[g], g)))}
    plan = {s: [] for s in range(-1, NST)}
    sched = dict(cfg["sched"])
    for j in range(XS, NX): sched.setdefault(("X", j), j - XS + 9 - XR)
    for j, s in cfg["dsched"].items(): sched[("D", j)] = s + (P2 if j >= 7 else 0)
    for k in "WXYD":
        for it in sorted(x for x in sched if x[0] == k): plan[sched[it]].append(it)
    def first_use(it):
        k, i = it
        if k == "W": return i
        if k == "X": return (i * 8 // XS) if i < XS else i - XS + 8
        if k == "Y": return min(bgroups[i // 2][1][4*(i % 2):4*(i % 2) + 4])
        return P2 + min(i, 10) // 2
    def last_use(it):
        k, i = it
        if k == "Y": return max(bgroups[i // 2][1][4*(i % 2):4*(i % 2) + 4])
        return first_use(it) + (1 if k == "X" and i < XS and NS == 2 else 0)
    nobar = set(P2 + x for x in cfg.get("nobar2", ())) | set(cfg.get("nobar", ()))
    def prev_bar(s):
        while s in nobar: s -= 1
        return s
    def next_bar(s):
        s += 1
        while s in nobar: s += 1
        return s
    occ = {0: ("X", 0), 4: ("W", 0)}
    lu = lambda it: (gend[it[1]] + 1 if it[0] == "E" else last_use(it))
    for s in range(-1, NST):
        for it in plan[s] + [("E", g) for g in off if gend[g] == s]:
            b = off[it[1]] if it[0] == "E" else blk[it]
            if b in occ: assert lu(occ[b]) < prev_bar(s), (it, s, occ[b])
            if it[0] == "E": assert s + 1 not in nobar
            else: assert next_bar(s) <= vstep(first_use(it)), it
            occ[b] = it
    assert set(sched) | {("X", 0), ("W", 0)} == set(blk), set(blk) - set(sched)
    XJ = max(j for j in range(4, 10) if first_use(("D", j)) < prev_bar(LAST))
    rel = lambda p: (p[0] + P2 if len(p) > 2 else p[0], p[1])
    flag_pts = {g: rel(p) for g, p in cfg["flag_pts"].items()}
    stage = cfg.get("stage", {})
    bend = max([max(bs) + 1 for _, bs in bgroups] + [-1])
    early = sorted(j for j in stage if stage[j] <= bend)
    assert len(early) <= 2
    sreg = {j: 144 + 16 * n for n, j in enumerate(early)}
    sreg.update({j: 16 * n for n, j in enumerate(sorted(j for j in stage if j not in early))})
    hmax = {P2 + s: v for s, v in cfg["hmax"].items()}
    pg = cfg["pgroups"]

    touch = {"n": 0}
    def wave(isB, spare, var=0):
        S = Stream(cfg.get("align", 0))
        sfx = ("b" if isB else "a") + ("s" if spare else "r") + str(var)
        SET = 1 if isB else 0
        VE = VE_B if isB else VE_A
        issued = []
        cut = [None]
        if not spare:
            k = "W" if isB else "X"
            for q in range(4): S.add("", vm=(k, 0, q))
            issued.append((k, 0))
        else:
            S(f"v_and_b32 v{LANE}, 63, v0")
            S("s_waitcnt lgkmcnt(0)")
        S("s_lshl_b32 s33, s21, 12")
        if isB and not spare and cfg.get("wfast", 0):
            for it in plan[-1]:
                if it[0] != "W": continue
                S(f"s_add_u32 m0, s33, {blk[it]*BLK}\ns_bfe_u32 s32, s36, {0x30000 + 4*it[1]:#x}\ns_mul_i32 s32, s32, {64*3584}\ns_add_u32 s32, s32, s37")
                for q in range(4): S.add(f"buffer_load_dwordx4 v{VX+q}, s[{SX}:{SX+3}], s32 offen offset:{1024*q} lds", vm=(it[0], it[1], q))
                issued.append(it)
        S(f"v_lshlrev_b32 v{L16}, 4, v{LANE}")
        S("s_lshr_b32 s23, s21, 1\ns_and_b32 s22, s21, 1")
        if cfg.get("qx", 1):
            S("s_add_u32 s34, s34, s14\ns_sub_u32 s32, s34, 7\ns_min_u32 s34, s34, s32")
        if cfg.get("codepf", True) == 2 and spare:
            S(f"s_getpc_b64 s[{SH}:{SH+1}]")
            S(f"L_pc{sfx}:")
            S(f"s_lshl3_add_u32 s32, s35, s20\ns_min_u32 s32, s32, ((L_codeend-{KNAME})>>10)-1\ns_lshl_b32 s32, s32, 10")
            S(f"s_sub_u32 s{SH}, s{SH}, L_pc{sfx}-{KNAME}")
            S(f"s_subb_u32 s{SH+1}, s{SH+1}, 0")
            S(f"s_add_u32 s{SH}, s{SH}, s32\ns_addc_u32 s{SH+1}, s{SH+1}, 0")
            S(f"v_mov_b32 v{T2}, s{SH+1}")
            S(f"v_add_co_u32 v{T1}, vcc, s{SH}, v{L16}")
            S("s_nop 1")
            S(f"v_addc_co_u32 v{T2}, vcc, 0, v{T2}, vcc")
            S.add(f"global_load_dwordx4 v[204:207], v[{T1}:{T2}], off", vm="pf")
        if cfg.get("codepf", True) == 3 and not isB and not spare:
            S(f"s_lshl2_add_u32 s32, s15, s21\ns_cmp_lt_u32 s32, (L_codeend-{KNAME})>>10\ns_cbranch_scc0 L_nopf")
            S(f"~s_getpc_b64 s[{SH}:{SH+1}]")
            S(f"L_pc{sfx}:")
            S(f"~s_lshl_b32 s32, s32, 10\n~s_sub_u32 s{SH}, s{SH}, L_pc{sfx}-{KNAME}\n~s_subb_u32 s{SH+1}, s{SH+1}, 0")
            S(f"~s_add_u32 s{SH}, s{SH}, s32\n~s_addc_u32 s{SH+1}, s{SH+1}, 0\n~v_mov_b32 v{T2}, s{SH+1}")
            S(f"~v_add_co_u32 v{T1}, vcc, s{SH}, v{L16}\n~s_nop 1\n~v_addc_co_u32 v{T2}, vcc, 0, v{T2}, vcc")
            S(f"~global_load_dwordx4 v[{PR}:{PR+3}], v[{T1}:{T2}], off")
            S("L_nopf:")
        if cfg.get("codepf", True) is True and not isB:
            S(f"s_getpc_b64 s[{SH}:{SH+1}]")
            S(f"L_pc{sfx}:")
            S(f"s_lshl2_add_u32 s32, s15, s21\ns_min_u32 s32, s32, ((L_codeend-{KNAME})>>8)-1\ns_lshl_b32 s32, s32, 8")
            S(f"s_sub_u32 s{SH}, s{SH}, L_pc{sfx}-{KNAME}")
            S(f"s_subb_u32 s{SH+1}, s{SH+1}, 0")
            S(f"s_add_u32 s{SH}, s{SH}, s32\ns_addc_u32 s{SH+1}, s{SH+1}, 0")
            S(f"v_mov_b32 v{T2}, s{SH+1}")
            S(f"v_lshlrev_b32 v{T1}, 2, v{LANE}")
            S(f"v_add_co_u32 v{T1}, vcc, s{SH}, v{T1}")
            S("s_nop 1")
            S(f"v_addc_co_u32 v{T2}, vcc, 0, v{T2}, vcc")
            S.add(f"global_load_dword v{PR}, v[{T1}:{T2}], off", vm="pf")
        gexp = lambda p, r: (f"s_lshl1_add_u32 s{r}, s84, {p}\ns_and_b32 s{r}, s{r}, 7" if p < 6 else f"s_and_b32 s{r}, s{p-6}, 7")
        def item_ops(it):
            k, i = it
            su = ""
            if k == "X" and i < XS and NS == 4:
                su = f"s_bfe_u32 s32, s36, {0x30000 + 4*i:#x}\ns_lshl_b32 s32, s32, 7\ns_add_u32 s32, s32, s3"
                v, srd, so = VX, SX, 32
            elif k == "X" and i < XS:
                su = f"s_bfe_u32 s32, s87, {0x30000 + 8*i:#x}\ns_lshl_b32 s32, s32, 7\ns_add_u32 s32, s32, s3"
                v, srd, so = VX, SX, 32
            elif k in "XY":
                p = AL[(i - XS) // 2] if k == "X" else bgroups[i // 2][0]
                su = gexp(p, 32) + f"\ns_lshl_b32 s32, s32, 15\ns_add_u32 s32, s32, s{93 + i % 2}"
                v, srd, so = VX, SX, 32
            elif k == "W":
                su = f"s_bfe_u32 s32, s36, {0x30000 + 4*i:#x}\ns_mul_i32 s32, s32, {64*3584}\ns_add_u32 s32, s32, s38"
                v, srd, so = VW, SW, 32
            else:
                su = "s_nop 0"
                v, srd, so = VD, SD, TB + i
            su = f"s_add_u32 m0, s33, {blk[it]*BLK}\n" + su
            return su, [(f"buffer_load_dwordx4 v{v+q}, s[{srd}:{srd+3}], s{so} offen offset:{1024*q} lds", (k, i, q)) for q in range(4)]
        def item(it):
            su, dm = item_ops(it)
            S(su)
            for t, tag in dm: S.add(t, vm=tag)
            issued.append(it)
        if isB:
            S(f"s_add_u32 s{SF}, s30, {FO}\ns_addc_u32 s{SF+1}, s31, 0\ns_mov_b32 s{SF+2}, {FSZ}\ns_mov_b32 s{SF+3}, 0x20000")
            S(f"v_lshlrev_b32 v{VF}, 20, v{LANE}")
            S("s_mov_b32 s74, s28\ns_mov_b32 s75, s29")
        if spare and isB:
            S("s_cmp_eq_u32 s2, 224\ns_cselect_b32 s32, s21, 0\ns_cmp_eq_u32 s32, 1")
            S("s_cbranch_scc0 L_notag")
            S("s_mov_b32 s88, s28\ns_mov_b32 s89, s29\ns_mov_b32 s90, 256\ns_mov_b32 s91, 0x20000")
            S(f"s_mov_b32 s32, {FSZ-128}")
            S(f"buffer_load_dword v{PR}, v{VF}, s[{SF}:{SF+3}], s32 offen sc1")
            S(f"v_mov_b32 v{PR+1}, 1")
            S("s_waitcnt vmcnt(0)")
            S(f"v_add_u32 v{PR}, 1, v{PR}")
            S(f"buffer_store_dwordx2 v[{PR}:{PR+1}], v{VF}, s[88:91], 0 offen sc1")
            S(f"buffer_store_dword v{PR}, v{VF}, s[{SF}:{SF+3}], s32 offen sc1")
            S("L_notag:")
            S("s_barrier")
        if not spare:
            S(("s_bfe_u32 s32, s15, 0x10002" if XROT else "s_bfe_u32 s32, s17, 0x10002") + "\ns_lshl1_add_u32 s0, s84, s32\ns_add_u32 s0, s0, 6\ns_xor_b32 s1, s0, 1")
            for hf in range(2):
                S(f"s_lshl2_add_u32 s32, s21, {16*hf}\ns_lshr_b32 s32, s36, s32\ns_and_b32 s32, s32, 7\ns_lshl_b32 s32, s32, 7\ns_add_u32 s{93+hf}, s32, s39")
            S("s_lshl_b32 s32, s23, 2\ns_lshr_b32 s87, s36, s32")
            if isB:
                for q in range(4): S(f"v_mov_b32 v{VW+q}, v{VX+q}")
                S(f"s_mov_b32 s{SW}, s{SX}\ns_mov_b32 s{SW+1}, s{SX+1}\ns_mov_b32 s{SW+2}, 1835008\ns_mov_b32 s{SW+3}, 0x20000")
                S("s_mov_b32 s38, s37")
                S(f"s_mov_b32 s{SX}, s4\ns_mov_b32 s{SX+1}, s5\ns_mov_b32 s{SX+2}, 0x200000")
                S(f"v_lshrrev_b32 v{T1}, 3, v{LANE}\nv_lshrrev_b32 v{T2}, 4, v{LANE}")
                S(f"v_xor_b32 v{T3}, v{T2}, v{LANE}\nv_and_b32 v{T3}, 7, v{T3}\nv_lshlrev_b32 v{T1}, 10, v{T1}")
                S(f"v_lshl_add_u32 v{VX}, v{T3}, 4, v{T1}")
                S(f"v_xor_b32 v{VX+1}, 64, v{VX}")
                S(f"v_add_u32 v{VX+1}, {7*1024}, v{VX+1}")
                S(f"v_add_u32 v{VX+2}, {14*1024}, v{VX}")
                S(f"v_add_u32 v{VX+3}, {14*1024}, v{VX+1}")
            if SH1 == 32:
                S(f"v_and_b32 v{T1}, 31, v{LANE}")
                S(f"v_bfe_u32 v{T2}, v{LANE}, 1, 3")
                S(f"v_lshrrev_b32 v{T3}, 5, v{LANE}")
                S(f"v_xor_b32 v{T2}, v{T2}, v{T3}")
                S(f"v_lshlrev_b32 v{T1}, 7, v{T1}")
                if isB: S(f"v_add_u32 v{T1}, {8*BLK:#x}, v{T1}")
                for ks in range(4):
                    S(f"v_xor_b32 v{T3}, {2*ks}, v{T2}")
                    S(f"v_lshl_add_u32 v{XA+ks}, v{T3}, 4, v{T1}")
                S(f"v_lshrrev_b32 v{T1}, 5, v{LANE}")
                S(f"v_lshlrev_b32 v{T1}, 3, v{T1}")
                S(f"v_bfe_u32 v{T2}, v{LANE}, 2, 2")
                S(f"v_add_u32 v{T1}, v{T1}, v{T2}")
                S(f"v_lshlrev_b32 v{T1}, 7, v{T1}")
                S(f"v_bfe_u32 v{T2}, v{LANE}, 4, 1")
                S(f"v_lshl_add_u32 v{T1}, v{T2}, 13, v{T1}")
                S(f"v_bfe_u32 v{T3}, v{LANE}, 3, 1")
                S(f"v_lshl_add_u32 v{T2}, v{T3}, 1, v{T2}")
                S(f"v_xor_b32 v{T2}, s21, v{T2}")
                S(f"v_lshl_add_u32 v{T1}, v{T2}, 5, v{T1}")
                S(f"v_and_b32 v{T2}, 1, v{LANE}")
                S(f"v_lshl_add_u32 v{T1}, v{T2}, 4, v{T1}")
                S(f"v_bfe_u32 v{T2}, v{LANE}, 1, 1")
                S(f"v_lshl_add_u32 v{T1}, v{T2}, 3, v{T1}")
                S(f"v_add_u32 v{WA}, 0x10000, v{T1}")
            else:
                S(f"v_and_b32 v{T1}, 15, v{LANE}")
                S(f"v_bfe_u32 v{T2}, v{LANE}, 1, 3")
                S(f"v_lshrrev_b32 v{T3}, 4, v{LANE}")
                S(f"v_xor_b32 v{T2}, v{T2}, v{T3}")
                S(f"v_lshlrev_b32 v{T1}, 7, v{T1}")
                if isB: S(f"v_add_u32 v{T1}, {8*BLK:#x}, v{T1}")
                S(f"v_lshl_add_u32 v{XA}, v{T2}, 4, v{T1}")
                S(f"v_xor_b32 v{XA+1}, 64, v{XA}")
                S(f"v_lshlrev_b32 v{T1}, 3, v{T3}")
                S(f"v_bfe_u32 v{T2}, v{LANE}, 2, 2")
                S(f"v_add_u32 v{T1}, v{T1}, v{T2}")
                S(f"v_lshlrev_b32 v{T1}, 7, v{T1}")
                S(f"v_bfe_u32 v{T2}, v{LANE}, 4, 1")
                S(f"v_bfe_u32 v{T3}, v{LANE}, 3, 1")
                S(f"v_lshl_add_u32 v{T2}, v{T3}, 1, v{T2}")
                S(f"v_xor_b32 v{T2}, s21, v{T2}")
                S(f"v_lshl_add_u32 v{T1}, v{T2}, 5, v{T1}")
                S(f"v_and_b32 v{T2}, 3, v{LANE}")
                S(f"v_lshl_add_u32 v{T1}, v{T2}, 3, v{T1}")
                S(f"v_add_u32 v{WA}, 0x10000, v{T1}")
            for it in plan[-1]:
                if (it[0] == "W") == isB and it not in issued: item(it)
            if cfg.get("defer", 1): cut[0] = len(S.ins)
            S(f"s_mov_b32 s32, {f2u(C0):#x}\ns_mov_b32 s12, {f2u(C1):#x}")
            S(f"v_mov_b32 v{CC0}, s32")
            if cfg.get("pk", 0): S("v_mov_b32 v242, s32")
            S(f"s_lshl2_add_u32 s13, s17, s21\ns_mul_i32 s32, s16, {8*HSTR}\ns_add_u32 s13, s13, s32")
            if off: S(f"v_add_u32 v{VE}, s33, v{L16}\nv_add_u32 v{VE+1}, 0x10000, v{VE}\nv_add_u32 v{VE+2}, 0x20000, v{VE}")
            for g in range(8):
                if eowner(g) != SET: continue
                r = HS + g
                S(gexp(g, r) + f"\ns_mul_i32 s{r}, s{r}, {HSTR}\ns_add_u32 s{r}, s{r}, s13\ns_lshl_b32 s{r}, s{r}, 10")
            if isB:
                S("s_mul_i32 s92, s16, 14336\ns_lshl_b32 s32, s17, 7\ns_add_u32 s92, s92, s32\ns_lshl2_add_u32 s92, s21, s92")
                S(f"v_lshrrev_b32 v{T1}, 1, v{LANE}\nv_lshl_add_u32 v{VF2}, v{T1}, 20, v{L16}")
        if not isB and not spare:
            for n_, ev in enumerate(sorted(set(cfg.get("aflag", {}).values()))):
                r = 4 + n_
                S(f"s_add_u32 s{r}, s17, {ev//2}\ns_and_b32 s{r}, s{r}, 3\ns_mul_i32 s{r}, s{r}, 3584\ns_add_u32 s{r}, s{r}, s92")
                if ev >= 6: S(f"s_and_b32 s32, s{ev-6}, 1\ns_lshl4_add_u32 s{r}, s32, s{r}")
        if isB or spare:
            S(f"s_mov_b32 s{SD}, s10\ns_mov_b32 s{SD+1}, s11\ns_mov_b32 s{SD+2}, {0 if cfg.get('nod') else 1835008}\ns_mov_b32 s{SD+3}, 0x20000")
        if isB:
            S(f"v_bfe_u32 v{T3}, v{LANE}, 4, 1\nv_lshlrev_b32 v{T3}, 2, v{T3}\nv_xor_b32 v{T3}, v{T3}, v{LANE}\nv_and_b32 v{T3}, 7, v{T3}")
            S(f"v_lshrrev_b32 v{T1}, 3, v{LANE}\nv_lshlrev_b32 v{T1}, 10, v{T1}")
            S(f"v_lshl_add_u32 v{VD}, v{T3}, 4, v{T1}")
            if SH2 == 32:
                for q in range(1, 4): S(f"v_add_u32 v{VD+q}, {q*7*1024}, v{VD}")
            else:
                S(f"v_xor_b32 v{VD+1}, 32, v{VD}\nv_add_u32 v{VD+1}, {7*1024}, v{VD+1}\nv_add_u32 v{VD+2}, {14*1024}, v{VD}\nv_add_u32 v{VD+3}, {14*1024}, v{VD+1}")
        S(f"v_and_b32 v{T1}, 15, v{LANE}")
        S("s_lshl_b32 s32, s22, 1\ns_xor_b32 s32, s32, 2")
        S(f"v_subrev_u32 v{T2}, 10, v{T1}\nv_xor_b32 v{T2}, s32, v{T2}\nv_add_u32 v{T2}, 10, v{T2}")
        S(f"v_cmp_le_u32 vcc, 26, v{LANE}")
        S("s_nop 1")
        S(f"v_cndmask_b32 v{T1}, v{T1}, v{T2}, vcc")
        S(f"v_lshl_add_u32 v{T1}, v{T1}, 1, s23")
        S(f"v_mul_u32_u24 v{T2}, 37, v{T1}\nv_lshrrev_b32 v{T2}, 8, v{T2}")
        S(f"v_mul_u32_u24 v{T3}, 7, v{T2}\nv_sub_u32 v{T3}, v{T1}, v{T3}")
        S(f"v_add_u32 v{T3}, s34, v{T3}")
        S(f"v_subrev_u32 v{T4}, 7, v{T3}\nv_min_u32 v{T4}, v{T3}, v{T4}")
        S(f"v_mul_u32_u24 v{T5}, 86, v{T3}\nv_lshrrev_b32 v{T5}, 8, v{T5}\nv_mul_u32_u24 v{T5}, 3, v{T5}\nv_sub_u32 v{T5}, v{T3}, v{T5}")
        S(f"v_lshl_add_u32 v{T5}, v{T5}, 1, 1")
        S(f"v_cmp_le_u32 vcc, 21, v{T1}")
        S(f"v_and_b32 v{T3}, 3, v{T3}\nv_lshlrev_b32 v{T3}, 1, v{T3}")
        S(f"v_cndmask_b32 v{T4}, v{T4}, v{T5}, vcc")
        S(f"v_cmp_le_u32 vcc, 24, v{T1}")
        S(f"v_sub_u32 v{T2}, s35, v{T2}\nv_and_b32 v{T2}, 3, v{T2}")
        S(f"v_cndmask_b32 v{T4}, v{T4}, v{T3}, vcc")
        S(f"v_mad_u32_u24 v{T1}, v{T2}, 7, v{T4}" if XROT else f"v_lshl_add_u32 v{T1}, v{T4}, 2, v{T2}")
        S("s_lshl_b32 s95, s19, 7")
        if isB:
            S("s_lshl_b32 s32, s22, 15\ns_add_u32 s32, s32, s95")
            S(f"v_lshl_add_u32 v{T2}, v{T1}, 16, s32")
            S("s_mul_i32 s32, s18, 3584\ns_lshl4_add_u32 s32, s22, s32")
            S(f"v_lshl_add_u32 v{FV}, v{T1}, 7, s32")
            for j in range(14): S(f"v_readlane_b32 s{TB+j}, v{T2}, {j}")
        else:
            S(f"s_lshl1_add_u32 s32, s18, s22\ns_mul_i32 s32, s32, {HSTR*1024}")
            if cfg.get("hfake"):
                S(f"s_lshl1_add_u32 s32, s35, s22\ns_mul_i32 s32, s32, {HSTR*1024}\ns_and_b32 s84, s14, 1\ns_lshl_b32 s84, s84, 20\ns_add_u32 s32, s32, s84")
                S("s_mov_b32 s84, s4\ns_mov_b32 s85, s5\ns_mov_b32 s86, 0x200000\ns_mov_b32 s87, 0x20000")
            S(f"v_lshl_add_u32 v{T2}, v{T1}, 12, s32")
            S(f"v_lshrrev_b32 v{T1}, 5, v{LANE}")
            for j in range(14): S(f"v_readlane_b32 s{TB+j}, v{T2}, {16+j}")
            if SH2 == 32:
                S(f"v_lshlrev_b32 v{T1}, 3, v{T1}")
                S(f"v_bfe_u32 v{T2}, v{LANE}, 2, 2")
                S(f"v_add_u32 v{T1}, v{T1}, v{T2}")
                S(f"v_lshlrev_b32 v{T1}, 7, v{T1}")
                S(f"v_bfe_u32 v{T2}, v{LANE}, 3, 1")
                S(f"v_lshl_add_u32 v{T1}, v{T2}, 6, v{T1}")
                S(f"v_bfe_u32 v{T2}, v{LANE}, 4, 1")
                S(f"v_lshl_add_u32 v{T1}, v{T2}, 5, v{T1}")
                S(f"v_and_b32 v{T2}, 1, v{LANE}")
                S(f"v_lshl_add_u32 v{T1}, v{T2}, 4, v{T1}")
                S(f"v_bfe_u32 v{T2}, v{LANE}, 1, 1")
                S(f"v_lshl_add_u32 v{T1}, v{T2}, 3, v{T1}")
                S(f"s_lshl_b32 s32, s23, 13\ns_add_u32 s32, s32, {blk[('D', 0)]*BLK}")
                S(f"v_add_u32 v{DA+1}, s32, v{T1}")
                S(f"s_lshl_b32 s32, s23, 6\nv_xor_b32 v{DA+1}, s32, v{DA+1}")
                S(f"v_xor_b32 v{DA}, 64, v{DA+1}")
                S("s_cmp_eq_u32 s22, 1")
                o1 = [blk[("D", 9)]] + [blk[("D", 10 + i)] for i in range(4)]
                o0 = [blk[("D", 9)]] + [blk[("D", 10 + (i ^ 2))] for i in range(4)]
                for i in range(4): S(f"s_cselect_b32 s{88+i}, {o1[i+1]-o1[i]}, {o0[i+1]-o0[i]}")
                for i in range(4): S(f"s_lshl_b32 s{88+i}, s{88+i}, 14")
            else:
                S(f"v_lshrrev_b32 v{T1}, 4, v{LANE}\nv_lshlrev_b32 v{T1}, 3, v{T1}")
                S(f"v_bfe_u32 v{T2}, v{LANE}, 2, 2")
                S(f"v_add_u32 v{T1}, v{T1}, v{T2}")
                S(f"v_lshlrev_b32 v{T1}, 7, v{T1}")
                S(f"v_bfe_u32 v{T2}, v{LANE}, 3, 1")
                S(f"v_lshl_add_u32 v{T1}, v{T2}, 6, v{T1}")
                S(f"v_bfe_u32 v{T2}, v{LANE}, 4, 1")
                S(f"v_lshl_add_u32 v{T1}, v{T2}, 5, v{T1}")
                S(f"v_and_b32 v{T2}, 3, v{LANE}")
                S(f"v_lshl_add_u32 v{T1}, v{T2}, 3, v{T1}")
                S(f"s_lshl_b32 s32, s23, 13\ns_add_u32 s32, s32, {blk[('D', 0)]*BLK}")
                S(f"v_add_u32 v{DA+2}, s32, v{T1}")
                S(f"s_lshl_b32 s32, s23, 6\nv_xor_b32 v{DA+2}, s32, v{DA+2}")
                S(f"v_xor_b32 v{DA+3}, 32, v{DA+2}\nv_xor_b32 v{DA}, 64, v{DA+2}\nv_xor_b32 v{DA+1}, 64, v{DA+3}")
                S(f"v_lshrrev_b32 v{T1}, 4, v{LANE}\nv_lshlrev_b32 v{T1}, 9, v{T1}\nv_and_b32 v{T2}, 0xf0, v{L16}\nv_add_u32 v{DA+4}, v{T1}, v{T2}")
                S("s_cmp_eq_u32 s22, 1")
                o1 = [blk[("D", 9)]] + [blk[("D", 10 + i)] for i in range(4)]
                o0 = [blk[("D", 9)]] + [blk[("D", 10 + (i ^ 2))] for i in range(4)]
                for i in range(4): S(f"s_cselect_b32 s{88+i}, {o1[i+1]-o1[i]}, {o0[i+1]-o0[i]}")
                for i in range(4): S(f"s_lshl_b32 s{88+i}, s{88+i}, 14")
            S(f"s_mov_b32 s{SW}, s26\ns_mov_b32 s{SW+1}, s27\ns_mov_b32 s{SW+2}, 0x200000\ns_mov_b32 s{SW+3}, 0x20000")
            if cfg.get("o64", 0):
                S(f"v_and_b32 v{T1}, 15, v{LANE}\nv_lshlrev_b32 v{T1}, 10, v{T1}\nv_lshrrev_b32 v{T2}, 5, v{LANE}\nv_lshl_add_u32 v{T1}, v{T2}, 4, v{T1}\nv_bfe_u32 v{T2}, v{LANE}, 4, 1\nv_lshl_add_u32 v{VOUT}, v{T2}, 5, v{T1}")
            else:
                S(f"v_and_b32 v{T1}, 31, v{LANE}\nv_lshlrev_b32 v{T1}, 10, v{T1}\nv_lshrrev_b32 v{T2}, 5, v{LANE}\nv_lshl_add_u32 v{VOUT}, v{T2}, 4, v{T1}")
            S("s_lshl_b32 s32, s18, 16\ns_add_u32 s95, s95, s32\ns_lshl_b32 s32, s22, 15\ns_add_u32 s95, s95, s32\ns_lshl_b32 s32, s23, 6\ns_add_u32 s95, s95, s32")
            S(f"s_add_u32 s32, s33, {blk[('D', XJ)]*BLK}\nv_add_u32 v{VEX}, s32, v{L16}\nv_xor_b32 v{VEX+1}, 0x2000, v{VEX}")
        S(f"s_mov_b32 s{SH}, s30\ns_mov_b32 s{SH+1}, s31\ns_mov_b32 s{SH+2}, {0 if cfg.get('noh') else 64*HSTR*1024}\ns_mov_b32 s{SH+3}, 0x20000")
        lateq = []
        if cut[0] is not None:
            lateq = [re.sub(r"\bs32\b", "s85", i["t"]) for i in S.ins[cut[0]:]]
            del S.ins[cut[0]:]
        def late(n):
            while lateq and n > 0:
                S(lateq.pop(0)); n -= 1
            while lateq and lateq[0].startswith(("s_cselect", "s_addc", "v_cndmask", "s_nop", "v_readlane")):
                S(lateq.pop(0))
        if lite and not isB: S(f"v_mov_b32 v{LT}, 0\nv_mov_b32 v{LT+1}, 0\nv_mov_b32 v{LT+2}, 0")
        myplan = {s: [] for s in range(NST)}
        def c3x():
            S(f"s_mov_b32 s{SX}, s4\ns_mov_b32 s{SX+1}, s5\ns_mov_b32 s{SX+2}, 0x200000\ns_mov_b32 s{SX+3}, 0x20000")
            S(f"v_lshrrev_b32 v{T1}, 3, v{LANE}\nv_lshlrev_b32 v{T1}, 10, v{T1}\nv_and_b32 v{T2}, 0x70, v{L16}\nv_add_u32 v{T1}, v{T1}, v{T2}")
            S("s_lshl2_add_u32 s32, s16, s21\ns_lshl_b32 s32, s32, 16\ns_add_u32 s32, s32, 384")
            for i in range(8):
                S.add(f"buffer_load_dwordx4 v[{64+4*i}:{67+4*i}], v{T1}, s[{SX}:{SX+3}], s32 offen", vm=("c3x", i))
                S("s_add_u32 s32, s32, 8192")
        def c3w():
            S("s_cmp_eq_u32 s22, 0")
            S(f"s_cselect_b32 s{SX}, s6, s8\ns_cselect_b32 s{SX+1}, s7, s9\ns_mov_b32 s{SX+2}, 1835008\ns_mov_b32 s{SX+3}, 0x20000")
            S(f"v_min_u32 v{T1}, 880, v{L16}")
            S("s_lshl1_add_u32 s32, s35, s23\ns_lshl_b32 s32, s32, 3\ns_add_u32 s32, s32, 192\ns_mul_i32 s32, s32, 3584\ns_lshr_b32 s96, s14, 1\ns_mul_i32 s96, s96, 896\ns_add_u32 s32, s32, s96")
            for i in range(8):
                S.add(f"buffer_load_dwordx4 v[{128+4*i}:{131+4*i}], v{T1}, s[{SX}:{SX+3}], s32 offen", vm=("c3w", i))
                S("s_add_u32 s32, s32, 3584")
        def c3p():
            S(f"s_mov_b32 s{SX}, s4\ns_mov_b32 s{SX+1}, s5\ns_mov_b32 s{SX+2}, 0x200000\ns_mov_b32 s{SX+3}, 0x20000")
            S(f"v_lshrrev_b32 v{T1}, 3, v{LANE}\nv_lshlrev_b32 v{T1}, 10, v{T1}\nv_and_b32 v{T2}, 0x70, v{L16}\nv_add_u32 v{T1}, v{T1}, v{T2}")
            for pp in range(NS // 2):
                S(f"s_add_u32 s32, s84, {pp}\ns_and_b32 s32, s32, 3\ns_lshl2_add_u32 s32, s16, s32\ns_lshl2_add_u32 s32, s32, s21\ns_lshl_b32 s32, s32, 14\ns_add_u32 s32, s32, 384")
                for i in range(2):
                    S.add(f"buffer_load_dwordx4 v[{160+8*pp+4*i}:{163+8*pp+4*i}], v{T1}, s[{SX}:{SX+3}], s32 offen", vm=("c3p", pp, i))
                    S("s_add_u32 s32, s32, 8192")
        def xpair(n_):
            S(f"s_mov_b32 s{SX}, s4\ns_mov_b32 s{SX+1}, s5\ns_mov_b32 s{SX+2}, 0x200000\ns_mov_b32 s{SX+3}, 0x20000")
            S(f"s_add_u32 s32, s84, {n_}\ns_and_b32 s32, s32, 3\ns_lshl2_add_u32 s32, s16, s32\ns_lshl_b32 s32, s32, 16\ns_lshl_b32 s96, s21, 12\ns_add_u32 s32, s32, s96")
            for i in range(16):
                if i and i % 4 == 0: S("s_add_u32 s32, s32, 16384")
                S.add(f"buffer_load_dwordx4 v[{64+4*i}:{67+4*i}], v{L16}, s[{SX}:{SX+3}], s32 offen offset:{(i%4)*1024}", vm=("xp", n_, i), need_vm=([("xp", n_-1, i)] if str(n_-1) in cfg["spare_order"] else []))
        def warm():
            S("s_sub_u32 s32, s2, 224\ns_lshl2_add_u32 s32, s32, s21\ns_mul_i32 s32, s32, 14336")
            for i in range(14):
                if i and i % 4 == 0: S("s_add_u32 s32, s32, 4096")
                S.add(f"buffer_load_dwordx4 v[{4*i}:{4*i+3}], v{L16}, s[{SD}:{SD+3}], s32 offen offset:{(i%4)*1024}", vm=("wm", i))
        if spare:
            if isB:
                S("s_barrier")
                for j in range(10): item(("D", j))
                for j in range(10, 14): myplan[sched[("D", j)]].append(("D", j))
            else:
                S("s_barrier")
                for f in cfg.get("spare_order", "wxm"): {"w": c3w, "x": c3x, "m": warm, "p": c3p, "1": lambda: xpair(1), "2": lambda: xpair(2), "3": lambda: xpair(3), "b": lambda: S("s_barrier")}[f]()
                S.add("" if "b" in cfg.get("spare_order", "wxm") else "s_barrier", need_vm=["ALL"])
        elif isB:
            myplan = {s: plan[s] for s in range(NST)}

        M = []
        pooln = [0]
        def pool():
            r = POOL + 4 * (pooln[0] % NPOOL); pooln[0] += 1; return r
        def wreads(i):
            wo = (blk[("W", i)] - 4) * BLK
            out = {}
            for sl in range(4):
                slot = 4*i + sl; wreg = WR + 4*slot
                off = wo + sl*2048 if SH1 == 32 else wo + (sl % 2)*8192 + (sl // 2)*4096
                out[slot] = [(("w", slot, j), f"ds_read_b64_tr_b16 v[{wreg+2*j}:{wreg+2*j+1}], v{WA} offset:{off + j*512}") for j in range(2)]
            return out
        def p1(step, i, g, xo, readw):
            a = ACC[accof[g]]
            wr = wreads(i) if readw else {}
            lastg = (g == groups[SET][-1])
            res = []
            if SH1 == 32:
                for ks in range(4):
                    slot = 4*i + ks
                    res.append([dict(step=step, d=a, n=16, A=WR + 4*slot, rd=wr.get(slot, []), xrd=(("x", g, slot), f"v{XA+ks} offset:{xo}"),
                                     first=(slot == 0), last=(slot == 31), g=g, wdead=(slot if lastg else None), slot=slot)])
            else:
                for k2 in range(2):
                    sub_l = []
                    for sub in range(2):
                        for mat in range(2):
                            slot = 4*i + 2*k2 + mat
                            sub_l.append(dict(step=step, d=a + 8*mat + 4*sub, n=4, A=WR + 4*slot, rd=(wr.get(slot, []) if sub == 0 else []),
                                              xrd=((("x", g, i, k2, sub), f"v{XA+k2} offset:{xo + sub*2048}") if mat == 0 else None),
                                              first=(i == 0 and k2 == 0), last=(i == 7 and k2 == 1 and sub == 1 and mat == 1), g=g,
                                              wdead=(slot if lastg and sub == 1 else None), slot=slot))
                    res.append(sub_l)
            return res
        def push(lst):
            for m in lst:
                if m["xrd"] is not None:
                    xr = pool(); push.cur = xr
                    m["rd"] = m["rd"] + [(m["xrd"][0], f"ds_read_b128 v[{xr}:{xr+3}], {m['xrd'][1]}")]
                    m["pool"] = 1
                else: m["pool"] = 0
                m["B"] = push.cur
                M.append(m)
        if not spare and not isB:
            for i in range(8):
                gs = [p1(i, i, g, (blk[("X", i // 2)]*BLK + (2*(i % 2) + u)*4096 if NS == 2 else blk[("X", i)]*BLK + u*4096), u == 0) for u, g in enumerate(SP)]
                for parts in zip(*gs):
                    for u in parts: push(u)
            for n_, g in enumerate(AL):
                for i in range(8):
                    for u in p1(8 + 2*n_ + i // 4, i, g, blk[("X", XS + 2*n_ + i // 4)]*BLK + (i % 4)*4096, False): push(u)
        if not spare and isB:
            for n_, (g, bs) in enumerate(bgroups):
                for i in range(8):
                    assert bs[i] >= i
                    for u in p1(bs[i], i, g, (blk[("Y", 2*n_ + i // 4)] - 8)*BLK + (i % 4)*4096, False): push(u)
        if not isB and SH2 == 16:
            for j in range(14):
                order = [(k2, i) for k2 in range(2) for i in range(4)] if j < 13 else [(k2, 2*t + jj) for t in range(2) for k2 in range(2) for jj in range(2)]
                seen = set()
                for k2, i in order:
                    r = pool()
                    rd = []
                    if j > 0 and i not in seen:
                        dl = f"s{88 + j - 10}" if j >= 10 else f"{((blk[('D', j)] - blk[('D', j-1)]) * BLK) & 0xffffffff:#x}"
                        rd.append((None, f"v_add_u32 v{DA+i}, {dl}, v{DA+i}"))
                    seen.add(i)
                    rd += [(("d", j, k2, i, jj), f"ds_read_b64_tr_b16 v[{r+2*jj}:{r+2*jj+1}], v{DA+i} offset:{k2*4096 + jj*512}") for jj in range(2)]
                    for sub in range(2):
                        n = 4*j + 2*k2 + sub
                        M.append(dict(step=P2 + j // 2, d=A2[i // 2] + 8*(i % 2) + 4*sub, n=4, A=r, B=WR + 4*(n % 32), first=(j == 0 and k2 == 0),
                                      rd=(rd if sub == 0 else []), h=n, hc=(n + 1 if i == 3 else 4*j + 2*k2), last=False, pool=(1 if sub == 0 else 0)))
        TK = cfg.get("tk", 4)
        if not isB and SH2 == 32:
            order = [(n, t) for n in range(56 - TK) for t in range(2)] + [(n, t) for t in range(2) for n in range(56 - TK, 56)]
            for n, t in order:
                j, ks = n // 4, n % 4
                r = pool()
                rd = []
                if j > 0 and ks == 0:
                    dl = f"s{88 + j - 10}" if j >= 10 else f"{((blk[('D', j)] - blk[('D', j-1)]) * BLK) & 0xffffffff:#x}"
                    rd.append((None, f"v_add_u32 v{DA+t}, {dl}, v{DA+t}"))
                rd += [(("d", j, ks, t, jj), f"ds_read_b64_tr_b16 v[{r+2*jj}:{r+2*jj+1}], v{DA+t} offset:{ks*2048 + jj*512}") for jj in range(2)]
                M.append(dict(step=P2 + j // 2, d=A2[t], n=16, A=r, B=WR + 4*(n % 32), first=(n == 0), rd=rd, h=n, t=t, last=False, pool=1))
        NM = len(M)
        cum = [0]
        for m in M: cum.append(cum[-1] + m["pool"])
        def epi(g):
            a = ACC[baccof[g] if (isB and g in off) else accof[g]]
            L = []
            if g in off and not isB:
                b = off[g]
                return [dict(text=f"ds_write_b128 v{VE + b // 4}, v[{a+4*i}:{a+4*i+3}] offset:{(b % 4)*BLK + 1024*i}", lds=("ew", g, i), vr=range(a+4*i, a+4*i+4), cost=99) for i in range(4)]
            T = lambda i: TMP + i
            idx = range(8)
            TC = cfg.get("tcost", 2)
            if cfg.get("mix", 0):
                nl = [("er", g, 3)] if g in off else []
                stg = lambda i: [dict(text=f"v_mul_f32 v{T(i)}, v{a+i}, v{a+i}", vr=[a+i], cost=1, nl=nl),
                                 dict(text=f"v_fma_f32 v{T(i)}, v{T(i)}, s12, v{CC0}", cost=1),
                                 dict(text=f"v_mul_f32 v{T(i)}, v{T(i)}, v{a+i}", cost=1),
                                 dict(text=f"v_exp_f32 v{T(i)}, v{T(i)}", cost=TC, trans=T(i)),
                                 dict(text=f"v_mul_f32 v{a+8+i}, v{a+i}, v{a+8+i}", vr=[a+8+i], cost=1),
                                 dict(text=f"v_add_f32 v{T(i)}, 1.0, v{T(i)}", vr=[T(i)], cost=1),
                                 dict(text=f"v_rcp_f32 v{T(i)}, v{T(i)}", cost=TC, trans=T(i)),
                                 dict(text=f"v_mul_f32 v{a+8+i}, v{a+8+i}, v{T(i)}", vr=[T(i)], cost=1)]
                al_ = {i: stg(i) for i in idx}
                if cfg.get("pk", 0):
                    P = lambda r: f"v[{r}:{r+1}]"
                    PC = cfg.get("pcost", 1)
                    which = cfg["pk"]
                    for i in range(0, 8, 2):
                        pkop = {0: dict(text=f"v_pk_mul_f32 {P(T(i))}, {P(a+i)}, {P(a+i)}", vr=[a+i, a+i+1], cost=PC),
                                1: dict(text=f"v_pk_fma_f32 {P(T(i))}, {P(T(i))}, s[12:13], {P(242)} op_sel_hi:[1,0,0]", cost=PC),
                                2: dict(text=f"v_pk_mul_f32 {P(T(i))}, {P(T(i))}, {P(a+i)}", cost=PC),
                                4: dict(text=f"v_pk_mul_f32 {P(a+8+i)}, {P(a+i)}, {P(a+8+i)}", vr=[a+8+i, a+9+i], cost=PC)}
                        for k_ in which:
                            al_[i][k_] = pkop[k_]; al_[i+1][k_] = None
                o_ = HOLDR if g in cfg.get("hold", ()) else a
                if cfg.get("cvtspread", 1):
                    for i in range(1, 8, 2):
                        al_[i].append(None)
                        al_[i].append(dict(text=f"v_cvt_pk_bf16_f32 v{o_+i//2}, v{a+7+i}, v{a+8+i}", cost=cfg.get("ccost", 1), vw=[o_+i//2]))
                ops = sorted(((2*i + k_, i, k_) for i in idx for k_ in range(len(al_[i]))))
                L += [al_[i][k_] for _, i, k_ in ops if al_[i][k_] is not None]
                if cfg.get("noepi"): L = [dict(text="", cost=e_["cost"]) for e_ in L]
                idx = ()
            for i in idx: L.append(dict(text=f"v_mul_f32 v{T(i)}, v{a+i}, v{a+i}", vr=[a+i], cost=1, nl=([("er", g, 3)] if g in off else [])))
            for i in idx: L.append(dict(text=f"v_fma_f32 v{T(i)}, v{T(i)}, s12, v{CC0}", cost=1))
            for i in idx: L.append(dict(text=f"v_mul_f32 v{T(i)}, v{T(i)}, v{a+i}", cost=1))
            for i in idx:
                L.append(dict(text=f"v_exp_f32 v{T(i)}, v{T(i)}", cost=2, trans=T(i)))
                L.append(dict(text=f"v_mul_f32 v{a+8+i}, v{a+i}, v{a+8+i}", vr=[a+8+i], cost=1))
            for i in idx: L.append(dict(text=f"v_add_f32 v{T(i)}, 1.0, v{T(i)}", vr=[T(i)], cost=1))
            for i in idx: L.append(dict(text=f"v_rcp_f32 v{T(i)}, v{T(i)}", cost=2, trans=T(i)))
            for i in idx: L.append(dict(text=f"v_mul_f32 v{a+8+i}, v{a+8+i}, v{T(i)}", vr=[T(i)], cost=1))
            o = HOLDR if g in cfg.get("hold", ()) else a
            if not (cfg.get("mix", 0) and cfg.get("cvtspread", 1)):
                for i in range(4): L.append(dict(text=f"v_cvt_pk_bf16_f32 v{o+i}, v{a+8+2*i}, v{a+8+2*i+1}", cost=1, vw=[o+i]))
            if SH1 == 16:
                for i in range(2): L.append(dict(text=f"v_permlane16_swap_b32 v{o+i}, v{o+2+i}", cost=1, pr=[o+i, o+2+i]))
            L.append(dict(text=f"buffer_store_dwordx4 v[{o}:{o+3}], v{L16}, s[{SH}:{SH+3}], s{HS+g} offen sc1", vm=("st", g), cost=1))
            return L
        def put(e):
            if e.get("vm"):
                g = e["vm"][1]
                if g in hold:
                    assert not held; held.append((e, -100)); return
                for h_, _ in held: S.add(h_["text"], vm=h_["vm"])
                held.clear()
            S.add(e["text"], vm=e.get("vm"), lds=e.get("lds"), need_lds=e.get("nl", ()), vr=e.get("vr", ()), trans=e.get("trans"), vw=e.get("vw", ()), pr=e.get("pr", ()))
        aflag = cfg.get("aflag", {})
        hold = cfg.get("hold", ())
        held = []
        covers = lambda ev: (ev - 1, ev) if ev < 6 else (ev,)
        flagged = set()
        def flag(ev):
            nv = [("st", g) for g in covers(ev) if eowner(g) == 1]
            S(f"s_add_u32 s97, s84, {ev//2}\ns_and_b32 s97, s97, 3\ns_mul_i32 s97, s97, 3584\ns_add_u32 s97, s97, s92")
            if ev >= 6: S(f"s_and_b32 s13, s{ev-6}, 1\ns_lshl4_add_u32 s97, s13, s97")
            S.add(f"buffer_store_dword v{TAG}, v{VF2 if ev < 6 else VF}, s[{SF}:{SF+3}], s97 offen sc1", vm=("flag", ev), need_vm=nv)
            flagged.add(ev)
        def tag_issue():
            S.add("s_load_dwordx2 s[14:15], s[74:75], 0", need_lds=["ALL"])
            if isB and cfg.get("swarm", 1): S(f"s_load_dword s4, s[{SF}:{SF+1}], {FSZ-64}")
        def tag_check():
            S("s_mov_b32 s97, 0")
            S.add("s_waitcnt lgkmcnt(0)", need_lds=["ALL"])
            S(f"L_tag{sfx}:")
            S("s_cmp_lg_u32 s15, 0")
            S(f"s_cbranch_scc1 L_tagok{sfx}")
            S("~s_add_u32 s97, s97, 1")
            S("~s_cmp_ge_u32 s97, 0x100000")
            S(f"~s_cbranch_scc1 L_tagok{sfx}")
            S("~s_sleep 2")
            S(f"~v_mov_b32 v{PR+2}, 0")
            S(f"~global_load_dwordx2 v[{PR}:{PR+1}], v{PR+2}, s[74:75] sc1")
            S("~s_waitcnt vmcnt(0)")
            S(f"~v_readfirstlane_b32 s14, v{PR}")
            S(f"~v_readfirstlane_b32 s15, v{PR+1}")
            S("~s_nop 1")
            S(f"~s_branch L_tag{sfx}")
            S(f"L_tagok{sfx}:")
            S(f"v_mov_b32 v{TAG}, s14")
            S("s_mov_b32 s15, s14")
        polling = [None]
        pmask = lambda c: (((1 << pg[c][1]) - 1) ^ ((1 << pg[c][0]) - 1)) << 16
        PD4 = (4, 8, 24, 28)
        def poll_loads(c, pre=""):
            for i in range(pg[c][1] - pg[c][0]):
                S(f"{pre}s_load_dwordx4 s[{PD4[i]}:{PD4[i]+3}], s[{SF}:{SF+1}], s{88+i} glc")
        def poll_issue(c):
            assert polling[0] is None; polling[0] = c
            for i, j in enumerate(range(*pg[c])): S(f"v_readlane_b32 s{88+i}, v{FV}, {16+j}")
            S.add("s_nop 3", need_lds=["ALL"])
            poll_loads(c)
        def poll_check(c):
            assert polling[0] == c; polling[0] = None
            prs = [r + d for r in PD4[:pg[c][1] - pg[c][0]] for d in (0, 2)]
            S("s_mov_b32 s96, 0")
            S(f"L_poll{sfx}{c}:")
            S.add("s_waitcnt lgkmcnt(0)", need_lds=["ALL"])
            for r in prs: S(f"s_xor_b64 s[{r}:{r+1}], s[{r}:{r+1}], s[14:15]")
            for r in prs[1:]: S(f"s_or_b64 s[4:5], s[4:5], s[{r}:{r+1}]")
            S(f"s_cbranch_scc0 L_ok{sfx}{c}")
            S("~s_add_u32 s96, s96, 1")
            S("~s_cmp_ge_u32 s96, 0x100000")
            S(f"~s_cbranch_scc1 L_ok{sfx}{c}")
            if spare: S(f"~s_sleep {8 if c == 0 else 2}")
            S("~s_and_b32 s4, s96, 63")
            S(f"~s_cbranch_scc1 L_sp{sfx}{c}")
            S(f"~s_mov_b64 exec, {pmask(c):#x}")
            S(f"~buffer_load_dwordx4 v[{PR}:{PR+3}], v{FV}, s[{SF}:{SF+3}], 0 offen sc1")
            S("~s_mov_b64 exec, -1")
            S("~s_waitcnt vmcnt(0)")
            S(f"~v_cmp_eq_u64 vcc, s[14:15], v[{PR}:{PR+1}]")
            S(f"~v_cmp_eq_u64_e64 s[4:5], s[14:15], v[{PR+2}:{PR+3}]")
            S("~s_nop 1")
            S("~s_and_b32 s4, s4, vcc_lo")
            S(f"~s_andn2_b32 s4, {pmask(c):#x}, s4")
            S(f"~s_cbranch_scc0 L_ok{sfx}{c}")
            S(f"L_sp{sfx}{c}:")
            poll_loads(c, "~")
            S(f"~s_branch L_poll{sfx}{c}")
            S(f"L_ok{sfx}{c}:")
        pts = [(rel(a), rel(b)) for a, b in (cfg["ppts_s"] if spare else cfg["ppts"])]
        def points(s, k):
            if not spare:
                if cfg["tag_pts"][0] == (s, k): tag_issue()
                if cfg["tag_pts"][1] == (s, k): tag_check()
                for ev, pt in flag_pts.items():
                    if pt == (s, k): flag(ev)
            for c, (pi, pc) in enumerate(pts):
                if pc == (s, k) and pi != pc: poll_check(c)
            for c, (pi, pc) in enumerate(pts):
                if pi == (s, k):
                    poll_issue(c)
                    if pi == pc: poll_check(c)

        first = P2 - 2 if spare else 0
        st = dict(rd=0, h=0, bar=first - 1, wdead=(32 if spare else 0), n=0, hcons=0, ok=0)
        epq = []; dmaq = []; lpend = []; wq = []
        def barrier():
            s = st["bar"] + 1
            assert not dmaq
            late(cfg.get("late_at", ({1: 70, 2: 40, 3: 0, 4: 50, 5: 999},) * 2)[SET].get(s, 0))
            nv = [(k, i, 3) for (k, i) in issued if vstep(first_use((k, i))) < next_bar(s)]
            drain = ["ALL"] if (isB or s < ES) else []
            if not spare and not isB:
                for ev, pt in flag_pts.items():
                    if s == prev_bar(pt[0]): nv += [("st", g) for g in covers(ev) if eowner(g) == 0]
            lt = lite and not isB
            if not isB and not spare and aflag and s == cfg["atag"][1]: tag_check()
            if s not in nobar:
                if lt:
                    S.add("s_waitcnt lgkmcnt(0)" if drain else "", need_lds=drain, need_vm=nv)
                    for (r, v, idx) in lpend: S(f"v_writelane_b32 v{v}, s{r}, {idx}")
                    lpend.clear()
                    S("s_memtime s[8:9]"); lpend.append((8, LT + 1, s + 1))
                S.add("s_barrier", need_lds=drain, need_vm=nv)
            if lt:
                r = [x for x in (98, 96, 6) if not any(y[0] == x for y in lpend)][0]
                S(f"s_memtime s[{r}:{r+1}]"); lpend.append((r, LT + 2, s + 1))
                if s not in nobar: S("s_memrealtime s[10:11]"); lpend.append((10, LT, s + 1))
            st["bar"] = s
            if not isB and not spare and aflag and s == cfg["atag"][0]: tag_issue()
            if isB and cfg.get("diag") == s: S("s_memrealtime s[82:83]")
            for c, (pi, pc) in enumerate(pts):
                if s == next_bar(pc[0]): st["ok"] = max(st["ok"], pg[c][1])
            for it in myplan[s]:
                if it[0] == "D": assert not lateq
                if it[0] == "D" and it[1] in stage and not spare: continue
                su, dm = item_ops(it)
                dmaq.append((su, None, None))
                for k, (t, tag) in enumerate(dm): dmaq.append((t, tag, it if k == 3 else None))
            if isB and not spare:
                for j, ss in stage.items():
                    if ss == s:
                        assert st["n"] == NM or sreg[j] >= 128, "W registers of set B still in use"
                        for q in range(4):
                            r = sreg[j] + 4*q
                            dmaq.append((f"buffer_load_dwordx4 v[{r}:{r+3}], v{VD+q}, s[{SD}:{SD+3}], s{TB+j} offen offset:{1024*q}", ("sg", j, q), None))
        def unstage(s):
            for it in myplan[s]:
                if it[0] == "D" and it[1] in stage and not spare:
                    j = it[1]
                    S(f"s_add_u32 s32, s33, {blk[it]*BLK}\nv_add_u32 v{XA+3}, s32, v{L16}")
                    for q in range(4):
                        r = sreg[j] + 4*q
                        S.add(f"ds_write_b128 v{XA+3}, v[{r}:{r+3}] offset:{1024*q}", lds=("us", j, q), need_vm=[("sg", j, q)])
        def issue_dma(n):
            while dmaq and n > 0:
                t, tag, it = dmaq.pop(0)
                if tag is None: S(t); continue
                S.add(t, vm=tag); n -= 1
                if it: issued.append(it)
        def issue_reads(n, maxn, lim):
            cnt = 0
            while st["rd"] < NM and (M[st["rd"]]["step"] if isB else vstep(M[st["rd"]]["step"])) < lim and cnt < maxn:
                k = st["rd"]
                lo = cum[n + 1] - 1 if n >= 0 else 0
                if cum[k + 1] - lo > (cfg.get("look2", 6) if "h" in M[k] else cfg.get("look", NPOOL)): break
                for (i, t) in M[k]["rd"]: S.add(t, lds=i)
                if M[k]["rd"]: cnt += 1
                st["rd"] += 1
        def issue_h(maxn):
            cnt = 0
            while st["h"] < 56 and cnt < maxn:
                h = st["h"]
                lim = 56 if spare else hmax.get(st["bar"], 0 if st["bar"] < min(hmax) else 56)
                if not (h < lim and (h < st["wdead"] if h < 32 else h - 32 < st["hcons"]) and h // 4 < st["ok"]): break
                r = WR + 4 * (h % 32)
                S.add(f"buffer_load_dwordx4 v[{r}:{r+3}], v{L16 if SH2 == 32 else DA+4}, s[{SH}:{SH+3}], s{TB + h//4} offen offset:{(h % 4)*1024 if SH2 == 32 else (h % 4 // 2)*2048 + (h % 2)*256} sc1", vm=("h", h))
                st["h"] += 1; cnt += 1
        def issue_epi(budget):
            used = 0
            while epq and used < budget:
                e = epq[0][0].pop(0)
                put(e); used += e["cost"]
                if not epq[0][0]: epq.pop(0)
            return used
        WB = cfg.get("wb", 2)
        def mfma():
            n = st["n"]; m = M[n]
            ph2 = "h" in m
            nv = [("h", m["h"])] if ph2 else []
            if ph2: assert m["h"] < st["h"], ("h not issued", m["h"], st["h"], n)
            assert st["rd"] > n, ("reads not issued", n)
            if m["first"]:
                for e in epq + held + wq: assert not (e[1] <= m["d"] < e[1] + 16), ("acc reuse", n, m["step"])
            d, nn = m["d"], m["n"]
            c = "0" if m["first"] else f"v[{d}:{d+nn-1}]"
            op = "v_mfma_f32_32x32x16_bf16" if nn == 16 else "v_mfma_f32_16x16x32_bf16"
            wb = WB * (1 if nn == 16 else 2)
            nl = [i for k in range(n, min(n + (wb if n % wb == 0 else 1), st["rd"])) for i, _ in M[k]["rd"] if i is not None]
            if isB: nl += [("w", m["slot"], 0), ("w", m["slot"], 1)]
            S.add(f"{op} v[{d}:{d+nn-1}], v[{m['A']}:{m['A']+3}], v[{m['B']}:{m['B']+3}], {c}" if not (cfg.get("nomf") and n % 2) else "", need_lds=nl, need_vm=nv, mw=(d, d + nn - 1))
            if m.get("wdead") is not None: st["wdead"] = m["wdead"] + 1
            if m["last"]:
                ent = [epi(m["g"]), ACC[accof[m["g"]]], n + 1 + (cfg.get("elast", 4 * MUL) if m["g"] == groups[0][-1] else cfg.get("estart", 4) * MUL), m["g"]]
                if m["g"] in off: wq.append(ent)
                else: epq.append(ent)
            if ph2: st["hcons"] = max(st["hcons"], m["hc"]) if "hc" in m else m["h"] + m["t"]
            st["n"] += 1
            if ph2:
                w0 = NM - TK + 1
                if n in (w0, w0 + 1):
                    for i in (2*(n - w0), 2*(n - w0) + 1):
                        S.add(f"ds_write_b128 v{VEX}, v[{A2[0]+4*i}:{A2[0]+4*i+3}] offset:{1024*i}", lds=("xw", i), vr=range(A2[0]+4*i, A2[0]+4*i+4))
                if n == NM - 1 - cfg.get("tb", 0): exch()
        def exch():
            assert st["rd"] == NM
            S.add("s_barrier", need_lds=["ALL"])
            for i in range(4):
                S.add(f"ds_read_b128 v[{RED+4*i}:{RED+4*i+3}], v{VEX+1} offset:{1024*i}", lds=("xr", i))
        if isB and not spare and cfg.get("pages", 0) == 1:
            for p_ in range(1, touch["n"]):
                if (p_ - 1) % 4 // 2 != var: continue
                S(f"s_cmp_eq_u32 s22, {(p_ - 1) % 2}")
                S(f"s_cbranch_scc0 L_nt{sfx}{p_}")
                S(f"s_call_b64 s[98:99], L_stub{p_}")
                S(f"L_nt{sfx}{p_}:")
        if not isB and not spare and cfg.get("pages", 0) == 3: S("@TOUCH@")
        prio = cfg.get("prio", (1, 0))
        S(f"s_setprio {prio[SET]}")
        if spare and isB:
            tag_issue(); tag_check()
            points(first - 1, 99)
        lastB = max([next_bar(pc[0]) for _, pc in pts] + [vstep(first_use(("D", 13)))])
        for s in range(first, NST):
            if isB and s > lastB: break
            barrier()
            end = st["n"]
            while end < NM and M[end]["step"] <= s: end += 1
            if not isB:
                BK = cfg.get("bk", 3) * (MUL if s < P2 else MUL2)
                if s + 1 >= ES: BK = 0
                if s < LAST and end > st["n"]: end -= BK
                issue_reads(st["n"] - 1, 99, next_bar(s))
                if spare and s < P2: issue_h(99)
                k = 0
                while st["n"] < end:
                    mfma(); k += 1
                    if lite and s in cfg.get("fine", ()) and k % 2 == 0 and k <= 16:
                        r = (36, 38, 40, 42, 48, 50, 56, 58)[k // 2 - 1]
                        S(f"s_memtime s[{r}:{r+1}]"); lpend.append((r, LT + 2, 30 + 8 * cfg["fine"].index(s) + k // 2 - 1))
                    issue_reads(st["n"] - 1, 2, next_bar(s))
                    nn = M[st["n"] - 1]["n"]
                    per = cfg.get("hper_at", {}).get(s - P2, cfg.get("hper", 2)) * (MUL if s < P2 else MUL2)
                    if k % per == per - 1 or (s >= P2 and st["h"] < st["hcons"] + 6): issue_h(1)
                    if wq and st["n"] >= wq[0][2] and (nn == 16 or k % 2):
                        put(wq[0][0].pop(0))
                        if not wq[0][0]: wq.pop(0)
                    elif epq and st["n"] >= epq[0][2]:
                        eb = cfg.get("eon2", 5) if s >= P2 else cfg.get("eon_at", {}).get(s, cfg["eon"])
                        if nn == 16: issue_epi(eb)
                        elif cfg.get("split16", 0):
                            st["cr"] = min(st.get("cr", 0), 0) + (eb // 2 if M[st["n"] - 1]["pool"] else eb - eb // 2)
                            if st["cr"] > 0: st["cr"] -= issue_epi(st["cr"])
                        elif k % 2: issue_epi(eb)
                assert not wq, ("hand-over not finished", s)
                assert s == LAST or s + 1 in nobar or (spare and s < P2) or s + 1 >= ES or st["rd"] == end + BK, (s, st["rd"], end)
            else:
                pa = {(P2 + k_[0] if isinstance(k_, tuple) else k_): v for k_, v in cfg.get("prio_at", {}).items()}
                if s in pa: S(f"s_setprio {pa[s]}")
                lag = cfg.get("blag", 1)
                if lag:
                    while st["n"] < NM and M[st["n"]]["step"] < s:
                        mfma()
                        if M[st["n"] - 1]["n"] == 16 or st["n"] % 2 == 0: issue_dma(1)
                if s < 8 and not spare and bgroups:
                    for slot, rds in wreads(s).items():
                        for (i, t) in rds: S.add(t, lds=i)
                        issue_dma(1)
                issue_reads(st["n"] - 2 if False else st["n"] - 1, 99, s + 1)
                if lag: assert st["rd"] == end, (s, st["rd"], end)
                if not spare:
                    for g in sorted(off):
                        if gend[g] + 1 == s:
                            a = ACC[baccof[g]]; b = off[g]
                            assert polling[0] is None, ("scalar poll in flight over LDS reads", s)
                            for e in epq: assert e[1] != a, ("B acc reuse", g)
                            for i in range(4):
                                S.add(f"ds_read_b128 v[{a+4*i}:{a+4*i+3}], v{VE + b // 4} offset:{(b % 4)*BLK + 1024*i}", lds=("er", g, i))
                            epq.append([epi(g), a, 0, g])
                eb = cfg.get("eoff_at", {}).get(s, cfg["eoff"])
                efirst = (var == 1 or s in cfg.get("epi_first", ()))
                points(s, 0)
                if efirst: issue_epi(eb)
                unstage(s)
                issue_dma(99)
                points(s, 50)
                while not lag and st["n"] < end:
                    mfma()
                    issue_reads(st["n"] - 1, 2, s + 1)
                if not efirst: issue_epi(eb)
                points(s, 99)
                if cfg.get("pages") == 4 and not spare:
                    for p_, bi in enumerate(touch["at"]):
                        if s == max(0, bi - cfg.get("tdist", 3)):
                            S(f"s_cmp_eq_u32 s21, {p_ % 4}\ns_cbranch_scc0 L_nt{sfx}{p_}\n~s_call_b64 s[98:99], L_stub{p_}\nL_nt{sfx}{p_}:")
        assert not epq and st["n"] == NM
        if isB:
            if not spare: assert flagged | set(aflag.values()) == {1, 3, 5, 6, 7} and not flagged & set(aflag.values()), flagged
            if cfg.get("diag") is not None and not spare:
                S(f"s_cmp_lg_u32 s2, {cfg.get('diagwg', 8)}")
                S("s_cbranch_scc1 L_end")
                for s in range(lastB + 1, NST):
                    if s not in nobar: S("s_barrier")
                S("s_barrier")
                if cfg["diag"] == 99: S("s_memrealtime s[82:83]")
                S("s_waitcnt lgkmcnt(0)")
                if cfg["diag"] < 0: S("s_mov_b32 s82, s100")
                S("s_sub_u32 s98, s82, s100\ns_lshl_b32 s98, s98, 2\ns_add_u32 s98, s98, 3000")
                S(f"L_dg{sfx}:")
                S("s_memrealtime s[96:97]\ns_waitcnt lgkmcnt(0)\ns_sub_u32 s96, s96, s100\ns_cmp_lt_u32 s96, s98\ns_cbranch_scc1 L_dg" + sfx)
            S("s_endpgm")
            return S.render()
        assert st["h"] == 56
        R = RED; keep = A2[1]
        for q in range(2):
            for i in range(8*q, 8*q + 8): S.add(f"v_add_f32 v{R+i}, v{R+i}, v{keep+i}", need_lds=[("xr", i // 4)], vr=[keep+i])
            for i in range(4): S.add(f"v_cvt_pk_bf16_f32 v{TMP+4*q+i}, v{R+8*q+2*i}, v{R+8*q+2*i+1}", vw=[TMP+4*q+i])
            if SH2 == 16:
                for i in range(2): S.add(f"v_permlane16_swap_b32 v{TMP+4*q+i}, v{TMP+4*q+2+i}", pr=[TMP+4*q+i, TMP+4*q+2+i])
            if not cfg.get("o64", 0): S(f"buffer_store_dwordx4 v[{TMP+4*q}:{TMP+4*q+3}], v{VOUT}, s[{SW}:{SW+3}], s95 offen offset:{32*q}")
        if cfg.get("o64", 0):
            S("s_add_u32 s94, s95, 16384")
            for i in range(4): S.add(f"v_permlane16_swap_b32 v{TMP+i}, v{TMP+4+i}", pr=[TMP+i, TMP+4+i])
            for q in range(2): S(f"buffer_store_dwordx4 v[{TMP+4*q}:{TMP+4*q+3}], v{VOUT}, s[{SW}:{SW+3}], s{95-q} offen {cfg.get('outsc', '')}")
        if lite:
            for (r, v, idx) in lpend: S(f"v_writelane_b32 v{v}, s{r}, {idx}")
            S("s_memrealtime s[96:97]\ns_memtime s[36:37]\ns_waitcnt vmcnt(0)\ns_memrealtime s[98:99]\ns_waitcnt lgkmcnt(0)")
            S(f"v_writelane_b32 v{LT}, s100, 0\nv_writelane_b32 v{LT}, s96, 60\nv_writelane_b32 v{LT}, s98, 61")
            for x in range(NST + 1, 29): S(f"v_writelane_b32 v{LT+2}, s36, {x}")
            S(f"s_cmp_lg_u32 s20, {cfg.get('stwave', 1)}")
            S("s_cbranch_scc1 L_end")
            S(f"s_add_u32 s30, s{SH}, 0x8000000\ns_addc_u32 s31, s{SH+1}, 0")
            S(f"s_lshl_b32 s32, s2, 8\nv_lshrrev_b32 v0, 2, v{L16}\nv_add_u32 v0, s32, v0")
            for v in (LT, LT + 1, LT + 2):
                S(f"global_store_dword v0, v{v}, s[30:31]")
                S("v_add_u32 v0, 0x10000, v0")
        S("s_endpgm")
        return S.render()

    E = Stream()
    E("s_load_dwordx8 s[4:11], s[0:1], 0")
    E("s_load_dwordx4 s[24:27], s[0:1], 24")
    E("s_load_dwordx4 s[28:31], s[0:1], 40")
    if cfg.get("codepf") in (5, 6):
        if cfg["codepf"] == 5:
            E("s_cmp_ge_u32 s2, 224\ns_cbranch_scc0 L_reg0")
        E(f"s_getpc_b64 s[{SH}:{SH+1}]")
        E("L_pc:")
        if cfg["codepf"] == 5:
            E(f"s_bfe_u32 s35, s2, 0x20003\nv_lshlrev_b32 v{T1}, 4, v0\nv_lshl_add_u32 v{T1}, s35, 13, v{T1}")
        else:
            E(f"s_bfe_u32 s35, s2, 0x50003\nv_lshlrev_b32 v{T1}, 1, v0\nv_and_b32 v{T1}, 0x3fc, v{T1}\nv_lshl_add_u32 v{T1}, s35, 10, v{T1}")
        E(f"v_min_u32 v{T1}, L_codeend-L_pc-16, v{T1}")
        E(f"v_mov_b32 v{T2}, s{SH+1}")
        E(f"v_add_co_u32 v{T1}, vcc, s{SH}, v{T1}")
        E("s_nop 1")
        E(f"v_addc_co_u32 v{T2}, vcc, 0, v{T2}, vcc")
        E(f"global_load_dwordx4 v[204:207], v[{T1}:{T2}], off" if cfg["codepf"] == 5 else f"global_load_dword v204, v[{T1}:{T2}], off")
        E("L_reg0:")
    if lite or cfg.get("diag") is not None: E("s_memrealtime s[100:101]")
    E("v_lshrrev_b32 v1, 6, v0")
    E("s_cmp_ge_u32 s2, 256")
    E("s_cbranch_scc1 L_end")
    E("v_readfirstlane_b32 s20, v1")
    E("s_and_b32 s14, s2, 7\ns_lshr_b32 s15, s2, 3")
    E("s_and_b32 s35, s15, 3\ns_lshr_b32 s19, s15, 2")
    E("s_and_b32 s32, s14, 1\ns_lshl2_add_u32 s16, s32, s35")
    E("s_lshr_b32 s84, s14, 1\ns_mul_i32 s17, s84, 7\ns_add_u32 s17, s17, s19")
    if not XROT: E("s_mov_b32 s84, s17")
    E("s_lshl2_add_u32 s18, s14, s35")
    E("s_and_b32 s21, s20, 3")
    if cfg.get("nbswap", 1):
        E("s_mov_b32 s34, s19\ns_cmp_eq_u32 s19, 3\ns_cselect_b32 s19, 7, s19\ns_cmp_eq_u32 s34, 7\ns_cselect_b32 s19, 3, s19\ns_cselect_b32 s34, 0, s34")
    else:
        E("s_cmp_eq_u32 s19, 7\ns_cselect_b32 s34, 0, s19")
    if cfg.get("codepf") == 4:
        E("s_cbranch_scc0 L_reg")
        E(f"s_getpc_b64 s[{SH}:{SH+1}]")
        E("L_pc:")
        E(f"v_lshlrev_b32 v{T1}, 4, v0")
        E(f"v_lshl_add_u32 v{T1}, s35, 13, v{T1}")
        E(f"v_min_u32 v{T1}, L_codeend-L_pc-16, v{T1}")
        E(f"v_mov_b32 v{T2}, s{SH+1}")
        E(f"v_add_co_u32 v{T1}, vcc, s{SH}, v{T1}")
        E("s_nop 1")
        E(f"v_addc_co_u32 v{T2}, vcc, 0, v{T2}, vcc")
        E(f"global_load_dwordx4 v[204:207], v[{T1}:{T2}], off")
        E("s_branch L_spare")
        E("L_reg:")
    else:
        E("s_cbranch_scc1 L_spare")
    E(f"v_and_b32 v{LANE}, 63, v0")
    CM = cfg.get("cmode", 0)
    if CM == 0: E("s_lshl1_add_u32 s36, s35, s32")
    elif CM == 1: E("s_lshr_b32 s36, s35, 1\ns_mul_i32 s36, s36, 3\ns_lshl1_add_u32 s36, s32, s36\ns_add_u32 s36, s36, s32")
    elif CM == 2: E("s_mul_i32 s36, s32, 3")
    elif CM == 3: E("s_min_u32 s36, s14, 6")
    if cfg.get("crot", 1) == 1: E("s_lshr_b32 s32, s17, 2\ns_add_u32 s36, s36, s32")
    if cfg.get("crot", 1) == 2: E("s_add_u32 s36, s36, s34")
    if cfg.get("c3last", 1):
        E("s_sub_u32 s32, s36, 7\ns_min_u32 s36, s36, s32\ns_lshl_b32 s36, s36, 2")
        E("s_mov_b32 s96, 0x07654210\ns_mov_b32 s97, 0x65421\ns_lshr_b64 s[96:97], s[96:97], s36")
        E("s_and_b32 s36, s96, 0x0fffffff\ns_or_b32 s36, s36, 0x30000000")
    else:
        E("s_and_b32 s36, s36, 7\ns_lshl_b32 s36, s36, 2")
        E("s_mov_b32 s96, 0x76543210\ns_mov_b32 s97, s96\ns_lshr_b64 s[96:97], s[96:97], s36\ns_mov_b32 s36, s96")
    E("s_lshl_b32 s39, s16, 18")
    assert SP in ([0, 1], [0, 1, 2, 3])
    E("s_and_b32 s37, s21, 1")
    E(("s_lshl1_add_u32 s3, s84, s37" if NS == 2 else "s_lshl1_add_u32 s3, s84, s21") + "\ns_and_b32 s3, s3, 7\ns_lshl_b32 s3, s3, 15\ns_add_u32 s3, s3, s39")
    E("s_mul_i32 s37, s37, 114688\ns_lshl_b32 s32, s17, 7\ns_add_u32 s37, s37, s32")
    E("s_and_b32 s22, s21, 2")
    E("s_lshl_b32 s33, s21, 12")
    E("s_cmp_lt_u32 s20, 4")
    E("s_cselect_b32 s37, s3, s37")
    E("s_cselect_b32 s38, 1, 1792")
    E("s_cselect_b32 s12, 3, 1\ns_cselect_b32 s13, 0, 2")
    E(f"s_cselect_b32 s23, 0, {'s22' if SH1 == 32 else '0'}")
    E(f"s_cselect_b32 s92, 64, {0 if SH1 == 32 else 32}")
    E("s_cselect_b32 s93, 2, 7")
    E(f"s_cselect_b32 s{SX+2}, 8, 7")
    E("s_cselect_b32 s94, 0, 0x10000")
    E("s_cselect_b32 s95, s22, 0" if NS == 2 else "s_mov_b32 s95, 0")
    E(f"s_lshl_b32 s38, s38, 7\ns_lshl_b32 s93, s93, 9\ns_lshl_b32 s{SX+2}, s{SX+2}, 18")
    E(f"v_lshrrev_b32 v{T1}, 3, v{LANE}")
    E(f"v_lshrrev_b32 v{T2}, 4, v{LANE}")
    E(f"v_and_b32 v{T2}, s12, v{T2}")
    E(f"v_lshlrev_b32 v{T2}, s13, v{T2}")
    E(f"v_or_b32 v{T2}, s23, v{T2}")
    E(f"v_xor_b32 v{T2}, v{T2}, v{LANE}")
    E(f"v_and_b32 v{T2}, 7, v{T2}")
    E(f"v_mul_u32_u24 v{T1}, s93, v{T1}")
    E(f"v_lshl_add_u32 v{VX}, v{T2}, 4, v{T1}")
    E("s_lshl_b32 s93, s93, 3\ns_sub_u32 s93, s93, 1024")
    E(f"v_xor_b32 v{VX+1}, s92, v{VX}")
    E(f"v_add_u32 v{VX+1}, s93, v{VX+1}")
    E("s_lshl_b32 s93, s93, 1")
    E(f"v_add_u32 v{VX+2}, s93, v{VX}")
    E(f"v_add_u32 v{VX+3}, s93, v{VX+1}")
    E(f"s_mov_b32 s{SX+3}, 0x20000")
    E("s_add_u32 s33, s33, s94")
    E("s_lshl_b32 s95, s95, 1\ns_lshr_b32 s32, s36, s95\ns_and_b32 s32, s32, 7\ns_mul_i32 s32, s32, s38\ns_add_u32 s32, s32, s37")
    E("s_mov_b32 m0, s33")
    E("s_cmp_eq_u32 s22, 0")
    E("s_waitcnt lgkmcnt(0)")
    E(f"s_cselect_b32 s{SX}, s6, s8\ns_cselect_b32 s{SX+1}, s7, s9")
    E("s_cmp_lt_u32 s20, 4")
    E(f"s_cselect_b32 s{SX}, s4, s{SX}\ns_cselect_b32 s{SX+1}, s5, s{SX+1}")
    for q in range(4): E(f"buffer_load_dwordx4 v{VX+q}, s[{SX}:{SX+3}], s32 offen offset:{1024*q} lds")
    E("s_cbranch_scc0 L_B")
    body = E.render()
    atext = wave(False, False)
    nstub = 0
    if cfg.get("pages", 0):
        lines = atext.split("\n")
        bars = [i for i, l in enumerate(lines) if l.strip() == "s_barrier"]
        sz = [isize(l.strip()) if l.strip() else 0 for l in lines]
        cumsz = [0]
        for x in sz: cumsz.append(cumsz[-1] + x)
        cuts = [bars[0]]
        if cfg["pages"] == 4:
            esz = 0x300 + sum(isize(l.strip()) for l in body.split("\n") if l.strip())
            cuts = [[b for b in bars if esz + cumsz[b] <= 4070][-1]]
            if "cut0" in cfg: cuts = [bars[cfg["cut0"]]]
        while cumsz[-1] - cumsz[cuts[-1]] > 4080:
            ok = [b for b in bars if b > cuts[-1] and cumsz[b] - cumsz[cuts[-1]] <= 4080]
            cuts.append(ok[-1])
        touch["at"] = [bars.index(c) for c in cuts]
        out = []
        for i, l in enumerate(lines):
            if i in cuts:
                out += [f"    s_branch L_pg{nstub}", ".p2align 12", f"L_stub{nstub}:", "    s_setpc_b64 s[98:99]", f"L_pg{nstub}:"]
                nstub += 1
            out.append(l)
        atext = "\n".join(out)
        tt = ""
        for p_ in range(1, nstub):
            tt += f"    s_cmp_eq_u32 s21, {(p_ - 1) % 4}\n    s_cbranch_scc0 L_nta{p_}\n    s_call_b64 s[98:99], L_stub{p_}\nL_nta{p_}:\n"
        atext = atext.replace("    @TOUCH@\n", tt)
    touch["n"] = nstub
    body += ".p2align 3\n" + atext
    def bpage(t, nm):
        if not cfg.get("bpages", 0): return t
        i_ = t.index("    s_setprio")
        return t[:i_] + f"    s_branch L_bp{nm}\n.p2align 12\nL_bp{nm}:\n" + t[i_:]
    if off:
        body += ".p2align 6\nL_B:\n    s_cmp_eq_u32 s22, 0\n    s_cbranch_scc0 L_B1\n" + bpage(wave(True, False, 0), 0)
        body += ".p2align 6\nL_B1:\n" + bpage(wave(True, False, 1), 1)
    else:
        body += ".p2align 6\nL_B:\n" + bpage(wave(True, False, 0), 0)
    body += ".p2align 6\nL_spare:\n    s_cmp_lt_u32 s20, 4\n    s_cbranch_scc0 L_Bs\n"
    body += wave(False, True)
    body += ".p2align 6\nL_Bs:\n" + wave(True, True)
    body += "L_end:\n    s_endpgm\nL_codeend:\n"
    return single_file(body, 256, 512, 163840, 256)

R = "r"
DEF = dict(sp=[0, 2], al=[3, 4, 5, 6, 7], bgroups=[(1, [1, 2, 3, 4, 5, 6, 7, 8])],
           sched={("W", 1): -1, ("Y", 0): -1, ("X", 1): 0, ("W", 2): 0, ("W", 3): 1, ("X", 2): 2, ("W", 4): 1, ("W", 5): 2, ("Y", 1): 3, ("X", 3): 4,
                  ("W", 6): 3, ("W", 7): 4, ("X", 4): 5, ("X", 5): 6},
           dsched={0: 6, 1: 7, 2: 8, 3: 9, 4: 10, 5: 11, 6: 12, 7: -2, 8: -1, 9: 0, 10: 1, 11: 1, 12: 2, 13: 2},
           stage={9: 11, 10: 13, 11: 14, 12: 14, 13: 15},
           nobar2=(6,), eon=4, eon2=5, eoff=45, prio=(1, 2), prio_at={9: 0, (0,): 2},
           tag_pts=((9, 99), (10, 99)),
           flag_pts={1: (12, 0), 3: (14, 0), 5: (-1, 0, R), 6: (1, 0, R), 7: (3, 0, R)},
           pgroups=[(0, 3), (3, 7), (7, 10), (10, 12), (12, 14)],
           ppts=[((-4, 0, R), (-3, 99, R)), ((-2, 0, R), (-1, 99, R)), ((0, 99, R), (1, 99, R)), ((2, 99, R), (3, 99, R)), ((4, 0, R), (4, 99, R))],
           ppts_s=[((-3, 99, R), (-3, 99, R)), ((-2, 99, R), (-2, 99, R)), ((1, 99, R), (1, 99, R)), ((3, 99, R), (3, 99, R)), ((4, 99, R), (4, 99, R))],
           hper_at={4: 1, 5: 1},
           hmax={-2: 5, -1: 12, 0: 20, 1: 28, 2: 36, 3: 40, 4: 56})
def emit(variants):
    for k, v in variants.items():
        open(k + ".s", "w").write(build(dict(v)))
        open(k + "_lt.s", "w").write(build(dict(v, lite=True)))
NB = dict(DEF, sp=[0, 1], al=[2, 3, 4, 5, 6, 7], bgroups=[],
          sched={("W", 1): -1, ("X", 1): -1, ("W", 2): 0, ("W", 3): 0, ("W", 4): 1, ("X", 2): 1, ("W", 5): 2, ("W", 6): 3, ("X", 3): 3, ("W", 7): 4, ("X", 4): 5, ("X", 5): 6},
          dblk=[3, 8, 9, 4, 5, 6, 7, 1, 2, 0],
          dsched={0: 6, 1: 7, 2: 8, 3: 9, 4: 10, 5: 11, 6: 12, 7: -2, 8: -1, 9: 0, 10: 1, 11: 1, 12: 2, 13: 2},
          stage={9: 13, 10: 14, 11: 15, 12: 16, 13: 17},
          prio=(1, 0), prio_at={}, tag_pts=((8, 99), (9, 99)),
          flag_pts={1: (14, 0), 3: (17, 0), 5: (0, 0, R), 6: (2, 0, R), 7: (3, 0, R)},
          ppts=[((-4, 0, R), (-3, 99, R)), ((-2, 99, R), (-1, 99, R)), ((1, 0, R), (1, 99, R)), ((3, 0, R), (3, 99, R)), ((4, 0, R), (4, 99, R))],
          eon_at={16: 6, 17: 6, 18: 6, 19: 6}, eon2=6)
NC = dict(NB, flag_pts={1: (13, 0), 3: (16, 0), 5: (-1, 0, R), 6: (1, 0, R), 7: (3, 0, R)},
          ppts=[((-4, 0, R), (-3, 99, R)), ((-2, 99, R), (-1, 99, R)), ((0, 99, R), (1, 99, R)), ((2, 99, R), (3, 99, R)), ((4, 0, R), (4, 99, R))])
ND = dict(NC, dsched={0: 8, 1: 9, 2: 10, 3: 11, 4: 12, 5: 13, 6: 14, 7: -2, 8: -1, 9: 0, 10: 1, 11: 1, 12: 2, 13: 2}, stage={9: 15, 10: 16, 11: 17, 12: 14, 13: 16})
NE = dict(NC, dsched={0: 4, 1: 6, 2: 7, 3: 7, 4: 9, 5: 10, 6: 11, 7: -2, 8: -1, 9: 0, 10: 1, 11: 1, 12: 2, 13: 2}, stage={9: 12, 10: 13, 11: 14, 12: 15, 13: 16},
          spare_order="wx", look=6)
NF = dict(NE, hold=(0, 2, 4), aflag={3: 1, 5: 3, 6: 5, 7: 6}, atag=(7, 8), flag_pts={7: (3, 0, R)})
SG = {("W", 1): -1, ("X", 1): -1, ("W", 2): 0, ("W", 3): 0, ("W", 4): 1, ("X", 2): 1, ("W", 5): 2, ("X", 3): 2, ("W", 6): 3, ("W", 7): 4, ("X", 4): 4, ("X", 5): 5}
NG = dict(NE, hold=(0, 2, 4), nobar=(6, 7), sched=SG, blk={("X", 5): 3},
          dblk=[8, 9, 4, 5, 6, 7, 3, 1, 2, 0],
          dsched={0: 5, 1: 5, 2: 8, 3: 8, 4: 10, 5: 11, 6: 12, 7: -2, 8: -1, 9: 0, 10: 1, 11: 1, 12: 2, 13: 2},
          stage={9: 13, 10: 14, 11: 15, 12: 16, 13: 17})
OF = dict(NC, look=6, off={0: 3, 2: 3, 3: 3, 4: 3, 5: 3, 6: 3, 7: 3}, eon=3, eon_at={}, eoff=46,
          dblk=[8, 9, 4, 5, 6, 7, 1, 2, 0, 3],
          dsched={0: 6, 1: 7, 2: 8, 3: 9, 4: 10, 5: 11, 6: 18, 7: -1, 8: 0, 9: 2, 10: 1, 11: 1, 12: 2, 13: 3},
          stage={8: 12, 9: 13, 10: 14, 11: 15, 12: 16, 13: 17},
          tag_pts=((7, 99), (8, 99)), eoff_at={21: 90}, epi_first=(21,), prio_at={21: 2},
          flag_pts={1: (12, 99), 3: (16, 50), 5: (0, 50, R), 6: (2, 0, R), 7: (3, 0, R)},
          ppts=[((-5, 99, R), (-4, 99, R)), ((-1, 0, R), (-1, 99, R)), ((1, 50, R), (1, 99, R)), ((3, 0, R), (3, 99, R)), ((4, 0, R), (4, 99, R))])
O1 = dict(NC, look=6, off={0: 7}, eon=3, eoff=30, mix=1, tag_pts=((7, 99), (8, 99)),
          flag_pts={1: (13, 99), 3: (16, 0), 5: (-1, 0, R), 6: (1, 0, R), 7: (3, 0, R)}, eon_at={16: 5, 17: 5, 18: 5, 19: 5})
T1_ = dict(NE, hold=(0, 2, 4), tag_pts=((6, 99), (11, 99)), mix=1)
T2_ = dict(NC, look=6, tag_pts=((6, 99), (11, 99)), mix=1)
SE = {("W", 1): -1, ("X", 1): -1, ("W", 2): 0, ("W", 3): 0, ("W", 4): 1, ("X", 2): 1, ("W", 5): 2, ("W", 6): 3, ("X", 3): 3, ("W", 7): 4, ("X", 4): 5, ("X", 5): 5, ("X", 6): 6}
E1 = dict(T2_, defer=0, es=9, xring=4, sched=SE, look=8, look2=7,
          dblk=[8, 9, 4, 5, 6, 7, 0, 1, 2, 3],
          dsched={0: 6, 1: 7, 2: 8, 3: 9, 4: 10, 5: 11, 6: 17, 7: -2, 8: -1, 9: 0, 10: 1, 11: 1, 12: 2, 13: 2},
          stage={9: 12, 10: 13, 11: 14, 12: 15, 13: 16})
ORD = [0, 4, 7, 11, 1, 5, 8, 12, 2, 6, 9, 13, 3, 10]
def inter(base, start, xr4):
    ds = dict(base["dsched"]); stg = {}
    for n, j in enumerate(ORD):
        if j >= (6 if xr4 else 7): stg[j] = start + n
        else: ds[j] = start + n
    return dict(base, dsched=ds, stage=stg)
if __name__ == "__main__":
    B0_ = dict(T2_, defer=0, sh1=16, look=6, dblk=[3, 4, 5, 6, 8, 7, 9, 1, 2, 0])
    I1 = dict(inter(B0_, 6, False), split16=1, eon_at={}, eon2=4)
    O2 = dict(I1, off={0: 9}, eon=3, eoff=30, tag_pts=((6, 99), (8, 99)), flag_pts={1: (13, 99), 3: (16, 0), 5: (0, 0, R), 6: (2, 0, R), 7: (3, 0, R)})
    O3 = dict(O2, eon_at={16: 4, 17: 4, 18: 4, 19: 4}, flag_pts={1: (13, 99), 3: (16, 0), 5: (-1, 0, R), 6: (1, 0, R), 7: (3, 0, R)})
    P_ = dict(I1, pages=3, bpages=1)
    F1 = dict(P_, eon2=99, flag_pts={1: (13, 0), 3: (16, 0), 5: (-1, 0, R), 6: (1, 0, R), 7: (2, 0, R)},
              ppts=[((-4, 0, R), (-3, 99, R)), ((-2, 99, R), (-1, 99, R)), ((0, 99, R), (1, 99, R)), ((2, 99, R), (3, 99, R)), ((3, 99, R), (4, 99, R))])
    F2 = dict(F1, eon2=12)
    F3 = dict(F1, flag_pts={1: (13, 0), 3: (16, 0), 5: (-1, 0, R), 6: (2, 0, R), 7: (2, 0, R)},
              ppts=[((-4, 0, R), (-3, 99, R)), ((-2, 99, R), (-1, 99, R)), ((0, 99, R), (1, 99, R)), ((3, 0, R), (3, 99, R)), ((3, 99, R), (4, 99, R))])
    F4 = dict(F1, dsched={**F1["dsched"], 10: 1, 11: 2, 12: 3, 13: 4})
    def reord(base, order, start, staged):
        ds = dict(base["dsched"]); stg = {}
        for n, j in enumerate(order):
            if j is None: continue
            if j in staged: stg[j] = start + n
            else: ds[j] = start + n
        return dict(base, dsched=ds, stage=stg)
    G1 = reord(F4, [0, 4, 11, 9, 1, 5, 12, None, 2, 6, 13, 3], 6, (9, 11, 12, 13))
    G2 = dict(F4, hmax={-2: 3, -1: 8, 0: 16, 1: 26, 2: 34, 3: 40, 4: 56}, hper_at={1: 1, 4: 1, 5: 1})
    G3 = dict(F4, eon2=12)
    G4 = dict(F4, eon_at={16: 5, 17: 5, 18: 3, 19: 3})
    G5 = dict(G1, hmax=G2["hmax"], hper_at=G2["hper_at"], eon2=12)
    G6 = dict(F4, nobar=(5, 7), sched={**F4["sched"], ("X", 4): 4}, dsched={**F4["dsched"]})
    X1 = dict(F4, xrot=1, spare_order="pw12b3", crot=2)
    X2 = dict(X1, spare_order="pw1b23")
    ST = (7, 8, 9, 10, 11, 12, 13)
    def fix(c):
        return dict(c, dsched={**c["dsched"], **{j: F4["dsched"][j] for j in ST}})
    Y1 = fix(reord(X1, [0, None, 4, 7, 11, 1, 5, 8, 12, 2, 6, 9, 13, 3, 10], 4, ST))
    Y2 = fix(reord(X1, ORD, 5, ST))
    Y3 = dict(X1, nobar=(5, 7), sched={**F4["sched"], ("X", 4): 4})
    Y4 = dict(Y2, nobar=(3, 5, 7), sched={("W", 1): -1, ("X", 1): -1, ("W", 2): 0, ("W", 3): 0, ("W", 4): 1, ("X", 2): 1, ("W", 5): 2, ("X", 3): 2, ("W", 6): 4, ("W", 7): 4, ("X", 4): 4, ("X", 5): 6})
    Y5 = dict(X1, bk=4)
    Z = dict(X1, spare_order="pwm", pages=0, bpages=0)
    S4 = {("W", 1): -1, ("X", 1): -1}
    for i_ in range(2, 8): S4[("W", i_)] = i_ - 2; S4[("X", i_)] = i_ - 2
    N4 = dict(Z, sp=[0, 1, 2, 3], al=[4, 5, 6, 7], sched=S4, eon=6, tag_pts=((5, 99), (9, 99)),
              flag_pts={1: (12, 0), 3: (13, 99), 5: (-1, 0, R), 6: (1, 0, R), 7: (2, 0, R)},
              ppts=[((-3, 0, R), (-3, 99, R)), ((-2, 99, R), (-1, 99, R)), ((0, 99, R), (1, 99, R)), ((2, 99, R), (3, 99, R)), ((3, 99, R), (4, 99, R))])
    def pack(base, slots):
        ds = dict(base["dsched"]); stg = {}
        for st_, js in slots.items():
            for j in js:
                if j >= 7: stg[j] = st_
                else: ds[j] = st_
        return dict(base, dsched=ds, stage=stg)
    N4a = pack(N4, {6: [0], 7: [4], 8: [7, 11], 9: [1], 10: [5, 8], 11: [12, 2], 12: [6, 9], 13: [13, 3], 14: [10]})
    N4b = pack(N4, {6: [0], 7: [4], 8: [11], 9: [1], 10: [5], 11: [12], 12: [2], 13: [6], 14: [3]})
    D1 = dict(Z, defer=1, late_at=({0: 999}, {3: 30, 5: 999}))
    D2 = dict(Z, defer=1, late_at=({0: 80, 1: 40, 2: 15, 4: 999}, {3: 30, 5: 999}))
    D3 = dict(Z, defer=1, late_at=({1: 40, 2: 20, 4: 20, 6: 20, 7: 20, 8: 999}, {3: 30, 5: 999}))
    D4 = dict(D2, cmode=1, crot=0)
    D5 = dict(D2, spare_order="pw")
    D6 = dict(Z, defer=1, late_at=({0: 90, 1: 999}, {1: 999}))
    D7 = dict(Z, defer=1, late_at=({0: 999}, {1: 999}))
    SQ = {("W", 1): -1, ("W", 2): -1, ("X", 1): 0, ("W", 3): 0, ("W", 4): 1, ("X", 2): 1, ("W", 5): 2, ("W", 6): 3, ("X", 3): 3, ("W", 7): 4, ("X", 4): 5, ("X", 5): 6}
    D8 = dict(D6, sched=SQ)
    D9 = dict(D6, pages=3)
    def keep(c): return dict(c, dsched={**c["dsched"], **{j: Z["dsched"][j] for j in range(7, 14)}})
    K1 = keep(reord(Z, [0, 4, 11, 10, 1, 5, 12, 9, 2, 6, 13, 3], 6, (9, 10, 11, 12, 13)))
    K2 = keep(reord(Z, [0, 4, 11, None, 1, 5, 12, None, 2, 6, 13, 3], 6, (11, 12, 13)))
    K3 = dict(K1, dsched={**K1["dsched"], 9: 0, 10: 1, 11: 1, 12: 2, 13: 2}, nobar2=(6,))
    K4 = dict(K1, eon2=16)
    K5 = dict(K1, hmax={-2: 6, -1: 12, 0: 18, 1: 28, 2: 36, 3: 40, 4: 56}, hper_at={1: 1, 4: 1, 5: 1})
    K6 = dict(K1, prio=(2, 0))
    ST7 = (7, 8, 9, 10, 11, 12, 13)
    L1 = keep(reord(Z, [0, 7, 4, 1, 8, 5, 2, 9, 6, 3, 10, 11, 12, 13], 6, ST7))
    L2 = keep(reord(Z, [0, 7, 4, 1, 8, 5, 2, 9, 6, 3, 10, 11, 12, 13], 5, ST7))
    L3 = keep(reord(Z, [0, None, 4, 1, None, 5, 2, 9, 6, 3, 10, 11], 6, (9, 10, 11)))
    L4 = keep(reord(Z, [0, 4, 1, 5, 2, 9, 6, 3, 10, 11, 12, 13], 6, (9, 10, 11, 12, 13)))
    L5 = dict(L1, pages=3)
    W1 = dict(L1, spare_order="pwmx")
    W2 = dict(W1, pages=4, cut0=4, tdist=4, bpages=1)
    W3 = dict(W2, tk=8, tb=3)
    W4 = dict(W3, o64=1, outsc="sc1")
    W5 = dict(W4, elast=3)
    W6 = dict(W5, es=21, dsched={**W5["dsched"], 10: 1, 11: 2, 12: 2, 13: 3})
    W7 = dict(W5, es=20, dsched={**W5["dsched"], 10: 1, 11: 2, 12: 2, 13: 3})
    W8 = dict(W5, estart=3)
    W9 = dict(W5, flag_pts={1: (13, 0), 3: (16, 0), 5: (0, 0, R), 6: (2, 0, R), 7: (2, 0, R)},
              ppts=[((-4, 0, R), (-3, 99, R)), ((-2, 99, R), (-1, 99, R)), ((1, 0, R), (1, 99, R)), ((3, 0, R), (3, 99, R)), ((3, 99, R), (4, 99, R))])
    def slots(base, sl, staged):
        ds = dict(base["dsched"]); stg = {}
        for st_, js in sl.items():
            for j in js:
                if j in staged: stg[j] = st_
                else: ds[j] = st_
        return dict(base, dsched=ds, stage=stg)
    BF = dict(W5, al=[2, 3, 4, 6, 7], bgroups=[(5, [5, 6, 7, 8, 9, 10, 11, 12])], dblk=[3, 4, 5, 9, 6, 7, 8, 2, 0, 1],
              sched={**W5["sched"], ("Y", 0): 2, ("Y", 1): 7}, eoff=45, prio=(1, 0), tag_pts=((12, 99), (13, 50)),
              flag_pts={1: (13, 50), 3: (15, 99), 5: (-1, 99, R), 6: (1, 0, R), 7: (2, 0, R)},
              ppts=[((-4, 99, R), (-3, 99, R)), ((-1, 0, R), (-1, 99, R)), ((0, 99, R), (1, 99, R)), ((2, 99, R), (3, 99, R)), ((3, 99, R), (4, 99, R))])
    BF1 = slots(BF, {6: [0], 8: [7], 9: [4], 10: [1], 11: [8], 12: [5], 13: [2], 14: [9, 6], 15: [3, 10], 16: [11, 12], 17: [13]}, (7, 8, 9, 10, 11, 12, 13))
    FIN = dict(W5, codepf=5)
    BG = dict(FIN, al=[2, 3, 4, 5, 7], bgroups=[(6, [8, 9, 10, 11, 12, 13, 14, 15])], dblk=[3, 4, 5, 9, 6, 7, 8, 2, 0, 1],
              sched={**FIN["sched"], ("Y", 0): 6, ("Y", 1): 9}, eoff=45, prio=(1, 0), tag_pts=((7, 99), (8, 0)), eon_at={16: 6, 17: 6},
              flag_pts={1: (13, 0), 3: (16, 0), 5: (1, 0, R), 6: (1, 99, R), 7: (2, 0, R)},
              ppts=[((-3, 99, R), (-2, 99, R)), ((-1, 50, R), (0, 99, R)), ((2, 0, R), (2, 99, R)), ((3, 0, R), (3, 99, R)), ((3, 99, R), (4, 99, R))],
              hmax={-1: 10, 0: 12, 1: 28, 2: 28, 3: 40, 4: 56}, hper_at={-1: 1, 1: 1, 3: 1, 4: 1, 5: 1})
    BG1 = slots(BG, {7: [0], 8: [4], 10: [1], 11: [5], 12: [2], 13: [6], 14: [10], 15: [11], 16: [3]}, (10, 11))
    BG1["dsched"].update({7: -2, 8: -1, 9: 0, 10: 1, 11: 2, 12: 2, 13: 3})
    BH = dict(FIN, al=[2, 3, 4, 6, 7], bgroups=[(5, [7, 8, 9, 10, 11, 12, 13, 14])], dblk=[3, 4, 5, 9, 6, 7, 8, 2, 0, 1],
              sched={**FIN["sched"], ("Y", 0): 5, ("Y", 1): 9}, eoff=60, prio=(1, 0), tag_pts=((6, 99), (7, 0)),
              flag_pts={1: (13, 0), 3: (16, 0), 5: (0, 0, R), 6: (1, 0, R), 7: (2, 0, R)},
              ppts=[((-4, 99, R), (-3, 99, R)), ((-1, 0, R), (-1, 99, R)), ((1, 0, R), (1, 99, R)), ((2, 99, R), (3, 99, R)), ((3, 99, R), (4, 99, R))])
    BH1 = slots(BH, {7: [0], 8: [4], 10: [1], 11: [5], 12: [2], 13: [6], 14: [10], 15: [], 16: [3]}, (10,))
    BH1["dsched"].update({7: -1, 8: -1, 9: 0, 10: 1, 11: 2, 12: 2, 13: 3})
    BI = dict(BG, tag_pts=((9, 0), (9, 99)),
              ppts=[((-3, 0, R), (-3, 99, R)), ((-1, 0, R), (-1, 99, R)), ((1, 99, R), (2, 99, R)), ((3, 0, R), (3, 99, R)), ((3, 99, R), (4, 99, R))],
              flag_pts={1: (13, 0), 3: (15, 99), 5: (1, 0, R), 6: (1, 99, R), 7: (2, 0, R)},
              hmax={-2: 5, -1: 12, 0: 20, 1: 28, 2: 28, 3: 40, 4: 56}, hper_at={3: 1, 4: 1, 5: 1}, eoff=30)
    BI1 = slots(BI, {5: [0], 7: [4], 8: [1], 10: [5], 11: [2], 12: [6], 13: [10], 14: [11], 16: [3]}, (10, 11))
    BI1["dsched"].update({7: -2, 8: -1, 9: 0, 10: 1, 11: 1, 12: 2, 13: 2})
    BI2 = slots(BI, {5: [0], 7: [4], 8: [1], 10: [5], 11: [2], 12: [6], 13: [7], 14: [8], 16: [3], 17: [12, 13]}, (7, 8, 12, 13))
    BI2["dsched"].update({7: -2, 8: -1, 9: 0, 10: 1, 11: 2, 12: 2, 13: 3})
    SA = {("W", 1): -1, ("X", 1): 0, ("W", 2): 0, ("W", 3): 1, ("W", 4): 1, ("X", 2): 2, ("W", 5): 2, ("W", 6): 3, ("X", 3): 4, ("W", 7): 4, ("X", 4): 5, ("X", 5): 6}
    SB = {("W", 1): -1, ("W", 2): -1, ("X", 1): -1, ("W", 3): 0, ("X", 2): 0, ("W", 4): 1, ("W", 5): 2, ("X", 3): 2, ("W", 6): 3, ("W", 7): 4, ("X", 4): 4, ("X", 5): 6}
    emit({"v50a": FIN, "v53a": dict(FIN, wfast=1), "v53b": dict(FIN, wfast=1, sched=SA), "v53c": dict(FIN, sched=SA), "v53d": dict(FIN, wfast=1, sched=SB),
          "v53e": dict(FIN, spare_order="pwx2b3"), "v53f": dict(FIN, cmode=1, crot=0, wfast=1)})
```

```python
import sys, struct, math, re
from common import *
from gen3 import Stream, f2u, C0, C1, isize

BLK = 16384
FO = 8 << 20
FSZ = 897 * 128
HSTR = 112
WR = 0
ACC = [128, 144, 160, 176, 192]
POOL = 208; NPOOL = 6
TMP = 232
XA = 240
WA = 244
L16 = 245
CC0 = 246
DA = 176
VOUT, VEX = 249, 250
LT = 252
VX = 192
PR = 196
VW = 200
VD = 176
VF, VF2, TAG, FV = 180, 181, 182, 183
HOLDR = VE_A = VE_B = -1000
T1, T2, T3, LANE, T4, T5 = TMP, TMP + 1, TMP + 2, TMP + 3, TMP + 4, TMP + 5
SX, SW, SD, SH, SF = 40, 44, 48, 52, 56
TB = 60
HS = 76

def build(cfg):
    SH1 = cfg.get("sh1", 32)
    MUL = 2 if SH1 == 16 else 1
    XROT = cfg.get("xrot", 0)
    SH2 = cfg.get("sh2", 32)
    MUL2 = 2 if SH2 == 16 else 1
    lite = cfg.get("lite", False)
    bgroups = cfg["bgroups"]
    SP = cfg["sp"]
    AL = cfg["al"]
    assert sorted(SP + AL + [g for g, _ in bgroups]) == list(range(8))
    P2 = 8 + 2 * len(AL); LAST = P2 + 6; NST = LAST + 1
    NS = len(SP); NA = NS + 1; XS = 2 * NS
    NX = XS + 2 * len(AL)
    groups = {0: SP + AL, 1: [g for g, _ in bgroups]}
    accof = {g: i % NA for S_ in (0, 1) for i, g in enumerate(groups[S_])}
    A2 = [ACC[(len(groups[0])) % NA], ACC[(len(groups[0]) + 1) % NA]]
    RED = ACC[(len(groups[0]) + 2) % NA]
    ES = cfg.get("es", 99)
    XR = cfg.get("xring", 3)
    vstep = lambda t: t - 1 if t >= ES else t
    blk = {("X", j): j % XR for j in range(NX)}
    blk.update({("W", i): 4 + i % 4 for i in range(8)})
    blk.update({("Y", j): 8 + j % 2 for j in range(2 * len(bgroups))})
    blk.update(cfg.get("blk", {}))
    dorder = cfg.get("dblk", [3, 4, 5, 6, 7, 8, 9, (NX - 3) % 3, (NX - 2) % 3, (NX - 1) % 3])
    blk.update({("D", j): dorder[j % 10] for j in range(14)})
    off = cfg.get("off", {})
    gend = {g: 8 for g in SP}
    gend.update({g: 10 + 2*n for n, g in enumerate(AL)})
    eowner = lambda g: 1 if (g in off or g in groups[1]) else 0
    baccof = {g: i % 3 for i, g in enumerate(sorted(off, key=lambda g: (gend[g], g)))}
    plan = {s: [] for s in range(-1, NST)}
    sched = dict(cfg["sched"])
    for j in range(XS, NX): sched.setdefault(("X", j), j - XS + 9 - XR)
    for j, s in cfg["dsched"].items(): sched[("D", j)] = s + (P2 if j >= 7 else 0)
    for k in "WXYD":
        for it in sorted(x for x in sched if x[0] == k): plan[sched[it]].append(it)
    def first_use(it):
        k, i = it
        if k == "W": return i
        if k == "X": return (i * 8 // XS) if i < XS else i - XS + 8
        if k == "Y": return min(bgroups[i // 2][1][4*(i % 2):4*(i % 2) + 4])
        return P2 + min(i, 10) // 2
    def last_use(it):
        k, i = it
        if k == "Y": return max(bgroups[i // 2][1][4*(i % 2):4*(i % 2) + 4])
        return first_use(it) + (1 if k == "X" and i < XS and NS == 2 else 0)
    nobar = set(P2 + x for x in cfg.get("nobar2", ())) | set(cfg.get("nobar", ()))
    def prev_bar(s):
        while s in nobar: s -= 1
        return s
    def next_bar(s):
        s += 1
        while s in nobar: s += 1
        return s
    occ = {0: ("X", 0), 4: ("W", 0)}
    lu = lambda it: (gend[it[1]] + 1 if it[0] == "E" else last_use(it))
    for s in range(-1, NST):
        for it in plan[s] + [("E", g) for g in off if gend[g] == s]:
            b = off[it[1]] if it[0] == "E" else blk[it]
            if b in occ: assert lu(occ[b]) < prev_bar(s), (it, s, occ[b])
            if it[0] == "E": assert s + 1 not in nobar
            else: assert next_bar(s) <= vstep(first_use(it)), it
            occ[b] = it
    assert set(sched) | {("X", 0), ("W", 0)} == set(blk), set(blk) - set(sched)
    XJ = max(j for j in range(4, 10) if first_use(("D", j)) < prev_bar(LAST))
    rel = lambda p: (p[0] + P2 if len(p) > 2 else p[0], p[1])
    flag_pts = {g: rel(p) for g, p in cfg["flag_pts"].items()}
    stage = cfg.get("stage", {})
    bend = max([max(bs) + 1 for _, bs in bgroups] + [-1])
    early = sorted(j for j in stage if stage[j] <= bend)
    assert len(early) <= 2
    sreg = {j: 144 + 16 * n for n, j in enumerate(early)}
    sreg.update({j: 16 * n for n, j in enumerate(sorted(j for j in stage if j not in early))})
    hmax = {P2 + s: v for s, v in cfg["hmax"].items()}
    pg = cfg["pgroups"]

    touch = {"n": 0}
    def wave(isB, spare, var=0):
        S = Stream(cfg.get("align", 0))
        sfx = ("b" if isB else "a") + ("s" if spare else "r") + str(var)
        SET = 1 if isB else 0
        VE = VE_B if isB else VE_A
        issued = []
        cut = [None]
        if not spare:
            k = "W" if isB else "X"
            for q in range(4): S.add("", vm=(k, 0, q))
            issued.append((k, 0))
        else:
            S(f"v_and_b32 v{LANE}, 63, v0")
            S("s_waitcnt lgkmcnt(0)")
        S("s_lshl_b32 s33, s21, 12")
        if isB and not spare and cfg.get("wfast", 0):
            for it in plan[-1]:
                if it[0] != "W": continue
                S(f"s_add_u32 m0, s33, {blk[it]*BLK}\ns_bfe_u32 s32, s36, {0x30000 + 4*it[1]:#x}\ns_mul_i32 s32, s32, {64*3584}\ns_add_u32 s32, s32, s37")
                for q in range(4): S.add(f"buffer_load_dwordx4 v{VX+q}, s[{SX}:{SX+3}], s32 offen offset:{1024*q} lds", vm=(it[0], it[1], q))
                issued.append(it)
        S(f"v_lshlrev_b32 v{L16}, 4, v{LANE}")
        S("s_lshr_b32 s23, s21, 1\ns_and_b32 s22, s21, 1")
        if cfg.get("qx", 1):
            S("s_add_u32 s34, s34, s14\ns_sub_u32 s32, s34, 7\ns_min_u32 s34, s34, s32")
        if cfg.get("codepf", True) == 2 and spare:
            S(f"s_getpc_b64 s[{SH}:{SH+1}]")
            S(f"L_pc{sfx}:")
            S(f"s_lshl3_add_u32 s32, s35, s20\ns_min_u32 s32, s32, ((L_codeend-{KNAME})>>10)-1\ns_lshl_b32 s32, s32, 10")
            S(f"s_sub_u32 s{SH}, s{SH}, L_pc{sfx}-{KNAME}")
            S(f"s_subb_u32 s{SH+1}, s{SH+1}, 0")
            S(f"s_add_u32 s{SH}, s{SH}, s32\ns_addc_u32 s{SH+1}, s{SH+1}, 0")
            S(f"v_mov_b32 v{T2}, s{SH+1}")
            S(f"v_add_co_u32 v{T1}, vcc, s{SH}, v{L16}")
            S("s_nop 1")
            S(f"v_addc_co_u32 v{T2}, vcc, 0, v{T2}, vcc")
            S.add(f"global_load_dwordx4 v[204:207], v[{T1}:{T2}], off", vm="pf")
        if cfg.get("codepf", True) == 3 and not isB and not spare:
            S(f"s_lshl2_add_u32 s32, s15, s21\ns_cmp_lt_u32 s32, (L_codeend-{KNAME})>>10\ns_cbranch_scc0 L_nopf")
            S(f"~s_getpc_b64 s[{SH}:{SH+1}]")
            S(f"L_pc{sfx}:")
            S(f"~s_lshl_b32 s32, s32, 10\n~s_sub_u32 s{SH}, s{SH}, L_pc{sfx}-{KNAME}\n~s_subb_u32 s{SH+1}, s{SH+1}, 0")
            S(f"~s_add_u32 s{SH}, s{SH}, s32\n~s_addc_u32 s{SH+1}, s{SH+1}, 0\n~v_mov_b32 v{T2}, s{SH+1}")
            S(f"~v_add_co_u32 v{T1}, vcc, s{SH}, v{L16}\n~s_nop 1\n~v_addc_co_u32 v{T2}, vcc, 0, v{T2}, vcc")
            S(f"~global_load_dwordx4 v[{PR}:{PR+3}], v[{T1}:{T2}], off")
            S("L_nopf:")
        if cfg.get("codepf", True) is True and not isB:
            S(f"s_getpc_b64 s[{SH}:{SH+1}]")
            S(f"L_pc{sfx}:")
            S(f"s_lshl2_add_u32 s32, s15, s21\ns_min_u32 s32, s32, ((L_codeend-{KNAME})>>8)-1\ns_lshl_b32 s32, s32, 8")
            S(f"s_sub_u32 s{SH}, s{SH}, L_pc{sfx}-{KNAME}")
            S(f"s_subb_u32 s{SH+1}, s{SH+1}, 0")
            S(f"s_add_u32 s{SH}, s{SH}, s32\ns_addc_u32 s{SH+1}, s{SH+1}, 0")
            S(f"v_mov_b32 v{T2}, s{SH+1}")
            S(f"v_lshlrev_b32 v{T1}, 2, v{LANE}")
            S(f"v_add_co_u32 v{T1}, vcc, s{SH}, v{T1}")
            S("s_nop 1")
            S(f"v_addc_co_u32 v{T2}, vcc, 0, v{T2}, vcc")
            S.add(f"global_load_dword v{PR}, v[{T1}:{T2}], off", vm="pf")
        gexp = lambda p, r: (f"s_lshl1_add_u32 s{r}, s84, {p}\ns_and_b32 s{r}, s{r}, 7" if p < 6 else f"s_and_b32 s{r}, s{p-6}, 7")
        def item_ops(it):
            k, i = it
            su = ""
            if k == "X" and i < XS and NS == 4:
                su = f"s_bfe_u32 s32, s36, {0x30000 + 4*i:#x}\ns_lshl_b32 s32, s32, 7\ns_add_u32 s32, s32, s3"
                v, srd, so = VX, SX, 32
            elif k == "X" and i < XS:
                su = f"s_bfe_u32 s32, s87, {0x30000 + 8*i:#x}\ns_lshl_b32 s32, s32, 7\ns_add_u32 s32, s32, s3"
                v, srd, so = VX, SX, 32
            elif k in "XY":
                p = AL[(i - XS) // 2] if k == "X" else bgroups[i // 2][0]
                su = gexp(p, 32) + f"\ns_lshl_b32 s32, s32, 15\ns_add_u32 s32, s32, s{93 + i % 2}"
                v, srd, so = VX, SX, 32
            elif k == "W":
                su = f"s_bfe_u32 s32, s36, {0x30000 + 4*i:#x}\ns_mul_i32 s32, s32, {64*3584}\ns_add_u32 s32, s32, s38"
                v, srd, so = VW, SW, 32
            else:
                su = "s_nop 0"
                v, srd, so = VD, SD, TB + i
            su = f"s_add_u32 m0, s33, {blk[it]*BLK}\n" + su
            return su, [(f"buffer_load_dwordx4 v{v+q}, s[{srd}:{srd+3}], s{so} offen offset:{1024*q} lds", (k, i, q)) for q in range(4)]
        def item(it):
            su, dm = item_ops(it)
            S(su)
            for t, tag in dm: S.add(t, vm=tag)
            issued.append(it)
        if isB:
            S(f"s_add_u32 s{SF}, s30, {FO}\ns_addc_u32 s{SF+1}, s31, 0\ns_mov_b32 s{SF+2}, {FSZ}\ns_mov_b32 s{SF+3}, 0x20000")
            S(f"v_lshlrev_b32 v{VF}, 20, v{LANE}")
            S("s_mov_b32 s74, s28\ns_mov_b32 s75, s29")
        if spare and isB:
            S("s_cmp_eq_u32 s2, 224\ns_cselect_b32 s32, s21, 0\ns_cmp_eq_u32 s32, 1")
            S("s_cbranch_scc0 L_notag")
            S("s_mov_b32 s88, s28\ns_mov_b32 s89, s29\ns_mov_b32 s90, 256\ns_mov_b32 s91, 0x20000")
            S(f"s_mov_b32 s32, {FSZ-128}")
            S(f"buffer_load_dword v{PR}, v{VF}, s[{SF}:{SF+3}], s32 offen sc1")
            S(f"v_mov_b32 v{PR+1}, 1")
            S("s_waitcnt vmcnt(0)")
            S(f"v_add_u32 v{PR}, 1, v{PR}")
            S(f"buffer_store_dwordx2 v[{PR}:{PR+1}], v{VF}, s[88:91], 0 offen sc1")
            S(f"buffer_store_dword v{PR}, v{VF}, s[{SF}:{SF+3}], s32 offen sc1")
            S("L_notag:")
            S("s_barrier")
        if not spare:
            S(("s_bfe_u32 s32, s15, 0x10002" if XROT else "s_bfe_u32 s32, s17, 0x10002") + "\ns_lshl1_add_u32 s0, s84, s32\ns_add_u32 s0, s0, 6\ns_xor_b32 s1, s0, 1")
            for hf in range(2):
                S(f"s_lshl2_add_u32 s32, s21, {16*hf}\ns_lshr_b32 s32, s36, s32\ns_and_b32 s32, s32, 7\ns_lshl_b32 s32, s32, 7\ns_add_u32 s{93+hf}, s32, s39")
            S("s_lshl_b32 s32, s23, 2\ns_lshr_b32 s87, s36, s32")
            if isB:
                for q in range(4): S(f"v_mov_b32 v{VW+q}, v{VX+q}")
                S(f"s_mov_b32 s{SW}, s{SX}\ns_mov_b32 s{SW+1}, s{SX+1}\ns_mov_b32 s{SW+2}, 1835008\ns_mov_b32 s{SW+3}, 0x20000")
                S("s_mov_b32 s38, s37")
                S(f"s_mov_b32 s{SX}, s4\ns_mov_b32 s{SX+1}, s5\ns_mov_b32 s{SX+2}, 0x200000")
                S(f"v_lshrrev_b32 v{T1}, 3, v{LANE}\nv_lshrrev_b32 v{T2}, 4, v{LANE}")
                S(f"v_xor_b32 v{T3}, v{T2}, v{LANE}\nv_and_b32 v{T3}, 7, v{T3}\nv_lshlrev_b32 v{T1}, 10, v{T1}")
                S(f"v_lshl_add_u32 v{VX}, v{T3}, 4, v{T1}")
                S(f"v_xor_b32 v{VX+1}, 64, v{VX}")
                S(f"v_add_u32 v{VX+1}, {7*1024}, v{VX+1}")
                S(f"v_add_u32 v{VX+2}, {14*1024}, v{VX}")
                S(f"v_add_u32 v{VX+3}, {14*1024}, v{VX+1}")
            if SH1 == 32:
                S(f"v_and_b32 v{T1}, 31, v{LANE}")
                S(f"v_bfe_u32 v{T2}, v{LANE}, 1, 3")
                S(f"v_lshrrev_b32 v{T3}, 5, v{LANE}")
                S(f"v_xor_b32 v{T2}, v{T2}, v{T3}")
                S(f"v_lshlrev_b32 v{T1}, 7, v{T1}")
                if isB: S(f"v_add_u32 v{T1}, {8*BLK:#x}, v{T1}")
                for ks in range(4):
                    S(f"v_xor_b32 v{T3}, {2*ks}, v{T2}")
                    S(f"v_lshl_add_u32 v{XA+ks}, v{T3}, 4, v{T1}")
                S(f"v_lshrrev_b32 v{T1}, 5, v{LANE}")
                S(f"v_lshlrev_b32 v{T1}, 3, v{T1}")
                S(f"v_bfe_u32 v{T2}, v{LANE}, 2, 2")
                S(f"v_add_u32 v{T1}, v{T1}, v{T2}")
                S(f"v_lshlrev_b32 v{T1}, 7, v{T1}")
                S(f"v_bfe_u32 v{T2}, v{LANE}, 4, 1")
                S(f"v_lshl_add_u32 v{T1}, v{T2}, 13, v{T1}")
                S(f"v_bfe_u32 v{T3}, v{LANE}, 3, 1")
                S(f"v_lshl_add_u32 v{T2}, v{T3}, 1, v{T2}")
                S(f"v_xor_b32 v{T2}, s21, v{T2}")
                S(f"v_lshl_add_u32 v{T1}, v{T2}, 5, v{T1}")
                S(f"v_and_b32 v{T2}, 1, v{LANE}")
                S(f"v_lshl_add_u32 v{T1}, v{T2}, 4, v{T1}")
                S(f"v_bfe_u32 v{T2}, v{LANE}, 1, 1")
                S(f"v_lshl_add_u32 v{T1}, v{T2}, 3, v{T1}")
                S(f"v_add_u32 v{WA}, 0x10000, v{T1}")
            else:
                S(f"v_and_b32 v{T1}, 15, v{LANE}")
                S(f"v_bfe_u32 v{T2}, v{LANE}, 1, 3")
                S(f"v_lshrrev_b32 v{T3}, 4, v{LANE}")
                S(f"v_xor_b32 v{T2}, v{T2}, v{T3}")
                S(f"v_lshlrev_b32 v{T1}, 7, v{T1}")
                if isB: S(f"v_add_u32 v{T1}, {8*BLK:#x}, v{T1}")
                S(f"v_lshl_add_u32 v{XA}, v{T2}, 4, v{T1}")
                S(f"v_xor_b32 v{XA+1}, 64, v{XA}")
                S(f"v_lshlrev_b32 v{T1}, 3, v{T3}")
                S(f"v_bfe_u32 v{T2}, v{LANE}, 2, 2")
                S(f"v_add_u32 v{T1}, v{T1}, v{T2}")
                S(f"v_lshlrev_b32 v{T1}, 7, v{T1}")
                S(f"v_bfe_u32 v{T2}, v{LANE}, 4, 1")
                S(f"v_bfe_u32 v{T3}, v{LANE}, 3, 1")
                S(f"v_lshl_add_u32 v{T2}, v{T3}, 1, v{T2}")
                S(f"v_xor_b32 v{T2}, s21, v{T2}")
                S(f"v_lshl_add_u32 v{T1}, v{T2}, 5, v{T1}")
                S(f"v_and_b32 v{T2}, 3, v{LANE}")
                S(f"v_lshl_add_u32 v{T1}, v{T2}, 3, v{T1}")
                S(f"v_add_u32 v{WA}, 0x10000, v{T1}")
            for it in plan[-1]:
                if (it[0] == "W") == isB and it not in issued: item(it)
            if cfg.get("defer", 1): cut[0] = len(S.ins)
            S(f"s_mov_b32 s32, {f2u(C0):#x}\ns_mov_b32 s12, {f2u(C1):#x}")
            S(f"v_mov_b32 v{CC0}, s32")
            if cfg.get("pk", 0): S("v_mov_b32 v242, s32")
            S(f"s_lshl2_add_u32 s13, s17, s21\ns_mul_i32 s32, s16, {8*HSTR}\ns_add_u32 s13, s13, s32")
            if off: S(f"v_add_u32 v{VE}, s33, v{L16}\nv_add_u32 v{VE+1}, 0x10000, v{VE}\nv_add_u32 v{VE+2}, 0x20000, v{VE}")
            for g in range(8):
                if eowner(g) != SET: continue
                r = HS + g
                S(gexp(g, r) + f"\ns_mul_i32 s{r}, s{r}, {HSTR}\ns_add_u32 s{r}, s{r}, s13\ns_lshl_b32 s{r}, s{r}, 10")
            if isB:
                S("s_mul_i32 s92, s16, 14336\ns_lshl_b32 s32, s17, 7\ns_add_u32 s92, s92, s32\ns_lshl2_add_u32 s92, s21, s92")
                S(f"v_lshrrev_b32 v{T1}, 1, v{LANE}\nv_lshl_add_u32 v{VF2}, v{T1}, 20, v{L16}")
        if not isB and not spare:
            for n_, ev in enumerate(sorted(set(cfg.get("aflag", {}).values()))):
                r = 4 + n_
                S(f"s_add_u32 s{r}, s17, {ev//2}\ns_and_b32 s{r}, s{r}, 3\ns_mul_i32 s{r}, s{r}, 3584\ns_add_u32 s{r}, s{r}, s92")
                if ev >= 6: S(f"s_and_b32 s32, s{ev-6}, 1\ns_lshl4_add_u32 s{r}, s32, s{r}")
        if isB or spare:
            S(f"s_mov_b32 s{SD}, s10\ns_mov_b32 s{SD+1}, s11\ns_mov_b32 s{SD+2}, {0 if cfg.get('nod') else 1835008}\ns_mov_b32 s{SD+3}, 0x20000")
        if isB:
            S(f"v_bfe_u32 v{T3}, v{LANE}, 4, 1\nv_lshlrev_b32 v{T3}, 2, v{T3}\nv_xor_b32 v{T3}, v{T3}, v{LANE}\nv_and_b32 v{T3}, 7, v{T3}")
            S(f"v_lshrrev_b32 v{T1}, 3, v{LANE}\nv_lshlrev_b32 v{T1}, 10, v{T1}")
            S(f"v_lshl_add_u32 v{VD}, v{T3}, 4, v{T1}")
            if SH2 == 32:
                for q in range(1, 4): S(f"v_add_u32 v{VD+q}, {q*7*1024}, v{VD}")
            else:
                S(f"v_xor_b32 v{VD+1}, 32, v{VD}\nv_add_u32 v{VD+1}, {7*1024}, v{VD+1}\nv_add_u32 v{VD+2}, {14*1024}, v{VD}\nv_add_u32 v{VD+3}, {14*1024}, v{VD+1}")
        S(f"v_and_b32 v{T1}, 15, v{LANE}")
        S("s_lshl_b32 s32, s22, 1\ns_xor_b32 s32, s32, 2")
        S(f"v_subrev_u32 v{T2}, 10, v{T1}\nv_xor_b32 v{T2}, s32, v{T2}\nv_add_u32 v{T2}, 10, v{T2}")
        S(f"v_cmp_le_u32 vcc, 26, v{LANE}")
        S("s_nop 1")
        S(f"v_cndmask_b32 v{T1}, v{T1}, v{T2}, vcc")
        S(f"v_lshl_add_u32 v{T1}, v{T1}, 1, s23")
        S(f"v_mul_u32_u24 v{T2}, 37, v{T1}\nv_lshrrev_b32 v{T2}, 8, v{T2}")
        S(f"v_mul_u32_u24 v{T3}, 7, v{T2}\nv_sub_u32 v{T3}, v{T1}, v{T3}")
        S(f"v_add_u32 v{T3}, s34, v{T3}")
        S(f"v_subrev_u32 v{T4}, 7, v{T3}\nv_min_u32 v{T4}, v{T3}, v{T4}")
        S(f"v_mul_u32_u24 v{T5}, 86, v{T3}\nv_lshrrev_b32 v{T5}, 8, v{T5}\nv_mul_u32_u24 v{T5}, 3, v{T5}\nv_sub_u32 v{T5}, v{T3}, v{T5}")
        S(f"v_lshl_add_u32 v{T5}, v{T5}, 1, 1")
        S(f"v_cmp_le_u32 vcc, 21, v{T1}")
        S(f"v_and_b32 v{T3}, 3, v{T3}\nv_lshlrev_b32 v{T3}, 1, v{T3}")
        S(f"v_cndmask_b32 v{T4}, v{T4}, v{T5}, vcc")
        S(f"v_cmp_le_u32 vcc, 24, v{T1}")
        S(f"v_sub_u32 v{T2}, s35, v{T2}\nv_and_b32 v{T2}, 3, v{T2}")
        S(f"v_cndmask_b32 v{T4}, v{T4}, v{T3}, vcc")
        S(f"v_mad_u32_u24 v{T1}, v{T2}, 7, v{T4}" if XROT else f"v_lshl_add_u32 v{T1}, v{T4}, 2, v{T2}")
        S("s_lshl_b32 s95, s19, 7")
        if isB:
            S("s_lshl_b32 s32, s22, 15\ns_add_u32 s32, s32, s95")
            S(f"v_lshl_add_u32 v{T2}, v{T1}, 16, s32")
            S("s_mul_i32 s32, s18, 3584\ns_lshl4_add_u32 s32, s22, s32")
            S(f"v_lshl_add_u32 v{FV}, v{T1}, 7, s32")
            for j in range(14): S(f"v_readlane_b32 s{TB+j}, v{T2}, {j}")
        else:
            S(f"s_lshl1_add_u32 s32, s18, s22\ns_mul_i32 s32, s32, {HSTR*1024}")
            if cfg.get("hfake"):
                S(f"s_lshl1_add_u32 s32, s35, s22\ns_mul_i32 s32, s32, {HSTR*1024}\ns_and_b32 s84, s14, 1\ns_lshl_b32 s84, s84, 20\ns_add_u32 s32, s32, s84")
                S("s_mov_b32 s84, s4\ns_mov_b32 s85, s5\ns_mov_b32 s86, 0x200000\ns_mov_b32 s87, 0x20000")
            S(f"v_lshl_add_u32 v{T2}, v{T1}, 12, s32")
            S(f"v_lshrrev_b32 v{T1}, 5, v{LANE}")
            for j in range(14): S(f"v_readlane_b32 s{TB+j}, v{T2}, {16+j}")
            if SH2 == 32:
                S(f"v_lshlrev_b32 v{T1}, 3, v{T1}")
                S(f"v_bfe_u32 v{T2}, v{LANE}, 2, 2")
                S(f"v_add_u32 v{T1}, v{T1}, v{T2}")
                S(f"v_lshlrev_b32 v{T1}, 7, v{T1}")
                S(f"v_bfe_u32 v{T2}, v{LANE}, 3, 1")
                S(f"v_lshl_add_u32 v{T1}, v{T2}, 6, v{T1}")
                S(f"v_bfe_u32 v{T2}, v{LANE}, 4, 1")
                S(f"v_lshl_add_u32 v{T1}, v{T2}, 5, v{T1}")
                S(f"v_and_b32 v{T2}, 1, v{LANE}")
                S(f"v_lshl_add_u32 v{T1}, v{T2}, 4, v{T1}")
                S(f"v_bfe_u32 v{T2}, v{LANE}, 1, 1")
                S(f"v_lshl_add_u32 v{T1}, v{T2}, 3, v{T1}")
                S(f"s_lshl_b32 s32, s23, 13\ns_add_u32 s32, s32, {blk[('D', 0)]*BLK}")
                S(f"v_add_u32 v{DA+1}, s32, v{T1}")
                S(f"s_lshl_b32 s32, s23, 6\nv_xor_b32 v{DA+1}, s32, v{DA+1}")
                S(f"v_xor_b32 v{DA}, 64, v{DA+1}")
                S("s_cmp_eq_u32 s22, 1")
                o1 = [blk[("D", 9)]] + [blk[("D", 10 + i)] for i in range(4)]
                o0 = [blk[("D", 9)]] + [blk[("D", 10 + (i ^ 2))] for i in range(4)]
                for i in range(4): S(f"s_cselect_b32 s{88+i}, {o1[i+1]-o1[i]}, {o0[i+1]-o0[i]}")
                for i in range(4): S(f"s_lshl_b32 s{88+i}, s{88+i}, 14")
            else:
                S(f"v_lshrrev_b32 v{T1}, 4, v{LANE}\nv_lshlrev_b32 v{T1}, 3, v{T1}")
                S(f"v_bfe_u32 v{T2}, v{LANE}, 2, 2")
                S(f"v_add_u32 v{T1}, v{T1}, v{T2}")
                S(f"v_lshlrev_b32 v{T1}, 7, v{T1}")
                S(f"v_bfe_u32 v{T2}, v{LANE}, 3, 1")
                S(f"v_lshl_add_u32 v{T1}, v{T2}, 6, v{T1}")
                S(f"v_bfe_u32 v{T2}, v{LANE}, 4, 1")
                S(f"v_lshl_add_u32 v{T1}, v{T2}, 5, v{T1}")
                S(f"v_and_b32 v{T2}, 3, v{LANE}")
                S(f"v_lshl_add_u32 v{T1}, v{T2}, 3, v{T1}")
                S(f"s_lshl_b32 s32, s23, 13\ns_add_u32 s32, s32, {blk[('D', 0)]*BLK}")
                S(f"v_add_u32 v{DA+2}, s32, v{T1}")
                S(f"s_lshl_b32 s32, s23, 6\nv_xor_b32 v{DA+2}, s32, v{DA+2}")
                S(f"v_xor_b32 v{DA+3}, 32, v{DA+2}\nv_xor_b32 v{DA}, 64, v{DA+2}\nv_xor_b32 v{DA+1}, 64, v{DA+3}")
                S(f"v_lshrrev_b32 v{T1}, 4, v{LANE}\nv_lshlrev_b32 v{T1}, 9, v{T1}\nv_and_b32 v{T2}, 0xf0, v{L16}\nv_add_u32 v{DA+4}, v{T1}, v{T2}")
                S("s_cmp_eq_u32 s22, 1")
                o1 = [blk[("D", 9)]] + [blk[("D", 10 + i)] for i in range(4)]
                o0 = [blk[("D", 9)]] + [blk[("D", 10 + (i ^ 2))] for i in range(4)]
                for i in range(4): S(f"s_cselect_b32 s{88+i}, {o1[i+1]-o1[i]}, {o0[i+1]-o0[i]}")
                for i in range(4): S(f"s_lshl_b32 s{88+i}, s{88+i}, 14")
            S(f"s_mov_b32 s{SW}, s26\ns_mov_b32 s{SW+1}, s27\ns_mov_b32 s{SW+2}, 0x200000\ns_mov_b32 s{SW+3}, 0x20000")
            if cfg.get("o64", 0):
                S(f"v_and_b32 v{T1}, 15, v{LANE}\nv_lshlrev_b32 v{T1}, 10, v{T1}\nv_lshrrev_b32 v{T2}, 5, v{LANE}\nv_lshl_add_u32 v{T1}, v{T2}, 4, v{T1}\nv_bfe_u32 v{T2}, v{LANE}, 4, 1\nv_lshl_add_u32 v{VOUT}, v{T2}, 5, v{T1}")
            else:
                S(f"v_and_b32 v{T1}, 31, v{LANE}\nv_lshlrev_b32 v{T1}, 10, v{T1}\nv_lshrrev_b32 v{T2}, 5, v{LANE}\nv_lshl_add_u32 v{VOUT}, v{T2}, 4, v{T1}")
            S("s_lshl_b32 s32, s18, 16\ns_add_u32 s95, s95, s32\ns_lshl_b32 s32, s22, 15\ns_add_u32 s95, s95, s32\ns_lshl_b32 s32, s23, 6\ns_add_u32 s95, s95, s32")
            S(f"s_add_u32 s32, s33, {blk[('D', XJ)]*BLK}\nv_add_u32 v{VEX}, s32, v{L16}\nv_xor_b32 v{VEX+1}, 0x2000, v{VEX}")
        S(f"s_mov_b32 s{SH}, s30\ns_mov_b32 s{SH+1}, s31\ns_mov_b32 s{SH+2}, {0 if cfg.get('noh') else 64*HSTR*1024}\ns_mov_b32 s{SH+3}, 0x20000")
        lateq = []
        if cut[0] is not None:
            lateq = [re.sub(r"\bs32\b", "s85", i["t"]) for i in S.ins[cut[0]:]]
            del S.ins[cut[0]:]
        def late(n):
            while lateq and n > 0:
                S(lateq.pop(0)); n -= 1
            while lateq and lateq[0].startswith(("s_cselect", "s_addc", "v_cndmask", "s_nop", "v_readlane")):
                S(lateq.pop(0))
        if lite and not isB: S(f"v_mov_b32 v{LT}, 0\nv_mov_b32 v{LT+1}, 0\nv_mov_b32 v{LT+2}, 0")
        myplan = {s: [] for s in range(NST)}
        def c3x():
            S(f"s_mov_b32 s{SX}, s4\ns_mov_b32 s{SX+1}, s5\ns_mov_b32 s{SX+2}, 0x200000\ns_mov_b32 s{SX+3}, 0x20000")
            S(f"v_lshrrev_b32 v{T1}, 3, v{LANE}\nv_lshlrev_b32 v{T1}, 10, v{T1}\nv_and_b32 v{T2}, 0x70, v{L16}\nv_add_u32 v{T1}, v{T1}, v{T2}")
            S("s_lshl2_add_u32 s32, s16, s21\ns_lshl_b32 s32, s32, 16\ns_add_u32 s32, s32, 384")
            for i in range(8):
                S.add(f"buffer_load_dwordx4 v[{64+4*i}:{67+4*i}], v{T1}, s[{SX}:{SX+3}], s32 offen", vm=("c3x", i))
                S("s_add_u32 s32, s32, 8192")
        def c3w():
            S("s_cmp_eq_u32 s22, 0")
            S(f"s_cselect_b32 s{SX}, s6, s8\ns_cselect_b32 s{SX+1}, s7, s9\ns_mov_b32 s{SX+2}, 1835008\ns_mov_b32 s{SX+3}, 0x20000")
            S(f"v_min_u32 v{T1}, 880, v{L16}")
            S("s_lshl1_add_u32 s32, s35, s23\ns_lshl_b32 s32, s32, 3\ns_add_u32 s32, s32, 192\ns_mul_i32 s32, s32, 3584\ns_lshr_b32 s96, s14, 1\ns_mul_i32 s96, s96, 896\ns_add_u32 s32, s32, s96")
            for i in range(8):
                S.add(f"buffer_load_dwordx4 v[{128+4*i}:{131+4*i}], v{T1}, s[{SX}:{SX+3}], s32 offen", vm=("c3w", i))
                S("s_add_u32 s32, s32, 3584")
        def c3p():
            S(f"s_mov_b32 s{SX}, s4\ns_mov_b32 s{SX+1}, s5\ns_mov_b32 s{SX+2}, 0x200000\ns_mov_b32 s{SX+3}, 0x20000")
            S(f"v_lshrrev_b32 v{T1}, 3, v{LANE}\nv_lshlrev_b32 v{T1}, 10, v{T1}\nv_and_b32 v{T2}, 0x70, v{L16}\nv_add_u32 v{T1}, v{T1}, v{T2}")
            for pp in range(NS // 2):
                S(f"s_add_u32 s32, s84, {pp}\ns_and_b32 s32, s32, 3\ns_lshl2_add_u32 s32, s16, s32\ns_lshl2_add_u32 s32, s32, s21\ns_lshl_b32 s32, s32, 14\ns_add_u32 s32, s32, 384")
                for i in range(2):
                    S.add(f"buffer_load_dwordx4 v[{160+8*pp+4*i}:{163+8*pp+4*i}], v{T1}, s[{SX}:{SX+3}], s32 offen", vm=("c3p", pp, i))
                    S("s_add_u32 s32, s32, 8192")
        def xpair(n_):
            S(f"s_mov_b32 s{SX}, s4\ns_mov_b32 s{SX+1}, s5\ns_mov_b32 s{SX+2}, 0x200000\ns_mov_b32 s{SX+3}, 0x20000")
            S(f"s_add_u32 s32, s84, {n_}\ns_and_b32 s32, s32, 3\ns_lshl2_add_u32 s32, s16, s32\ns_lshl_b32 s32, s32, 16\ns_lshl_b32 s96, s21, 12\ns_add_u32 s32, s32, s96")
            for i in range(16):
                if i and i % 4 == 0: S("s_add_u32 s32, s32, 16384")
                S.add(f"buffer_load_dwordx4 v[{64+4*i}:{67+4*i}], v{L16}, s[{SX}:{SX+3}], s32 offen offset:{(i%4)*1024}", vm=("xp", n_, i), need_vm=([("xp", n_-1, i)] if str(n_-1) in cfg["spare_order"] else []))
        def warm():
            S("s_sub_u32 s32, s2, 224\ns_lshl2_add_u32 s32, s32, s21\ns_mul_i32 s32, s32, 14336")
            for i in range(14):
                if i and i % 4 == 0: S("s_add_u32 s32, s32, 4096")
                S.add(f"buffer_load_dwordx4 v[{4*i}:{4*i+3}], v{L16}, s[{SD}:{SD+3}], s32 offen offset:{(i%4)*1024}", vm=("wm", i))
        if spare:
            if isB:
                S("s_barrier")
                for j in range(10): item(("D", j))
                for j in range(10, 14): myplan[sched[("D", j)]].append(("D", j))
            else:
                S("s_barrier")
                for f in cfg.get("spare_order", "wxm"): {"w": c3w, "x": c3x, "m": warm, "p": c3p, "1": lambda: xpair(1), "2": lambda: xpair(2), "3": lambda: xpair(3), "b": lambda: S("s_barrier"), "z": lambda: S.add("", need_vm=["ALL"])}[f]()
                S.add("" if "b" in cfg.get("spare_order", "wxm") else "s_barrier", need_vm=["ALL"])
        elif isB:
            myplan = {s: plan[s] for s in range(NST)}

        M = []
        pooln = [0]
        def pool():
            r = POOL + 4 * (pooln[0] % NPOOL); pooln[0] += 1; return r
        def wreads(i):
            wo = (blk[("W", i)] - 4) * BLK
            out = {}
            for sl in range(4):
                slot = 4*i + sl; wreg = WR + 4*slot
                off = wo + sl*2048 if SH1 == 32 else wo + (sl % 2)*8192 + (sl // 2)*4096
                out[slot] = [(("w", slot, j), f"ds_read_b64_tr_b16 v[{wreg+2*j}:{wreg+2*j+1}], v{WA} offset:{off + j*512}") for j in range(2)]
            return out
        def p1(step, i, g, xo, readw):
            a = ACC[accof[g]]
            wr = wreads(i) if readw else {}
            lastg = (g == groups[SET][-1])
            res = []
            if SH1 == 32:
                for ks in range(4):
                    slot = 4*i + ks
                    res.append([dict(step=step, d=a, n=16, A=WR + 4*slot, rd=wr.get(slot, []), xrd=(("x", g, slot), f"v{XA+ks} offset:{xo}"),
                                     first=(slot == 0), last=(slot == 31), g=g, wdead=(slot if lastg else None), slot=slot)])
            else:
                for k2 in range(2):
                    sub_l = []
                    for sub in range(2):
                        for mat in range(2):
                            slot = 4*i + 2*k2 + mat
                            sub_l.append(dict(step=step, d=a + 8*mat + 4*sub, n=4, A=WR + 4*slot, rd=(wr.get(slot, []) if sub == 0 else []),
                                              xrd=((("x", g, i, k2, sub), f"v{XA+k2} offset:{xo + sub*2048}") if mat == 0 else None),
                                              first=(i == 0 and k2 == 0), last=(i == 7 and k2 == 1 and sub == 1 and mat == 1), g=g,
                                              wdead=(slot if lastg and sub == 1 else None), slot=slot))
                    res.append(sub_l)
            return res
        def push(lst):
            for m in lst:
                if m["xrd"] is not None:
                    xr = pool(); push.cur = xr
                    m["rd"] = m["rd"] + [(m["xrd"][0], f"ds_read_b128 v[{xr}:{xr+3}], {m['xrd'][1]}")]
                    m["pool"] = 1
                else: m["pool"] = 0
                m["B"] = push.cur
                M.append(m)
        if not spare and not isB:
            for i in range(8):
                gs = [p1(i, i, g, (blk[("X", i // 2)]*BLK + (2*(i % 2) + u)*4096 if NS == 2 else blk[("X", i)]*BLK + u*4096), u == 0) for u, g in enumerate(SP)]
                for parts in zip(*gs):
                    for u in parts: push(u)
            for n_, g in enumerate(AL):
                for i in range(8):
                    for u in p1(8 + 2*n_ + i // 4, i, g, blk[("X", XS + 2*n_ + i // 4)]*BLK + (i % 4)*4096, False): push(u)
        if not spare and isB:
            for n_, (g, bs) in enumerate(bgroups):
                for i in range(8):
                    assert bs[i] >= i
                    for u in p1(bs[i], i, g, (blk[("Y", 2*n_ + i // 4)] - 8)*BLK + (i % 4)*4096, False): push(u)
        if not isB and SH2 == 16:
            for j in range(14):
                order = [(k2, i) for k2 in range(2) for i in range(4)] if j < 13 else [(k2, 2*t + jj) for t in range(2) for k2 in range(2) for jj in range(2)]
                seen = set()
                for k2, i in order:
                    r = pool()
                    rd = []
                    if j > 0 and i not in seen:
                        dl = f"s{88 + j - 10}" if j >= 10 else f"{((blk[('D', j)] - blk[('D', j-1)]) * BLK) & 0xffffffff:#x}"
                        rd.append((None, f"v_add_u32 v{DA+i}, {dl}, v{DA+i}"))
                    seen.add(i)
                    rd += [(("d", j, k2, i, jj), f"ds_read_b64_tr_b16 v[{r+2*jj}:{r+2*jj+1}], v{DA+i} offset:{k2*4096 + jj*512}") for jj in range(2)]
                    for sub in range(2):
                        n = 4*j + 2*k2 + sub
                        M.append(dict(step=P2 + j // 2, d=A2[i // 2] + 8*(i % 2) + 4*sub, n=4, A=r, B=WR + 4*(n % 32), first=(j == 0 and k2 == 0),
                                      rd=(rd if sub == 0 else []), h=n, hc=(n + 1 if i == 3 else 4*j + 2*k2), last=False, pool=(1 if sub == 0 else 0)))
        TK = cfg.get("tk", 4)
        if not isB and SH2 == 32:
            order = [(n, t) for n in range(56 - TK) for t in range(2)] + [(n, t) for t in range(2) for n in range(56 - TK, 56)]
            for n, t in order:
                j, ks = n // 4, n % 4
                r = pool()
                rd = []
                if j > 0 and ks == 0:
                    dl = f"s{88 + j - 10}" if j >= 10 else f"{((blk[('D', j)] - blk[('D', j-1)]) * BLK) & 0xffffffff:#x}"
                    rd.append((None, f"v_add_u32 v{DA+t}, {dl}, v{DA+t}"))
                rd += [(("d", j, ks, t, jj), f"ds_read_b64_tr_b16 v[{r+2*jj}:{r+2*jj+1}], v{DA+t} offset:{ks*2048 + jj*512}") for jj in range(2)]
                M.append(dict(step=P2 + j // 2, d=A2[t], n=16, A=r, B=WR + 4*(n % 32), first=(n == 0), rd=rd, h=n, t=t, last=False, pool=1))
        NM = len(M)
        cum = [0]
        for m in M: cum.append(cum[-1] + m["pool"])
        def epi(g):
            a = ACC[baccof[g] if (isB and g in off) else accof[g]]
            L = []
            if g in off and not isB:
                b = off[g]
                return [dict(text=f"ds_write_b128 v{VE + b // 4}, v[{a+4*i}:{a+4*i+3}] offset:{(b % 4)*BLK + 1024*i}", lds=("ew", g, i), vr=range(a+4*i, a+4*i+4), cost=99) for i in range(4)]
            T = lambda i: TMP + i
            idx = range(8)
            TC = cfg.get("tcost", 2)
            if cfg.get("mix", 0):
                nl = [("er", g, 3)] if g in off else []
                stg = lambda i: [dict(text=f"v_mul_f32 v{T(i)}, v{a+i}, v{a+i}", vr=[a+i], cost=1, nl=nl),
                                 dict(text=f"v_fma_f32 v{T(i)}, v{T(i)}, s12, v{CC0}", cost=1),
                                 dict(text=f"v_mul_f32 v{T(i)}, v{T(i)}, v{a+i}", cost=1),
                                 dict(text=f"v_exp_f32 v{T(i)}, v{T(i)}", cost=TC, trans=T(i)),
                                 dict(text=f"v_mul_f32 v{a+8+i}, v{a+i}, v{a+8+i}", vr=[a+8+i], cost=1),
                                 dict(text=f"v_add_f32 v{T(i)}, 1.0, v{T(i)}", vr=[T(i)], cost=1),
                                 dict(text=f"v_rcp_f32 v{T(i)}, v{T(i)}", cost=TC, trans=T(i)),
                                 dict(text=f"v_mul_f32 v{a+8+i}, v{a+8+i}, v{T(i)}", vr=[T(i)], cost=1)]
                al_ = {i: stg(i) for i in idx}
                if cfg.get("pk", 0):
                    P = lambda r: f"v[{r}:{r+1}]"
                    PC = cfg.get("pcost", 1)
                    which = cfg["pk"]
                    for i in range(0, 8, 2):
                        pkop = {0: dict(text=f"v_pk_mul_f32 {P(T(i))}, {P(a+i)}, {P(a+i)}", vr=[a+i, a+i+1], cost=PC),
                                1: dict(text=f"v_pk_fma_f32 {P(T(i))}, {P(T(i))}, s[12:13], {P(242)} op_sel_hi:[1,0,0]", cost=PC),
                                2: dict(text=f"v_pk_mul_f32 {P(T(i))}, {P(T(i))}, {P(a+i)}", cost=PC),
                                4: dict(text=f"v_pk_mul_f32 {P(a+8+i)}, {P(a+i)}, {P(a+8+i)}", vr=[a+8+i, a+9+i], cost=PC)}
                        for k_ in which:
                            al_[i][k_] = pkop[k_]; al_[i+1][k_] = None
                o_ = HOLDR if g in cfg.get("hold", ()) else a
                if cfg.get("cvtspread", 1):
                    for i in range(1, 8, 2):
                        al_[i].append(None)
                        al_[i].append(dict(text=f"v_cvt_pk_bf16_f32 v{o_+i//2}, v{a+7+i}, v{a+8+i}", cost=cfg.get("ccost", 1), vw=[o_+i//2]))
                ops = sorted(((2*i + k_, i, k_) for i in idx for k_ in range(len(al_[i]))))
                L += [al_[i][k_] for _, i, k_ in ops if al_[i][k_] is not None]
                if cfg.get("noepi"): L = [dict(text="", cost=e_["cost"]) for e_ in L]
                idx = ()
            for i in idx: L.append(dict(text=f"v_mul_f32 v{T(i)}, v{a+i}, v{a+i}", vr=[a+i], cost=1, nl=([("er", g, 3)] if g in off else [])))
            for i in idx: L.append(dict(text=f"v_fma_f32 v{T(i)}, v{T(i)}, s12, v{CC0}", cost=1))
            for i in idx: L.append(dict(text=f"v_mul_f32 v{T(i)}, v{T(i)}, v{a+i}", cost=1))
            for i in idx:
                L.append(dict(text=f"v_exp_f32 v{T(i)}, v{T(i)}", cost=2, trans=T(i)))
                L.append(dict(text=f"v_mul_f32 v{a+8+i}, v{a+i}, v{a+8+i}", vr=[a+8+i], cost=1))
            for i in idx: L.append(dict(text=f"v_add_f32 v{T(i)}, 1.0, v{T(i)}", vr=[T(i)], cost=1))
            for i in idx: L.append(dict(text=f"v_rcp_f32 v{T(i)}, v{T(i)}", cost=2, trans=T(i)))
            for i in idx: L.append(dict(text=f"v_mul_f32 v{a+8+i}, v{a+8+i}, v{T(i)}", vr=[T(i)], cost=1))
            o = HOLDR if g in cfg.get("hold", ()) else a
            if not (cfg.get("mix", 0) and cfg.get("cvtspread", 1)):
                for i in range(4): L.append(dict(text=f"v_cvt_pk_bf16_f32 v{o+i}, v{a+8+2*i}, v{a+8+2*i+1}", cost=1, vw=[o+i]))
            if SH1 == 16:
                for i in range(2): L.append(dict(text=f"v_permlane16_swap_b32 v{o+i}, v{o+2+i}", cost=1, pr=[o+i, o+2+i]))
            L.append(dict(text=f"buffer_store_dwordx4 v[{o}:{o+3}], v{L16}, s[{SH}:{SH+3}], s{HS+g} offen sc1", vm=("st", g), cost=1))
            return L
        def put(e):
            if e.get("vm"):
                g = e["vm"][1]
                if g in hold:
                    assert not held; held.append((e, -100)); return
                for h_, _ in held: S.add(h_["text"], vm=h_["vm"])
                held.clear()
            S.add(e["text"], vm=e.get("vm"), lds=e.get("lds"), need_lds=e.get("nl", ()), vr=e.get("vr", ()), trans=e.get("trans"), vw=e.get("vw", ()), pr=e.get("pr", ()))
        aflag = cfg.get("aflag", {})
        hold = cfg.get("hold", ())
        held = []
        covers = lambda ev: (ev - 1, ev) if ev < 6 else (ev,)
        flagged = set()
        def flag(ev):
            nv = [("st", g) for g in covers(ev) if eowner(g) == 1]
            S(f"s_add_u32 s97, s84, {ev//2}\ns_and_b32 s97, s97, 3\ns_mul_i32 s97, s97, 3584\ns_add_u32 s97, s97, s92")
            if ev >= 6: S(f"s_and_b32 s13, s{ev-6}, 1\ns_lshl4_add_u32 s97, s13, s97")
            S.add(f"buffer_store_dword v{TAG}, v{VF2 if ev < 6 else VF}, s[{SF}:{SF+3}], s97 offen sc1", vm=("flag", ev), need_vm=nv)
            flagged.add(ev)
        def tag_issue():
            S.add("s_load_dwordx2 s[14:15], s[74:75], 0", need_lds=["ALL"])
            if isB and cfg.get("swarm", 1): S(f"s_load_dword s4, s[{SF}:{SF+1}], {FSZ-64}")
        def tag_check():
            S("s_mov_b32 s97, 0")
            S.add("s_waitcnt lgkmcnt(0)", need_lds=["ALL"])
            S(f"L_tag{sfx}:")
            S("s_cmp_lg_u32 s15, 0")
            S(f"s_cbranch_scc1 L_tagok{sfx}")
            S("~s_add_u32 s97, s97, 1")
            S("~s_cmp_ge_u32 s97, 0x100000")
            S(f"~s_cbranch_scc1 L_tagok{sfx}")
            S("~s_sleep 2")
            S(f"~v_mov_b32 v{PR+2}, 0")
            S(f"~global_load_dwordx2 v[{PR}:{PR+1}], v{PR+2}, s[74:75] sc1")
            S("~s_waitcnt vmcnt(0)")
            S(f"~v_readfirstlane_b32 s14, v{PR}")
            S(f"~v_readfirstlane_b32 s15, v{PR+1}")
            S("~s_nop 1")
            S(f"~s_branch L_tag{sfx}")
            S(f"L_tagok{sfx}:")
            S(f"v_mov_b32 v{TAG}, s14")
            S("s_mov_b32 s15, s14")
        polling = [None]
        pmask = lambda c: (((1 << pg[c][1]) - 1) ^ ((1 << pg[c][0]) - 1)) << 16
        PD4 = (4, 8, 24, 28)
        def poll_loads(c, pre=""):
            for i in range(pg[c][1] - pg[c][0]):
                S(f"{pre}s_load_dwordx4 s[{PD4[i]}:{PD4[i]+3}], s[{SF}:{SF+1}], s{88+i} glc")
        def poll_issue(c):
            assert polling[0] is None; polling[0] = c
            for i, j in enumerate(range(*pg[c])): S(f"v_readlane_b32 s{88+i}, v{FV}, {16+j}")
            S.add("s_nop 3", need_lds=["ALL"])
            poll_loads(c)
        def poll_check(c):
            assert polling[0] == c; polling[0] = None
            prs = [r + d for r in PD4[:pg[c][1] - pg[c][0]] for d in (0, 2)]
            S("s_mov_b32 s96, 0")
            S(f"L_poll{sfx}{c}:")
            S.add("s_waitcnt lgkmcnt(0)", need_lds=["ALL"])
            for r in prs: S(f"s_xor_b64 s[{r}:{r+1}], s[{r}:{r+1}], s[14:15]")
            for r in prs[1:]: S(f"s_or_b64 s[4:5], s[4:5], s[{r}:{r+1}]")
            S(f"s_cbranch_scc0 L_ok{sfx}{c}")
            S("~s_add_u32 s96, s96, 1")
            S("~s_cmp_ge_u32 s96, 0x100000")
            S(f"~s_cbranch_scc1 L_ok{sfx}{c}")
            if spare: S(f"~s_sleep {8 if c == 0 else 2}")
            S("~s_and_b32 s4, s96, 63")
            S(f"~s_cbranch_scc1 L_sp{sfx}{c}")
            S(f"~s_mov_b64 exec, {pmask(c):#x}")
            S(f"~buffer_load_dwordx4 v[{PR}:{PR+3}], v{FV}, s[{SF}:{SF+3}], 0 offen sc1")
            S("~s_mov_b64 exec, -1")
            S("~s_waitcnt vmcnt(0)")
            S(f"~v_cmp_eq_u64 vcc, s[14:15], v[{PR}:{PR+1}]")
            S(f"~v_cmp_eq_u64_e64 s[4:5], s[14:15], v[{PR+2}:{PR+3}]")
            S("~s_nop 1")
            S("~s_and_b32 s4, s4, vcc_lo")
            S(f"~s_andn2_b32 s4, {pmask(c):#x}, s4")
            S(f"~s_cbranch_scc0 L_ok{sfx}{c}")
            S(f"L_sp{sfx}{c}:")
            poll_loads(c, "~")
            S(f"~s_branch L_poll{sfx}{c}")
            S(f"L_ok{sfx}{c}:")
        pts = [(rel(a), rel(b)) for a, b in (cfg["ppts_s"] if spare else cfg["ppts"])]
        def points(s, k):
            if not spare:
                if cfg["tag_pts"][0] == (s, k): tag_issue()
                if cfg["tag_pts"][1] == (s, k): tag_check()
                for ev, pt in flag_pts.items():
                    if pt == (s, k): flag(ev)
            for c, (pi, pc) in enumerate(pts):
                if pc == (s, k) and pi != pc: poll_check(c)
            for c, (pi, pc) in enumerate(pts):
                if pi == (s, k):
                    poll_issue(c)
                    if pi == pc: poll_check(c)

        first = P2 - 2 if spare else 0
        st = dict(rd=0, h=0, bar=first - 1, wdead=(32 if spare else 0), n=0, hcons=0, ok=0)
        epq = []; dmaq = []; lpend = []; wq = []
        def barrier():
            s = st["bar"] + 1
            assert not dmaq
            late(cfg.get("late_at", ({1: 70, 2: 40, 3: 0, 4: 50, 5: 999},) * 2)[SET].get(s, 0))
            nv = [(k, i, 3) for (k, i) in issued if vstep(first_use((k, i))) < next_bar(s)]
            drain = ["ALL"] if (isB or s < ES) else []
            if not spare and not isB:
                for ev, pt in flag_pts.items():
                    if s == prev_bar(pt[0]): nv += [("st", g) for g in covers(ev) if eowner(g) == 0]
            lt = lite and not isB
            if not isB and not spare and aflag and s == cfg["atag"][1]: tag_check()
            if s not in nobar:
                if lt:
                    S.add("s_waitcnt lgkmcnt(0)" if drain else "", need_lds=drain, need_vm=nv)
                    for (r, v, idx) in lpend: S(f"v_writelane_b32 v{v}, s{r}, {idx}")
                    lpend.clear()
                    S("s_memtime s[8:9]"); lpend.append((8, LT + 1, s + 1))
                S.add("s_barrier", need_lds=drain, need_vm=nv)
            if lt:
                r = [x for x in (98, 96, 6) if not any(y[0] == x for y in lpend)][0]
                S(f"s_memtime s[{r}:{r+1}]"); lpend.append((r, LT + 2, s + 1))
                if s not in nobar: S("s_memrealtime s[10:11]"); lpend.append((10, LT, s + 1))
            st["bar"] = s
            if not isB and not spare and aflag and s == cfg["atag"][0]: tag_issue()
            if isB and cfg.get("diag") == s: S("s_memrealtime s[82:83]")
            for c, (pi, pc) in enumerate(pts):
                if s == next_bar(pc[0]): st["ok"] = max(st["ok"], pg[c][1])
            for it in myplan[s]:
                if it[0] == "D": assert not lateq
                if it[0] == "D" and it[1] in stage and not spare: continue
                su, dm = item_ops(it)
                dmaq.append((su, None, None))
                for k, (t, tag) in enumerate(dm): dmaq.append((t, tag, it if k == 3 else None))
            if isB and not spare:
                for j, ss in stage.items():
                    if ss == s:
                        assert st["n"] == NM or sreg[j] >= 128, "W registers of set B still in use"
                        for q in range(4):
                            r = sreg[j] + 4*q
                            dmaq.append((f"buffer_load_dwordx4 v[{r}:{r+3}], v{VD+q}, s[{SD}:{SD+3}], s{TB+j} offen offset:{1024*q}", ("sg", j, q), None))
        def unstage(s):
            for it in myplan[s]:
                if it[0] == "D" and it[1] in stage and not spare:
                    j = it[1]
                    S(f"s_add_u32 s32, s33, {blk[it]*BLK}\nv_add_u32 v{XA+3}, s32, v{L16}")
                    for q in range(4):
                        r = sreg[j] + 4*q
                        S.add(f"ds_write_b128 v{XA+3}, v[{r}:{r+3}] offset:{1024*q}", lds=("us", j, q), need_vm=[("sg", j, q)])
        def issue_dma(n):
            while dmaq and n > 0:
                t, tag, it = dmaq.pop(0)
                if tag is None: S(t); continue
                S.add(t, vm=tag); n -= 1
                if it: issued.append(it)
        def issue_reads(n, maxn, lim):
            cnt = 0
            while st["rd"] < NM and (M[st["rd"]]["step"] if isB else vstep(M[st["rd"]]["step"])) < lim and cnt < maxn:
                k = st["rd"]
                lo = cum[n + 1] - 1 if n >= 0 else 0
                if cum[k + 1] - lo > (cfg.get("look2", 6) if "h" in M[k] else cfg.get("look", NPOOL)): break
                for (i, t) in M[k]["rd"]: S.add(t, lds=i)
                if M[k]["rd"]: cnt += 1
                st["rd"] += 1
        def issue_h(maxn):
            cnt = 0
            while st["h"] < 56 and cnt < maxn:
                h = st["h"]
                lim = 56 if spare else hmax.get(st["bar"], 0 if st["bar"] < min(hmax) else 56)
                if not (h < lim and (h < st["wdead"] if h < 32 else h - 32 < st["hcons"]) and h // 4 < st["ok"]): break
                r = WR + 4 * (h % 32)
                S.add(f"buffer_load_dwordx4 v[{r}:{r+3}], v{L16 if SH2 == 32 else DA+4}, s[{SH}:{SH+3}], s{TB + h//4} offen offset:{(h % 4)*1024 if SH2 == 32 else (h % 4 // 2)*2048 + (h % 2)*256} sc1", vm=("h", h))
                st["h"] += 1; cnt += 1
        def issue_epi(budget):
            used = 0
            while epq and used < budget:
                e = epq[0][0].pop(0)
                put(e); used += e["cost"]
                if not epq[0][0]: epq.pop(0)
            return used
        WB = cfg.get("wb", 2)
        def mfma():
            n = st["n"]; m = M[n]
            ph2 = "h" in m
            nv = [("h", m["h"])] if ph2 else []
            if ph2: assert m["h"] < st["h"], ("h not issued", m["h"], st["h"], n)
            assert st["rd"] > n, ("reads not issued", n)
            if m["first"]:
                for e in epq + held + wq: assert not (e[1] <= m["d"] < e[1] + 16), ("acc reuse", n, m["step"])
            d, nn = m["d"], m["n"]
            c = "0" if m["first"] else f"v[{d}:{d+nn-1}]"
            op = "v_mfma_f32_32x32x16_bf16" if nn == 16 else "v_mfma_f32_16x16x32_bf16"
            wb = WB * (1 if nn == 16 else 2)
            nl = [i for k in range(n, min(n + (wb if n % wb == 0 else 1), st["rd"])) for i, _ in M[k]["rd"] if i is not None]
            if isB: nl += [("w", m["slot"], 0), ("w", m["slot"], 1)]
            S.add(f"{op} v[{d}:{d+nn-1}], v[{m['A']}:{m['A']+3}], v[{m['B']}:{m['B']+3}], {c}" if not (cfg.get("nomf") and n % 2) else "", need_lds=nl, need_vm=nv, mw=(d, d + nn - 1))
            if m.get("wdead") is not None: st["wdead"] = m["wdead"] + 1
            if m["last"]:
                ent = [epi(m["g"]), ACC[accof[m["g"]]], n + 1 + (cfg.get("elast", 4 * MUL) if m["g"] == groups[0][-1] else cfg.get("estart", 4) * MUL), m["g"]]
                if m["g"] in off: wq.append(ent)
                else: epq.append(ent)
            if ph2: st["hcons"] = max(st["hcons"], m["hc"]) if "hc" in m else m["h"] + m["t"]
            st["n"] += 1
            if ph2 and SH2 == 16:
                if n in (NM - 5, NM - 3):
                    for i in ((0, 1) if n == NM - 5 else (2, 3)):
                        S.add(f"ds_write_b128 v{VEX}, v[{A2[0]+4*i}:{A2[0]+4*i+3}] offset:{1024*i}", lds=("xw", i), vr=range(A2[0]+4*i, A2[0]+4*i+4))
                if n == NM - 1: exch()
            elif ph2:
                w0 = NM - TK + 1
                if n in (w0, w0 + 1):
                    for i in (2*(n - w0), 2*(n - w0) + 1):
                        S.add(f"ds_write_b128 v{VEX}, v[{A2[0]+4*i}:{A2[0]+4*i+3}] offset:{1024*i}", lds=("xw", i), vr=range(A2[0]+4*i, A2[0]+4*i+4))
                if n == NM - 1 - cfg.get("tb", 0): exch()
        def exch():
            assert st["rd"] == NM
            S.add("s_barrier", need_lds=["ALL"])
            for i in range(4):
                S.add(f"ds_read_b128 v[{RED+4*i}:{RED+4*i+3}], v{VEX+1} offset:{1024*i}", lds=("xr", i))
        if isB and not spare and cfg.get("pages", 0) == 1:
            for p_ in range(1, touch["n"]):
                if (p_ - 1) % 4 // 2 != var: continue
                S(f"s_cmp_eq_u32 s22, {(p_ - 1) % 2}")
                S(f"s_cbranch_scc0 L_nt{sfx}{p_}")
                S(f"s_call_b64 s[98:99], L_stub{p_}")
                S(f"L_nt{sfx}{p_}:")
        if not isB and not spare and cfg.get("pages", 0) == 3: S("@TOUCH@")
        prio = cfg.get("prio", (1, 0))
        S(f"s_setprio {prio[SET]}")
        if spare and isB:
            tag_issue(); tag_check()
            points(first - 1, 99)
        lastB = max([next_bar(pc[0]) for _, pc in pts] + [vstep(first_use(("D", 13)))])
        for s in range(first, NST):
            if isB and s > lastB: break
            barrier()
            end = st["n"]
            while end < NM and M[end]["step"] <= s: end += 1
            if not isB:
                BK = cfg.get("bk", 3) * (MUL if s < P2 else MUL2)
                if s + 1 >= ES: BK = 0
                if s < LAST and end > st["n"]: end -= BK
                issue_reads(st["n"] - 1, 99, next_bar(s))
                if spare and s < P2: issue_h(99)
                k = 0
                while st["n"] < end:
                    mfma(); k += 1
                    if lite and s in cfg.get("fine", ()) and k % 2 == 0 and k <= 16:
                        r = (36, 38, 40, 42, 48, 50, 56, 58)[k // 2 - 1]
                        S(f"s_memtime s[{r}:{r+1}]"); lpend.append((r, LT + 2, 30 + 8 * cfg["fine"].index(s) + k // 2 - 1))
                    issue_reads(st["n"] - 1, 2, next_bar(s))
                    nn = M[st["n"] - 1]["n"]
                    per = cfg.get("hper_at", {}).get(s - P2, cfg.get("hper", 2)) * (MUL if s < P2 else MUL2)
                    if k % per == per - 1 or (s >= P2 and st["h"] < st["hcons"] + 6): issue_h(1)
                    if wq and st["n"] >= wq[0][2] and (nn == 16 or k % 2):
                        put(wq[0][0].pop(0))
                        if not wq[0][0]: wq.pop(0)
                    elif epq and st["n"] >= epq[0][2]:
                        eb = cfg.get("eon2", 5) if s >= P2 else cfg.get("eon_at", {}).get(s, cfg["eon"])
                        if nn == 16: issue_epi(eb)
                        elif cfg.get("split16", 0):
                            st["cr"] = min(st.get("cr", 0), 0) + (eb // 2 if M[st["n"] - 1]["pool"] else eb - eb // 2)
                            if st["cr"] > 0: st["cr"] -= issue_epi(st["cr"])
                        elif k % 2: issue_epi(eb)
                assert not wq, ("hand-over not finished", s)
                assert s == LAST or s + 1 in nobar or (spare and s < P2) or s + 1 >= ES or st["rd"] == end + BK, (s, st["rd"], end)
            else:
                pa = {(P2 + k_[0] if isinstance(k_, tuple) else k_): v for k_, v in cfg.get("prio_at", {}).items()}
                if s in pa: S(f"s_setprio {pa[s]}")
                lag = cfg.get("blag", 1)
                if lag:
                    while st["n"] < NM and M[st["n"]]["step"] < s:
                        mfma()
                        if M[st["n"] - 1]["n"] == 16 or st["n"] % 2 == 0: issue_dma(1)
                if s < 8 and not spare and bgroups:
                    for slot, rds in wreads(s).items():
                        for (i, t) in rds: S.add(t, lds=i)
                        issue_dma(1)
                issue_reads(st["n"] - 2 if False else st["n"] - 1, 99, s + 1)
                if lag: assert st["rd"] == end, (s, st["rd"], end)
                if not spare:
                    for g in sorted(off):
                        if gend[g] + 1 == s:
                            a = ACC[baccof[g]]; b = off[g]
                            assert polling[0] is None, ("scalar poll in flight over LDS reads", s)
                            for e in epq: assert e[1] != a, ("B acc reuse", g)
                            for i in range(4):
                                S.add(f"ds_read_b128 v[{a+4*i}:{a+4*i+3}], v{VE + b // 4} offset:{(b % 4)*BLK + 1024*i}", lds=("er", g, i))
                            epq.append([epi(g), a, 0, g])
                eb = cfg.get("eoff_at", {}).get(s, cfg["eoff"])
                efirst = (var == 1 or s in cfg.get("epi_first", ()))
                points(s, 0)
                if efirst: issue_epi(eb)
                unstage(s)
                issue_dma(99)
                points(s, 50)
                while not lag and st["n"] < end:
                    mfma()
                    issue_reads(st["n"] - 1, 2, s + 1)
                if not efirst: issue_epi(eb)
                points(s, 99)
                if cfg.get("pages") == 4 and not spare:
                    for p_, bi in enumerate(touch["at"]):
                        if s == max(0, bi - cfg.get("tdist", 3)):
                            S(f"s_cmp_eq_u32 s21, {p_ % 4}\ns_cbranch_scc0 L_nt{sfx}{p_}\n~s_call_b64 s[98:99], L_stub{p_}\nL_nt{sfx}{p_}:")
        assert not epq and st["n"] == NM
        if isB:
            if not spare: assert flagged | set(aflag.values()) == {1, 3, 5, 6, 7} and not flagged & set(aflag.values()), flagged
            if cfg.get("diag") is not None and not spare:
                S(f"s_cmp_lg_u32 s2, {cfg.get('diagwg', 8)}")
                S("s_cbranch_scc1 L_end")
                for s in range(lastB + 1, NST):
                    if s not in nobar: S("s_barrier")
                S("s_barrier")
                if cfg["diag"] == 99: S("s_memrealtime s[82:83]")
                S("s_waitcnt lgkmcnt(0)")
                if cfg["diag"] < 0: S("s_mov_b32 s82, s100")
                S("s_sub_u32 s98, s82, s100\ns_lshl_b32 s98, s98, 2\ns_add_u32 s98, s98, 3000")
                S(f"L_dg{sfx}:")
                S("s_memrealtime s[96:97]\ns_waitcnt lgkmcnt(0)\ns_sub_u32 s96, s96, s100\ns_cmp_lt_u32 s96, s98\ns_cbranch_scc1 L_dg" + sfx)
            S("s_endpgm")
            return S.render()
        assert st["h"] == 56
        R = RED; keep = A2[1]
        for q in range(2):
            for i in range(8*q, 8*q + 8): S.add(f"v_add_f32 v{R+i}, v{R+i}, v{keep+i}", need_lds=[("xr", i // 4)], vr=[keep+i])
            for i in range(4): S.add(f"v_cvt_pk_bf16_f32 v{TMP+4*q+i}, v{R+8*q+2*i}, v{R+8*q+2*i+1}", vw=[TMP+4*q+i])
            if SH2 == 16:
                for i in range(2): S.add(f"v_permlane16_swap_b32 v{TMP+4*q+i}, v{TMP+4*q+2+i}", pr=[TMP+4*q+i, TMP+4*q+2+i], vw=[TMP+4*q+i, TMP+4*q+2+i])
            if not cfg.get("o64", 0): S(f"buffer_store_dwordx4 v[{TMP+4*q}:{TMP+4*q+3}], v{VOUT}, s[{SW}:{SW+3}], s95 offen offset:{32*q}")
        if cfg.get("o64", 0):
            S("s_add_u32 s94, s95, 16384")
            for i in range(4): S.add(f"v_permlane16_swap_b32 v{TMP+i}, v{TMP+4+i}", pr=[TMP+i, TMP+4+i])
            for q in range(2): S(f"buffer_store_dwordx4 v[{TMP+4*q}:{TMP+4*q+3}], v{VOUT}, s[{SW}:{SW+3}], s{95-q} offen {cfg.get('outsc', '')}")
        if lite:
            for (r, v, idx) in lpend: S(f"v_writelane_b32 v{v}, s{r}, {idx}")
            S("s_memrealtime s[96:97]\ns_memtime s[36:37]\ns_waitcnt vmcnt(0)\ns_memrealtime s[98:99]\ns_waitcnt lgkmcnt(0)")
            S(f"v_writelane_b32 v{LT}, s100, 0\nv_writelane_b32 v{LT}, s96, 60\nv_writelane_b32 v{LT}, s98, 61")
            for x in range(NST + 1, 29): S(f"v_writelane_b32 v{LT+2}, s36, {x}")
            S(f"s_cmp_lg_u32 s20, {cfg.get('stwave', 1)}")
            S("s_cbranch_scc1 L_end")
            S(f"s_add_u32 s30, s{SH}, 0x8000000\ns_addc_u32 s31, s{SH+1}, 0")
            S(f"s_lshl_b32 s32, s2, 8\nv_lshrrev_b32 v0, 2, v{L16}\nv_add_u32 v0, s32, v0")
            for v in (LT, LT + 1, LT + 2):
                S(f"global_store_dword v0, v{v}, s[30:31]")
                S("v_add_u32 v0, 0x10000, v0")
        S("s_endpgm")
        return S.render()

    E = Stream()
    E("s_load_dwordx8 s[4:11], s[0:1], 0")
    E("s_load_dwordx4 s[24:27], s[0:1], 24")
    E("s_load_dwordx4 s[28:31], s[0:1], 40")
    if cfg.get("codepf") in (5, 6):
        if cfg["codepf"] == 5:
            E("s_cmp_ge_u32 s2, 224\ns_cbranch_scc0 L_reg0")
        E(f"s_getpc_b64 s[{SH}:{SH+1}]")
        E("L_pc:")
        if cfg["codepf"] == 5:
            E(f"s_bfe_u32 s35, s2, 0x20003\nv_lshlrev_b32 v{T1}, 4, v0\nv_lshl_add_u32 v{T1}, s35, 13, v{T1}")
        else:
            E(f"s_bfe_u32 s35, s2, 0x50003\nv_lshlrev_b32 v{T1}, 1, v0\nv_and_b32 v{T1}, 0x3fc, v{T1}\nv_lshl_add_u32 v{T1}, s35, 10, v{T1}")
        E(f"v_min_u32 v{T1}, L_codeend-L_pc-16, v{T1}")
        E(f"v_mov_b32 v{T2}, s{SH+1}")
        E(f"v_add_co_u32 v{T1}, vcc, s{SH}, v{T1}")
        E("s_nop 1")
        E(f"v_addc_co_u32 v{T2}, vcc, 0, v{T2}, vcc")
        E(f"global_load_dwordx4 v[204:207], v[{T1}:{T2}], off" if cfg["codepf"] == 5 else f"global_load_dword v204, v[{T1}:{T2}], off")
        E("L_reg0:")
    if lite or cfg.get("diag") is not None: E("s_memrealtime s[100:101]")
    E("v_lshrrev_b32 v1, 6, v0")
    E("s_cmp_ge_u32 s2, 256")
    E("s_cbranch_scc1 L_end")
    E("v_readfirstlane_b32 s20, v1")
    E("s_and_b32 s14, s2, 7\ns_lshr_b32 s15, s2, 3")
    E("s_and_b32 s35, s15, 3\ns_lshr_b32 s19, s15, 2")
    E("s_and_b32 s32, s14, 1\ns_lshl2_add_u32 s16, s32, s35")
    E("s_lshr_b32 s84, s14, 1\ns_mul_i32 s17, s84, 7\ns_add_u32 s17, s17, s19")
    if not XROT: E("s_mov_b32 s84, s17")
    E("s_lshl2_add_u32 s18, s14, s35")
    E("s_and_b32 s21, s20, 3")
    if cfg.get("nbswap", 1):
        E("s_mov_b32 s34, s19\ns_cmp_eq_u32 s19, 3\ns_cselect_b32 s19, 7, s19\ns_cmp_eq_u32 s34, 7\ns_cselect_b32 s19, 3, s19\ns_cselect_b32 s34, 0, s34")
    else:
        E("s_cmp_eq_u32 s19, 7\ns_cselect_b32 s34, 0, s19")
    if cfg.get("codepf") == 4:
        E("s_cbranch_scc0 L_reg")
        E(f"s_getpc_b64 s[{SH}:{SH+1}]")
        E("L_pc:")
        E(f"v_lshlrev_b32 v{T1}, 4, v0")
        E(f"v_lshl_add_u32 v{T1}, s35, 13, v{T1}")
        E(f"v_min_u32 v{T1}, L_codeend-L_pc-16, v{T1}")
        E(f"v_mov_b32 v{T2}, s{SH+1}")
        E(f"v_add_co_u32 v{T1}, vcc, s{SH}, v{T1}")
        E("s_nop 1")
        E(f"v_addc_co_u32 v{T2}, vcc, 0, v{T2}, vcc")
        E(f"global_load_dwordx4 v[204:207], v[{T1}:{T2}], off")
        E("s_branch L_spare")
        E("L_reg:")
    else:
        E("s_cbranch_scc1 L_spare")
    E(f"v_and_b32 v{LANE}, 63, v0")
    CM = cfg.get("cmode", 0)
    if CM == 0: E("s_lshl1_add_u32 s36, s35, s32")
    elif CM == 1: E("s_lshr_b32 s36, s35, 1\ns_mul_i32 s36, s36, 3\ns_lshl1_add_u32 s36, s32, s36\ns_add_u32 s36, s36, s32")
    elif CM == 2: E("s_mul_i32 s36, s32, 3")
    elif CM == 3: E("s_min_u32 s36, s14, 6")
    if cfg.get("crot", 1) == 1: E("s_lshr_b32 s32, s17, 2\ns_add_u32 s36, s36, s32")
    if cfg.get("crot", 1) == 2: E("s_add_u32 s36, s36, s34")
    if cfg.get("c3last", 1):
        E("s_sub_u32 s32, s36, 7\ns_min_u32 s36, s36, s32\ns_lshl_b32 s36, s36, 2")
        E("s_mov_b32 s96, 0x07654210\ns_mov_b32 s97, 0x65421\ns_lshr_b64 s[96:97], s[96:97], s36")
        E("s_and_b32 s36, s96, 0x0fffffff\ns_or_b32 s36, s36, 0x30000000")
    else:
        E("s_and_b32 s36, s36, 7\ns_lshl_b32 s36, s36, 2")
        E("s_mov_b32 s96, 0x76543210\ns_mov_b32 s97, s96\ns_lshr_b64 s[96:97], s[96:97], s36\ns_mov_b32 s36, s96")
    E("s_lshl_b32 s39, s16, 18")
    assert SP in ([0, 1], [0, 1, 2, 3])
    E("s_and_b32 s37, s21, 1")
    E(("s_lshl1_add_u32 s3, s84, s37" if NS == 2 else "s_lshl1_add_u32 s3, s84, s21") + "\ns_and_b32 s3, s3, 7\ns_lshl_b32 s3, s3, 15\ns_add_u32 s3, s3, s39")
    E("s_mul_i32 s37, s37, 114688\ns_lshl_b32 s32, s17, 7\ns_add_u32 s37, s37, s32")
    E("s_and_b32 s22, s21, 2")
    E("s_lshl_b32 s33, s21, 12")
    E("s_cmp_lt_u32 s20, 4")
    E("s_cselect_b32 s37, s3, s37")
    E("s_cselect_b32 s38, 1, 1792")
    E("s_cselect_b32 s12, 3, 1\ns_cselect_b32 s13, 0, 2")
    E(f"s_cselect_b32 s23, 0, {'s22' if SH1 == 32 else '0'}")
    E(f"s_cselect_b32 s92, 64, {0 if SH1 == 32 else 32}")
    E("s_cselect_b32 s93, 2, 7")
    E(f"s_cselect_b32 s{SX+2}, 8, 7")
    E("s_cselect_b32 s94, 0, 0x10000")
    E("s_cselect_b32 s95, s22, 0" if NS == 2 else "s_mov_b32 s95, 0")
    E(f"s_lshl_b32 s38, s38, 7\ns_lshl_b32 s93, s93, 9\ns_lshl_b32 s{SX+2}, s{SX+2}, 18")
    E(f"v_lshrrev_b32 v{T1}, 3, v{LANE}")
    E(f"v_lshrrev_b32 v{T2}, 4, v{LANE}")
    E(f"v_and_b32 v{T2}, s12, v{T2}")
    E(f"v_lshlrev_b32 v{T2}, s13, v{T2}")
    E(f"v_or_b32 v{T2}, s23, v{T2}")
    E(f"v_xor_b32 v{T2}, v{T2}, v{LANE}")
    E(f"v_and_b32 v{T2}, 7, v{T2}")
    E(f"v_mul_u32_u24 v{T1}, s93, v{T1}")
    E(f"v_lshl_add_u32 v{VX}, v{T2}, 4, v{T1}")
    E("s_lshl_b32 s93, s93, 3\ns_sub_u32 s93, s93, 1024")
    E(f"v_xor_b32 v{VX+1}, s92, v{VX}")
    E(f"v_add_u32 v{VX+1}, s93, v{VX+1}")
    E("s_lshl_b32 s93, s93, 1")
    E(f"v_add_u32 v{VX+2}, s93, v{VX}")
    E(f"v_add_u32 v{VX+3}, s93, v{VX+1}")
    E(f"s_mov_b32 s{SX+3}, 0x20000")
    E("s_add_u32 s33, s33, s94")
    E("s_lshl_b32 s95, s95, 1\ns_lshr_b32 s32, s36, s95\ns_and_b32 s32, s32, 7\ns_mul_i32 s32, s32, s38\ns_add_u32 s32, s32, s37")
    E("s_mov_b32 m0, s33")
    E("s_cmp_eq_u32 s22, 0")
    E("s_waitcnt lgkmcnt(0)")
    E(f"s_cselect_b32 s{SX}, s6, s8\ns_cselect_b32 s{SX+1}, s7, s9")
    E("s_cmp_lt_u32 s20, 4")
    E(f"s_cselect_b32 s{SX}, s4, s{SX}\ns_cselect_b32 s{SX+1}, s5, s{SX+1}")
    for q in range(4): E(f"buffer_load_dwordx4 v{VX+q}, s[{SX}:{SX+3}], s32 offen offset:{1024*q} lds")
    E("s_cbranch_scc0 L_B")
    body = E.render()
    atext = wave(False, False)
    nstub = 0
    if cfg.get("pages", 0):
        lines = atext.split("\n")
        bars = [i for i, l in enumerate(lines) if l.strip() == "s_barrier"]
        sz = [isize(l.strip()) if l.strip() else 0 for l in lines]
        cumsz = [0]
        for x in sz: cumsz.append(cumsz[-1] + x)
        cuts = [bars[0]]
        if cfg["pages"] == 4:
            esz = 0x300 + sum(isize(l.strip()) for l in body.split("\n") if l.strip())
            cuts = [[b for b in bars if esz + cumsz[b] <= 4070][-1]]
            if "cut0" in cfg: cuts = [bars[cfg["cut0"]]]
        while cumsz[-1] - cumsz[cuts[-1]] > 4080:
            ok = [b for b in bars if b > cuts[-1] and cumsz[b] - cumsz[cuts[-1]] <= 4080]
            cuts.append(ok[-1])
        touch["at"] = [bars.index(c) for c in cuts]
        out = []
        for i, l in enumerate(lines):
            if i in cuts:
                out += [f"    s_branch L_pg{nstub}", ".p2align 12", f"L_stub{nstub}:", "    s_setpc_b64 s[98:99]", f"L_pg{nstub}:"]
                nstub += 1
            out.append(l)
        atext = "\n".join(out)
        tt = ""
        for p_ in range(1, nstub):
            tt += f"    s_cmp_eq_u32 s21, {(p_ - 1) % 4}\n    s_cbranch_scc0 L_nta{p_}\n    s_call_b64 s[98:99], L_stub{p_}\nL_nta{p_}:\n"
        atext = atext.replace("    @TOUCH@\n", tt)
    touch["n"] = nstub
    body += ".p2align 3\n" + atext
    def bpage(t, nm):
        if not cfg.get("bpages", 0): return t
        i_ = t.index("    s_setprio")
        return t[:i_] + f"    s_branch L_bp{nm}\n.p2align 12\nL_bp{nm}:\n" + t[i_:]
    if off:
        body += ".p2align 6\nL_B:\n    s_cmp_eq_u32 s22, 0\n    s_cbranch_scc0 L_B1\n" + bpage(wave(True, False, 0), 0)
        body += ".p2align 6\nL_B1:\n" + bpage(wave(True, False, 1), 1)
    else:
        body += ".p2align 6\nL_B:\n" + bpage(wave(True, False, 0), 0)
    body += ".p2align 6\nL_spare:\n    s_cmp_lt_u32 s20, 4\n    s_cbranch_scc0 L_Bs\n"
    body += wave(False, True)
    body += ".p2align 6\nL_Bs:\n" + wave(True, True)
    body += "L_end:\n    s_endpgm\nL_codeend:\n"
    return single_file(body, 256, 512, 163840, 256)

R = "r"
DEF = dict(sp=[0, 2], al=[3, 4, 5, 6, 7], bgroups=[(1, [1, 2, 3, 4, 5, 6, 7, 8])],
           sched={("W", 1): -1, ("Y", 0): -1, ("X", 1): 0, ("W", 2): 0, ("W", 3): 1, ("X", 2): 2, ("W", 4): 1, ("W", 5): 2, ("Y", 1): 3, ("X", 3): 4,
                  ("W", 6): 3, ("W", 7): 4, ("X", 4): 5, ("X", 5): 6},
           dsched={0: 6, 1: 7, 2: 8, 3: 9, 4: 10, 5: 11, 6: 12, 7: -2, 8: -1, 9: 0, 10: 1, 11: 1, 12: 2, 13: 2},
           stage={9: 11, 10: 13, 11: 14, 12: 14, 13: 15},
           nobar2=(6,), eon=4, eon2=5, eoff=45, prio=(1, 2), prio_at={9: 0, (0,): 2},
           tag_pts=((9, 99), (10, 99)),
           flag_pts={1: (12, 0), 3: (14, 0), 5: (-1, 0, R), 6: (1, 0, R), 7: (3, 0, R)},
           pgroups=[(0, 3), (3, 7), (7, 10), (10, 12), (12, 14)],
           ppts=[((-4, 0, R), (-3, 99, R)), ((-2, 0, R), (-1, 99, R)), ((0, 99, R), (1, 99, R)), ((2, 99, R), (3, 99, R)), ((4, 0, R), (4, 99, R))],
           ppts_s=[((-3, 99, R), (-3, 99, R)), ((-2, 99, R), (-2, 99, R)), ((1, 99, R), (1, 99, R)), ((3, 99, R), (3, 99, R)), ((4, 99, R), (4, 99, R))],
           hper_at={4: 1, 5: 1},
           hmax={-2: 5, -1: 12, 0: 20, 1: 28, 2: 36, 3: 40, 4: 56})
def emit(variants):
    for k, v in variants.items():
        open(k + ".s", "w").write(build(dict(v)))
        open(k + "_lt.s", "w").write(build(dict(v, lite=True)))
NB = dict(DEF, sp=[0, 1], al=[2, 3, 4, 5, 6, 7], bgroups=[],
          sched={("W", 1): -1, ("X", 1): -1, ("W", 2): 0, ("W", 3): 0, ("W", 4): 1, ("X", 2): 1, ("W", 5): 2, ("W", 6): 3, ("X", 3): 3, ("W", 7): 4, ("X", 4): 5, ("X", 5): 6},
          dblk=[3, 8, 9, 4, 5, 6, 7, 1, 2, 0],
          dsched={0: 6, 1: 7, 2: 8, 3: 9, 4: 10, 5: 11, 6: 12, 7: -2, 8: -1, 9: 0, 10: 1, 11: 1, 12: 2, 13: 2},
          stage={9: 13, 10: 14, 11: 15, 12: 16, 13: 17},
          prio=(1, 0), prio_at={}, tag_pts=((8, 99), (9, 99)),
          flag_pts={1: (14, 0), 3: (17, 0), 5: (0, 0, R), 6: (2, 0, R), 7: (3, 0, R)},
          ppts=[((-4, 0, R), (-3, 99, R)), ((-2, 99, R), (-1, 99, R)), ((1, 0, R), (1, 99, R)), ((3, 0, R), (3, 99, R)), ((4, 0, R), (4, 99, R))],
          eon_at={16: 6, 17: 6, 18: 6, 19: 6}, eon2=6)
NC = dict(NB, flag_pts={1: (13, 0), 3: (16, 0), 5: (-1, 0, R), 6: (1, 0, R), 7: (3, 0, R)},
          ppts=[((-4, 0, R), (-3, 99, R)), ((-2, 99, R), (-1, 99, R)), ((0, 99, R), (1, 99, R)), ((2, 99, R), (3, 99, R)), ((4, 0, R), (4, 99, R))])
ND = dict(NC, dsched={0: 8, 1: 9, 2: 10, 3: 11, 4: 12, 5: 13, 6: 14, 7: -2, 8: -1, 9: 0, 10: 1, 11: 1, 12: 2, 13: 2}, stage={9: 15, 10: 16, 11: 17, 12: 14, 13: 16})
NE = dict(NC, dsched={0: 4, 1: 6, 2: 7, 3: 7, 4: 9, 5: 10, 6: 11, 7: -2, 8: -1, 9: 0, 10: 1, 11: 1, 12: 2, 13: 2}, stage={9: 12, 10: 13, 11: 14, 12: 15, 13: 16},
          spare_order="wx", look=6)
NF = dict(NE, hold=(0, 2, 4), aflag={3: 1, 5: 3, 6: 5, 7: 6}, atag=(7, 8), flag_pts={7: (3, 0, R)})
SG = {("W", 1): -1, ("X", 1): -1, ("W", 2): 0, ("W", 3): 0, ("W", 4): 1, ("X", 2): 1, ("W", 5): 2, ("X", 3): 2, ("W", 6): 3, ("W", 7): 4, ("X", 4): 4, ("X", 5): 5}
NG = dict(NE, hold=(0, 2, 4), nobar=(6, 7), sched=SG, blk={("X", 5): 3},
          dblk=[8, 9, 4, 5, 6, 7, 3, 1, 2, 0],
          dsched={0: 5, 1: 5, 2: 8, 3: 8, 4: 10, 5: 11, 6: 12, 7: -2, 8: -1, 9: 0, 10: 1, 11: 1, 12: 2, 13: 2},
          stage={9: 13, 10: 14, 11: 15, 12: 16, 13: 17})
OF = dict(NC, look=6, off={0: 3, 2: 3, 3: 3, 4: 3, 5: 3, 6: 3, 7: 3}, eon=3, eon_at={}, eoff=46,
          dblk=[8, 9, 4, 5, 6, 7, 1, 2, 0, 3],
          dsched={0: 6, 1: 7, 2: 8, 3: 9, 4: 10, 5: 11, 6: 18, 7: -1, 8: 0, 9: 2, 10: 1, 11: 1, 12: 2, 13: 3},
          stage={8: 12, 9: 13, 10: 14, 11: 15, 12: 16, 13: 17},
          tag_pts=((7, 99), (8, 99)), eoff_at={21: 90}, epi_first=(21,), prio_at={21: 2},
          flag_pts={1: (12, 99), 3: (16, 50), 5: (0, 50, R), 6: (2, 0, R), 7: (3, 0, R)},
          ppts=[((-5, 99, R), (-4, 99, R)), ((-1, 0, R), (-1, 99, R)), ((1, 50, R), (1, 99, R)), ((3, 0, R), (3, 99, R)), ((4, 0, R), (4, 99, R))])
O1 = dict(NC, look=6, off={0: 7}, eon=3, eoff=30, mix=1, tag_pts=((7, 99), (8, 99)),
          flag_pts={1: (13, 99), 3: (16, 0), 5: (-1, 0, R), 6: (1, 0, R), 7: (3, 0, R)}, eon_at={16: 5, 17: 5, 18: 5, 19: 5})
T1_ = dict(NE, hold=(0, 2, 4), tag_pts=((6, 99), (11, 99)), mix=1)
T2_ = dict(NC, look=6, tag_pts=((6, 99), (11, 99)), mix=1)
SE = {("W", 1): -1, ("X", 1): -1, ("W", 2): 0, ("W", 3): 0, ("W", 4): 1, ("X", 2): 1, ("W", 5): 2, ("W", 6): 3, ("X", 3): 3, ("W", 7): 4, ("X", 4): 5, ("X", 5): 5, ("X", 6): 6}
E1 = dict(T2_, defer=0, es=9, xring=4, sched=SE, look=8, look2=7,
          dblk=[8, 9, 4, 5, 6, 7, 0, 1, 2, 3],
          dsched={0: 6, 1: 7, 2: 8, 3: 9, 4: 10, 5: 11, 6: 17, 7: -2, 8: -1, 9: 0, 10: 1, 11: 1, 12: 2, 13: 2},
          stage={9: 12, 10: 13, 11: 14, 12: 15, 13: 16})
ORD = [0, 4, 7, 11, 1, 5, 8, 12, 2, 6, 9, 13, 3, 10]
def inter(base, start, xr4):
    ds = dict(base["dsched"]); stg = {}
    for n, j in enumerate(ORD):
        if j >= (6 if xr4 else 7): stg[j] = start + n
        else: ds[j] = start + n
    return dict(base, dsched=ds, stage=stg)
if __name__ == "__main__":
    B0_ = dict(T2_, defer=0, sh1=16, look=6, dblk=[3, 4, 5, 6, 8, 7, 9, 1, 2, 0])
    I1 = dict(inter(B0_, 6, False), split16=1, eon_at={}, eon2=4)
    O2 = dict(I1, off={0: 9}, eon=3, eoff=30, tag_pts=((6, 99), (8, 99)), flag_pts={1: (13, 99), 3: (16, 0), 5: (0, 0, R), 6: (2, 0, R), 7: (3, 0, R)})
    O3 = dict(O2, eon_at={16: 4, 17: 4, 18: 4, 19: 4}, flag_pts={1: (13, 99), 3: (16, 0), 5: (-1, 0, R), 6: (1, 0, R), 7: (3, 0, R)})
    P_ = dict(I1, pages=3, bpages=1)
    F1 = dict(P_, eon2=99, flag_pts={1: (13, 0), 3: (16, 0), 5: (-1, 0, R), 6: (1, 0, R), 7: (2, 0, R)},
              ppts=[((-4, 0, R), (-3, 99, R)), ((-2, 99, R), (-1, 99, R)), ((0, 99, R), (1, 99, R)), ((2, 99, R), (3, 99, R)), ((3, 99, R), (4, 99, R))])
    F2 = dict(F1, eon2=12)
    F3 = dict(F1, flag_pts={1: (13, 0), 3: (16, 0), 5: (-1, 0, R), 6: (2, 0, R), 7: (2, 0, R)},
              ppts=[((-4, 0, R), (-3, 99, R)), ((-2, 99, R), (-1, 99, R)), ((0, 99, R), (1, 99, R)), ((3, 0, R), (3, 99, R)), ((3, 99, R), (4, 99, R))])
    F4 = dict(F1, dsched={**F1["dsched"], 10: 1, 11: 2, 12: 3, 13: 4})
    def reord(base, order, start, staged):
        ds = dict(base["dsched"]); stg = {}
        for n, j in enumerate(order):
            if j is None: continue
            if j in staged: stg[j] = start + n
            else: ds[j] = start + n
        return dict(base, dsched=ds, stage=stg)
    G1 = reord(F4, [0, 4, 11, 9, 1, 5, 12, None, 2, 6, 13, 3], 6, (9, 11, 12, 13))
    G2 = dict(F4, hmax={-2: 3, -1: 8, 0: 16, 1: 26, 2: 34, 3: 40, 4: 56}, hper_at={1: 1, 4: 1, 5: 1})
    G3 = dict(F4, eon2=12)
    G4 = dict(F4, eon_at={16: 5, 17: 5, 18: 3, 19: 3})
    G5 = dict(G1, hmax=G2["hmax"], hper_at=G2["hper_at"], eon2=12)
    G6 = dict(F4, nobar=(5, 7), sched={**F4["sched"], ("X", 4): 4}, dsched={**F4["dsched"]})
    X1 = dict(F4, xrot=1, spare_order="pw12b3", crot=2)
    X2 = dict(X1, spare_order="pw1b23")
    ST = (7, 8, 9, 10, 11, 12, 13)
    def fix(c):
        return dict(c, dsched={**c["dsched"], **{j: F4["dsched"][j] for j in ST}})
    Y1 = fix(reord(X1, [0, None, 4, 7, 11, 1, 5, 8, 12, 2, 6, 9, 13, 3, 10], 4, ST))
    Y2 = fix(reord(X1, ORD, 5, ST))
    Y3 = dict(X1, nobar=(5, 7), sched={**F4["sched"], ("X", 4): 4})
    Y4 = dict(Y2, nobar=(3, 5, 7), sched={("W", 1): -1, ("X", 1): -1, ("W", 2): 0, ("W", 3): 0, ("W", 4): 1, ("X", 2): 1, ("W", 5): 2, ("X", 3): 2, ("W", 6): 4, ("W", 7): 4, ("X", 4): 4, ("X", 5): 6})
    Y5 = dict(X1, bk=4)
    Z = dict(X1, spare_order="pwm", pages=0, bpages=0)
    S4 = {("W", 1): -1, ("X", 1): -1}
    for i_ in range(2, 8): S4[("W", i_)] = i_ - 2; S4[("X", i_)] = i_ - 2
    N4 = dict(Z, sp=[0, 1, 2, 3], al=[4, 5, 6, 7], sched=S4, eon=6, tag_pts=((5, 99), (9, 99)),
              flag_pts={1: (12, 0), 3: (13, 99), 5: (-1, 0, R), 6: (1, 0, R), 7: (2, 0, R)},
              ppts=[((-3, 0, R), (-3, 99, R)), ((-2, 99, R), (-1, 99, R)), ((0, 99, R), (1, 99, R)), ((2, 99, R), (3, 99, R)), ((3, 99, R), (4, 99, R))])
    def pack(base, slots):
        ds = dict(base["dsched"]); stg = {}
        for st_, js in slots.items():
            for j in js:
                if j >= 7: stg[j] = st_
                else: ds[j] = st_
        return dict(base, dsched=ds, stage=stg)
    N4a = pack(N4, {6: [0], 7: [4], 8: [7, 11], 9: [1], 10: [5, 8], 11: [12, 2], 12: [6, 9], 13: [13, 3], 14: [10]})
    N4b = pack(N4, {6: [0], 7: [4], 8: [11], 9: [1], 10: [5], 11: [12], 12: [2], 13: [6], 14: [3]})
    D1 = dict(Z, defer=1, late_at=({0: 999}, {3: 30, 5: 999}))
    D2 = dict(Z, defer=1, late_at=({0: 80, 1: 40, 2: 15, 4: 999}, {3: 30, 5: 999}))
    D3 = dict(Z, defer=1, late_at=({1: 40, 2: 20, 4: 20, 6: 20, 7: 20, 8: 999}, {3: 30, 5: 999}))
    D4 = dict(D2, cmode=1, crot=0)
    D5 = dict(D2, spare_order="pw")
    D6 = dict(Z, defer=1, late_at=({0: 90, 1: 999}, {1: 999}))
    D7 = dict(Z, defer=1, late_at=({0: 999}, {1: 999}))
    SQ = {("W", 1): -1, ("W", 2): -1, ("X", 1): 0, ("W", 3): 0, ("W", 4): 1, ("X", 2): 1, ("W", 5): 2, ("W", 6): 3, ("X", 3): 3, ("W", 7): 4, ("X", 4): 5, ("X", 5): 6}
    D8 = dict(D6, sched=SQ)
    D9 = dict(D6, pages=3)
    def keep(c): return dict(c, dsched={**c["dsched"], **{j: Z["dsched"][j] for j in range(7, 14)}})
    K1 = keep(reord(Z, [0, 4, 11, 10, 1, 5, 12, 9, 2, 6, 13, 3], 6, (9, 10, 11, 12, 13)))
    K2 = keep(reord(Z, [0, 4, 11, None, 1, 5, 12, None, 2, 6, 13, 3], 6, (11, 12, 13)))
    K3 = dict(K1, dsched={**K1["dsched"], 9: 0, 10: 1, 11: 1, 12: 2, 13: 2}, nobar2=(6,))
    K4 = dict(K1, eon2=16)
    K5 = dict(K1, hmax={-2: 6, -1: 12, 0: 18, 1: 28, 2: 36, 3: 40, 4: 56}, hper_at={1: 1, 4: 1, 5: 1})
    K6 = dict(K1, prio=(2, 0))
    ST7 = (7, 8, 9, 10, 11, 12, 13)
    L1 = keep(reord(Z, [0, 7, 4, 1, 8, 5, 2, 9, 6, 3, 10, 11, 12, 13], 6, ST7))
    L2 = keep(reord(Z, [0, 7, 4, 1, 8, 5, 2, 9, 6, 3, 10, 11, 12, 13], 5, ST7))
    L3 = keep(reord(Z, [0, None, 4, 1, None, 5, 2, 9, 6, 3, 10, 11], 6, (9, 10, 11)))
    L4 = keep(reord(Z, [0, 4, 1, 5, 2, 9, 6, 3, 10, 11, 12, 13], 6, (9, 10, 11, 12, 13)))
    L5 = dict(L1, pages=3)
    W1 = dict(L1, spare_order="pwmx")
    W2 = dict(W1, pages=4, cut0=4, tdist=4, bpages=1)
    W3 = dict(W2, tk=8, tb=3)
    W4 = dict(W3, o64=1, outsc="sc1")
    W5 = dict(W4, elast=3)
    W6 = dict(W5, es=21, dsched={**W5["dsched"], 10: 1, 11: 2, 12: 2, 13: 3})
    W7 = dict(W5, es=20, dsched={**W5["dsched"], 10: 1, 11: 2, 12: 2, 13: 3})
    W8 = dict(W5, estart=3)
    W9 = dict(W5, flag_pts={1: (13, 0), 3: (16, 0), 5: (0, 0, R), 6: (2, 0, R), 7: (2, 0, R)},
              ppts=[((-4, 0, R), (-3, 99, R)), ((-2, 99, R), (-1, 99, R)), ((1, 0, R), (1, 99, R)), ((3, 0, R), (3, 99, R)), ((3, 99, R), (4, 99, R))])
    def slots(base, sl, staged):
        ds = dict(base["dsched"]); stg = {}
        for st_, js in sl.items():
            for j in js:
                if j in staged: stg[j] = st_
                else: ds[j] = st_
        return dict(base, dsched=ds, stage=stg)
    BF = dict(W5, al=[2, 3, 4, 6, 7], bgroups=[(5, [5, 6, 7, 8, 9, 10, 11, 12])], dblk=[3, 4, 5, 9, 6, 7, 8, 2, 0, 1],
              sched={**W5["sched"], ("Y", 0): 2, ("Y", 1): 7}, eoff=45, prio=(1, 0), tag_pts=((12, 99), (13, 50)),
              flag_pts={1: (13, 50), 3: (15, 99), 5: (-1, 99, R), 6: (1, 0, R), 7: (2, 0, R)},
              ppts=[((-4, 99, R), (-3, 99, R)), ((-1, 0, R), (-1, 99, R)), ((0, 99, R), (1, 99, R)), ((2, 99, R), (3, 99, R)), ((3, 99, R), (4, 99, R))])
    BF1 = slots(BF, {6: [0], 8: [7], 9: [4], 10: [1], 11: [8], 12: [5], 13: [2], 14: [9, 6], 15: [3, 10], 16: [11, 12], 17: [13]}, (7, 8, 9, 10, 11, 12, 13))
    FIN = dict(W5, codepf=5)
    BG = dict(FIN, al=[2, 3, 4, 5, 7], bgroups=[(6, [8, 9, 10, 11, 12, 13, 14, 15])], dblk=[3, 4, 5, 9, 6, 7, 8, 2, 0, 1],
              sched={**FIN["sched"], ("Y", 0): 6, ("Y", 1): 9}, eoff=45, prio=(1, 0), tag_pts=((7, 99), (8, 0)), eon_at={16: 6, 17: 6},
              flag_pts={1: (13, 0), 3: (16, 0), 5: (1, 0, R), 6: (1, 99, R), 7: (2, 0, R)},
              ppts=[((-3, 99, R), (-2, 99, R)), ((-1, 50, R), (0, 99, R)), ((2, 0, R), (2, 99, R)), ((3, 0, R), (3, 99, R)), ((3, 99, R), (4, 99, R))],
              hmax={-1: 10, 0: 12, 1: 28, 2: 28, 3: 40, 4: 56}, hper_at={-1: 1, 1: 1, 3: 1, 4: 1, 5: 1})
    BG1 = slots(BG, {7: [0], 8: [4], 10: [1], 11: [5], 12: [2], 13: [6], 14: [10], 15: [11], 16: [3]}, (10, 11))
    BG1["dsched"].update({7: -2, 8: -1, 9: 0, 10: 1, 11: 2, 12: 2, 13: 3})
    BH = dict(FIN, al=[2, 3, 4, 6, 7], bgroups=[(5, [7, 8, 9, 10, 11, 12, 13, 14])], dblk=[3, 4, 5, 9, 6, 7, 8, 2, 0, 1],
              sched={**FIN["sched"], ("Y", 0): 5, ("Y", 1): 9}, eoff=60, prio=(1, 0), tag_pts=((6, 99), (7, 0)),
              flag_pts={1: (13, 0), 3: (16, 0), 5: (0, 0, R), 6: (1, 0, R), 7: (2, 0, R)},
              ppts=[((-4, 99, R), (-3, 99, R)), ((-1, 0, R), (-1, 99, R)), ((1, 0, R), (1, 99, R)), ((2, 99, R), (3, 99, R)), ((3, 99, R), (4, 99, R))])
    BH1 = slots(BH, {7: [0], 8: [4], 10: [1], 11: [5], 12: [2], 13: [6], 14: [10], 15: [], 16: [3]}, (10,))
    BH1["dsched"].update({7: -1, 8: -1, 9: 0, 10: 1, 11: 2, 12: 2, 13: 3})
    BI = dict(BG, tag_pts=((9, 0), (9, 99)),
              ppts=[((-3, 0, R), (-3, 99, R)), ((-1, 0, R), (-1, 99, R)), ((1, 99, R), (2, 99, R)), ((3, 0, R), (3, 99, R)), ((3, 99, R), (4, 99, R))],
              flag_pts={1: (13, 0), 3: (15, 99), 5: (1, 0, R), 6: (1, 99, R), 7: (2, 0, R)},
              hmax={-2: 5, -1: 12, 0: 20, 1: 28, 2: 28, 3: 40, 4: 56}, hper_at={3: 1, 4: 1, 5: 1}, eoff=30)
    BI1 = slots(BI, {5: [0], 7: [4], 8: [1], 10: [5], 11: [2], 12: [6], 13: [10], 14: [11], 16: [3]}, (10, 11))
    BI1["dsched"].update({7: -2, 8: -1, 9: 0, 10: 1, 11: 1, 12: 2, 13: 2})
    BI2 = slots(BI, {5: [0], 7: [4], 8: [1], 10: [5], 11: [2], 12: [6], 13: [7], 14: [8], 16: [3], 17: [12, 13]}, (7, 8, 12, 13))
    BI2["dsched"].update({7: -2, 8: -1, 9: 0, 10: 1, 11: 2, 12: 2, 13: 3})
    SA = {("W", 1): -1, ("X", 1): 0, ("W", 2): 0, ("W", 3): 1, ("W", 4): 1, ("X", 2): 2, ("W", 5): 2, ("W", 6): 3, ("X", 3): 4, ("W", 7): 4, ("X", 4): 5, ("X", 5): 6}
    SB = {("W", 1): -1, ("W", 2): -1, ("X", 1): -1, ("W", 3): 0, ("X", 2): 0, ("W", 4): 1, ("W", 5): 2, ("X", 3): 2, ("W", 6): 3, ("W", 7): 4, ("X", 4): 4, ("X", 5): 6}
    L6 = keep(reord(FIN, [0, 7, 4, 1, 8, 5, 2, 9, 6, 3, 10, 11, 12], 7, (7, 8, 9, 10, 11, 12)))
    Q = dict(FIN, eon=12, mix=0)
    Q1 = dict(Q, flag_pts={1: (12, 0), 3: (15, 0), 5: (-1, 0, R), 6: (1, 0, R), 7: (2, 0, R)},
              ppts=[((-5, 0, R), (-4, 99, R)), ((-3, 0, R), (-2, 99, R)), ((0, 99, R), (1, 99, R)), ((2, 99, R), (3, 99, R)), ((3, 99, R), (4, 99, R))])
    Q2 = dict(Q1, hmax={-2: 4, -1: 16, 0: 22, 1: 28, 2: 36, 3: 40, 4: 56}, hper_at={-1: 1, 4: 1, 5: 1})
    Q3 = slots(Q2, {6: [0], 7: [7], 8: [4, 1], 10: [8, 5], 11: [2], 12: [9, 6], 13: [3], 14: [10, 11], 16: [12, 13]}, ST7)
    Q4 = dict(Q3, flag_pts={1: (12, 0), 3: (15, 0), 5: (-2, 99, R), 6: (0, 99, R), 7: (2, 0, R)},
              ppts=[((-5, 0, R), (-4, 99, R)), ((-3, 0, R), (-2, 99, R)), ((0, 0, R), (0, 99, R)), ((2, 0, R), (2, 99, R)), ((3, 99, R), (4, 99, R))],
              hmax={-2: 4, -1: 16, 0: 22, 1: 30, 2: 38, 3: 48, 4: 48, 5: 56}, hper_at={-1: 1, 5: 1})
    Q5 = dict(Q3, estart=2)
    emit({"v56": FIN, "v57c": Q, "v58a": Q1, "v58b": Q2, "v58c": Q3, "v58d": Q4, "v58e": Q5})
```

```python
import sys, struct, math, re
from common import *
from gen3 import Stream, f2u, C0, C1, isize

BLK = 16384
FO = 8 << 20
FSZ = 897 * 128
HSTR = 112
WR = 0
ACC = [128, 144, 160, 176, 192]
POOL = 208; NPOOL = 6
TMP = 232
XA = 240
WA = 244
L16 = 245
CC0 = 246
DA = 176
VOUT, VEX = 249, 250
LT = 252
VX = 192
PR = 196
VW = 200
VD = 176
VF, VF2, TAG, FV = 180, 181, 182, 183
BDA = 184
BACC = [208, 224]
BHR = 128
PS1 = 184
HOLDR = VE_A = VE_B = -1000
T1, T2, T3, LANE, T4, T5 = TMP, TMP + 1, TMP + 2, TMP + 3, TMP + 4, TMP + 5
SX, SW, SD, SH, SF = 40, 44, 48, 52, 56
TB = 60
HS = 76

def build(cfg):
    SH1 = cfg.get("sh1", 32)
    MUL = 2 if SH1 == 16 else 1
    XROT = cfg.get("xrot", 0)
    SH2 = cfg.get("sh2", 32)
    MUL2 = 2 if SH2 == 16 else 1
    lite = cfg.get("lite", False)
    bgroups = cfg["bgroups"]
    SP = cfg["sp"]
    AL = cfg["al"]
    assert sorted(SP + AL + [g for g, _ in bgroups]) == list(range(8))
    NB = 4
    P2 = 8 + 2 * len(AL); LAST = P2 + 4; NST = LAST + 1
    trs = cfg['trs']; PW = P2 + cfg.get('pw', 1)
    NS = len(SP); NA = NS + 1; XS = 2 * NS
    NX = XS + 2 * len(AL)
    groups = {0: SP + AL, 1: [g for g, _ in bgroups]}
    accof = {g: i % NA for S_ in (0, 1) for i, g in enumerate(groups[S_])}
    A2 = [ACC[(len(groups[0])) % NA], ACC[(len(groups[0]) + 1) % NA]]
    RED = ACC[(len(groups[0]) + 2) % NA]
    ES = cfg.get("es", 99)
    XR = cfg.get("xring", 3)
    vstep = lambda t: t - 1 if t >= ES else t
    blk = {("X", j): j % XR for j in range(NX)}
    blk.update({("W", i): 4 + i % 4 for i in range(8)})
    blk.update({("Y", j): 8 + j % 2 for j in range(2 * len(bgroups))})
    blk.update(cfg.get("blk", {}))
    dorder = cfg.get("dblk", [3, 4, 5, 6, 7, 8, 9, (NX - 3) % 3, (NX - 2) % 3, (NX - 1) % 3])
    blk.update({("D", j): dorder[j] for j in range(14)})
    off = cfg.get("off", {})
    gend = {g: 8 for g in SP}
    gend.update({g: 10 + 2*n for n, g in enumerate(AL)})
    eowner = lambda g: 1 if (g in off or g in groups[1]) else 0
    baccof = {g: i % 3 for i, g in enumerate(sorted(off, key=lambda g: (gend[g], g)))}
    plan = {s: [] for s in range(-1, NST)}
    sched = dict(cfg["sched"])
    for j in range(XS, NX): sched.setdefault(("X", j), j - XS + 9 - XR)
    for j, s in cfg["dsched"].items(): sched[("D", j)] = s
    for k in "WXYD":
        for it in sorted(x for x in sched if x[0] == k): plan[sched[it]].append(it)
    def first_use(it):
        k, i = it
        if k == "W": return i
        if k == "X": return (i * 8 // XS) if i < XS else i - XS + 8
        if k == "Y": return min(bgroups[i // 2][1][4*(i % 2):4*(i % 2) + 4])
        return trs[i] if i < NB else P2 + (min(i, 10) - NB) // 2
    def last_use(it):
        k, i = it
        if k == "Y": return max(bgroups[i // 2][1][4*(i % 2):4*(i % 2) + 4])
        return first_use(it) + (1 if k == "X" and i < XS and NS == 2 else 0)
    nobar = set(P2 + x for x in cfg.get("nobar2", ())) | set(cfg.get("nobar", ()))
    def prev_bar(s):
        while s in nobar: s -= 1
        return s
    def next_bar(s):
        s += 1
        while s in nobar: s += 1
        return s
    occ = {0: ("X", 0), 4: ("W", 0)}
    lu = lambda it: (gend[it[1]] + 1 if it[0] == "E" else last_use(it))
    for s in range(-1, NST):
        for it in plan[s] + [("E", g) for g in off if gend[g] == s]:
            b = off[it[1]] if it[0] == "E" else blk[it]
            if b in occ: assert lu(occ[b]) < prev_bar(s), (it, s, occ[b])
            if it[0] == "E": assert s + 1 not in nobar
            else: assert next_bar(s) <= vstep(first_use(it)), it
            occ[b] = it
    assert set(sched) | {("X", 0), ("W", 0)} == set(blk), set(blk) - set(sched)
    XJ = max(j for j in range(6, 10) if first_use(("D", j)) < prev_bar(LAST))
    assert blk[("D", 5)] == blk[("D", 4)] + 1 and prev_bar(PW) > P2 and SH2 == 16
    PB = blk[("D", 4)] * BLK
    rel = lambda p: (p[0] + P2 if len(p) > 2 else p[0], p[1])
    flag_pts = {g: rel(p) for g, p in cfg["flag_pts"].items()}
    stage = cfg.get("stage", {})
    bend = max([max(bs) + 1 for _, bs in bgroups] + [-1])
    early = sorted(j for j in stage if stage[j] <= bend)
    assert len(early) <= 2
    sreg = {j: 144 + 16 * n for n, j in enumerate(early)}
    sreg.update({j: 16 * n for n, j in enumerate(sorted(j for j in stage if j not in early))})
    hmax = {P2 + s: v for s, v in cfg["hmax"].items()}
    pg = cfg["pgroups"]

    touch = {"n": 0}
    def wave(isB, spare, var=0):
        S = Stream(cfg.get("align", 0))
        sfx = ("b" if isB else "a") + ("s" if spare else "r") + str(var)
        SET = 1 if isB else 0
        VE = VE_B if isB else VE_A
        VF, TAG = (180, 182) if isB else (200, 201)
        issued = []
        cut = [None]
        if not spare:
            k = "W" if isB else "X"
            for q in range(4): S.add("", vm=(k, 0, q))
            issued.append((k, 0))
        else:
            S(f"v_and_b32 v{LANE}, 63, v0")
            S("s_waitcnt lgkmcnt(0)")
        S("s_lshl_b32 s33, s21, 12")
        if isB and not spare and cfg.get("wfast", 0):
            for it in plan[-1]:
                if it[0] != "W": continue
                S(f"s_add_u32 m0, s33, {blk[it]*BLK}\ns_bfe_u32 s32, s36, {0x30000 + 4*it[1]:#x}\ns_mul_i32 s32, s32, {64*3584}\ns_add_u32 s32, s32, s37")
                for q in range(4): S.add(f"buffer_load_dwordx4 v{VX+q}, s[{SX}:{SX+3}], s32 offen offset:{1024*q} lds", vm=(it[0], it[1], q))
                issued.append(it)
        S(f"v_lshlrev_b32 v{L16}, 4, v{LANE}")
        S("s_lshr_b32 s23, s21, 1\ns_and_b32 s22, s21, 1")
        if cfg.get("qx", 1):
            S("s_add_u32 s34, s34, s14\ns_sub_u32 s32, s34, 7\ns_min_u32 s34, s34, s32")
        if cfg.get("codepf", True) == 2 and spare:
            S(f"s_getpc_b64 s[{SH}:{SH+1}]")
            S(f"L_pc{sfx}:")
            S(f"s_lshl3_add_u32 s32, s35, s20\ns_min_u32 s32, s32, ((L_codeend-{KNAME})>>10)-1\ns_lshl_b32 s32, s32, 10")
            S(f"s_sub_u32 s{SH}, s{SH}, L_pc{sfx}-{KNAME}")
            S(f"s_subb_u32 s{SH+1}, s{SH+1}, 0")
            S(f"s_add_u32 s{SH}, s{SH}, s32\ns_addc_u32 s{SH+1}, s{SH+1}, 0")
            S(f"v_mov_b32 v{T2}, s{SH+1}")
            S(f"v_add_co_u32 v{T1}, vcc, s{SH}, v{L16}")
            S("s_nop 1")
            S(f"v_addc_co_u32 v{T2}, vcc, 0, v{T2}, vcc")
            S.add(f"global_load_dwordx4 v[204:207], v[{T1}:{T2}], off", vm="pf")
        if cfg.get("codepf", True) == 3 and not isB and not spare:
            S(f"s_lshl2_add_u32 s32, s15, s21\ns_cmp_lt_u32 s32, (L_codeend-{KNAME})>>10\ns_cbranch_scc0 L_nopf")
            S(f"~s_getpc_b64 s[{SH}:{SH+1}]")
            S(f"L_pc{sfx}:")
            S(f"~s_lshl_b32 s32, s32, 10\n~s_sub_u32 s{SH}, s{SH}, L_pc{sfx}-{KNAME}\n~s_subb_u32 s{SH+1}, s{SH+1}, 0")
            S(f"~s_add_u32 s{SH}, s{SH}, s32\n~s_addc_u32 s{SH+1}, s{SH+1}, 0\n~v_mov_b32 v{T2}, s{SH+1}")
            S(f"~v_add_co_u32 v{T1}, vcc, s{SH}, v{L16}\n~s_nop 1\n~v_addc_co_u32 v{T2}, vcc, 0, v{T2}, vcc")
            S(f"~global_load_dwordx4 v[{PR}:{PR+3}], v[{T1}:{T2}], off")
            S("L_nopf:")
        if cfg.get("codepf", True) is True and not isB:
            S(f"s_getpc_b64 s[{SH}:{SH+1}]")
            S(f"L_pc{sfx}:")
            S(f"s_lshl2_add_u32 s32, s15, s21\ns_min_u32 s32, s32, ((L_codeend-{KNAME})>>8)-1\ns_lshl_b32 s32, s32, 8")
            S(f"s_sub_u32 s{SH}, s{SH}, L_pc{sfx}-{KNAME}")
            S(f"s_subb_u32 s{SH+1}, s{SH+1}, 0")
            S(f"s_add_u32 s{SH}, s{SH}, s32\ns_addc_u32 s{SH+1}, s{SH+1}, 0")
            S(f"v_mov_b32 v{T2}, s{SH+1}")
            S(f"v_lshlrev_b32 v{T1}, 2, v{LANE}")
            S(f"v_add_co_u32 v{T1}, vcc, s{SH}, v{T1}")
            S("s_nop 1")
            S(f"v_addc_co_u32 v{T2}, vcc, 0, v{T2}, vcc")
            S.add(f"global_load_dword v{PR}, v[{T1}:{T2}], off", vm="pf")
        def da16(DA, base):
            S(f"v_lshrrev_b32 v{T1}, 4, v{LANE}\nv_lshlrev_b32 v{T1}, 3, v{T1}")
            S(f"v_bfe_u32 v{T2}, v{LANE}, 2, 2")
            S(f"v_add_u32 v{T1}, v{T1}, v{T2}")
            S(f"v_lshlrev_b32 v{T1}, 7, v{T1}")
            S(f"v_bfe_u32 v{T2}, v{LANE}, 3, 1")
            S(f"v_lshl_add_u32 v{T1}, v{T2}, 6, v{T1}")
            S(f"v_bfe_u32 v{T2}, v{LANE}, 4, 1")
            S(f"v_lshl_add_u32 v{T1}, v{T2}, 5, v{T1}")
            S(f"v_and_b32 v{T2}, 3, v{LANE}")
            S(f"v_lshl_add_u32 v{T1}, v{T2}, 3, v{T1}")
            S(f"s_lshl_b32 s32, s23, 13\ns_add_u32 s32, s32, {base}")
            S(f"v_add_u32 v{DA+2}, s32, v{T1}")
            S(f"s_lshl_b32 s32, s23, 6\nv_xor_b32 v{DA+2}, s32, v{DA+2}")
            S(f"v_xor_b32 v{DA+3}, 32, v{DA+2}\nv_xor_b32 v{DA}, 64, v{DA+2}\nv_xor_b32 v{DA+1}, 64, v{DA+3}")
            S(f"v_lshrrev_b32 v{T1}, 4, v{LANE}\nv_lshlrev_b32 v{T1}, 9, v{T1}\nv_and_b32 v{T2}, 0xf0, v{L16}\nv_add_u32 v{DA+4}, v{T1}, v{T2}")
        gexp = lambda p, r: (f"s_lshl1_add_u32 s{r}, s84, {p}\ns_and_b32 s{r}, s{r}, 7" if p < 6 else f"s_and_b32 s{r}, s{p-6}, 7")
        def item_ops(it):
            k, i = it
            su = ""
            if k == "X" and i < XS and NS == 4:
                su = f"s_bfe_u32 s32, s36, {0x30000 + 4*i:#x}\ns_lshl_b32 s32, s32, 7\ns_add_u32 s32, s32, s3"
                v, srd, so = VX, SX, 32
            elif k == "X" and i < XS:
                su = f"s_bfe_u32 s32, s87, {0x30000 + 8*i:#x}\ns_lshl_b32 s32, s32, 7\ns_add_u32 s32, s32, s3"
                v, srd, so = VX, SX, 32
            elif k in "XY":
                p = AL[(i - XS) // 2] if k == "X" else bgroups[i // 2][0]
                su = gexp(p, 32) + f"\ns_lshl_b32 s32, s32, 15\ns_add_u32 s32, s32, s{93 + i % 2}"
                v, srd, so = VX, SX, 32
            elif k == "W":
                su = f"s_bfe_u32 s32, s36, {0x30000 + 4*i:#x}\ns_mul_i32 s32, s32, {64*3584}\ns_add_u32 s32, s32, s38"
                v, srd, so = VW, SW, 32
            else:
                su = "s_nop 0"
                v, srd, so = VD, SD, TB + i
            su = f"s_add_u32 m0, s33, {blk[it]*BLK}\n" + su
            return su, [(f"buffer_load_dwordx4 v{v+q}, s[{srd}:{srd+3}], s{so} offen offset:{1024*q} lds", (k, i, q)) for q in range(4)]
        def item(it):
            su, dm = item_ops(it)
            S(su)
            for t, tag in dm: S.add(t, vm=tag)
            issued.append(it)
        if isB or not spare:
            S(f"s_add_u32 s{SF}, s30, {FO}\ns_addc_u32 s{SF+1}, s31, 0\ns_mov_b32 s{SF+2}, {FSZ}\ns_mov_b32 s{SF+3}, 0x20000")
            S(f"v_lshlrev_b32 v{VF}, 20, v{LANE}")
            S("s_mov_b32 s74, s28\ns_mov_b32 s75, s29")
        if spare and isB:
            S("s_cmp_eq_u32 s2, 224\ns_cselect_b32 s32, s21, 0\ns_cmp_eq_u32 s32, 1")
            S("s_cbranch_scc0 L_notag")
            S("s_mov_b32 s88, s28\ns_mov_b32 s89, s29\ns_mov_b32 s90, 256\ns_mov_b32 s91, 0x20000")
            S(f"s_mov_b32 s32, {FSZ-128}")
            S(f"buffer_load_dword v{PR}, v{VF}, s[{SF}:{SF+3}], s32 offen sc1")
            S(f"v_mov_b32 v{PR+1}, 1")
            S("s_waitcnt vmcnt(0)")
            S(f"v_add_u32 v{PR}, 1, v{PR}")
            S(f"buffer_store_dwordx2 v[{PR}:{PR+1}], v{VF}, s[88:91], 0 offen sc1")
            S(f"buffer_store_dword v{PR}, v{VF}, s[{SF}:{SF+3}], s32 offen sc1")
            S("L_notag:")
            S("s_barrier")
        if not spare:
            S(("s_bfe_u32 s32, s15, 0x10002" if XROT else "s_bfe_u32 s32, s17, 0x10002") + "\ns_lshl1_add_u32 s0, s84, s32\ns_add_u32 s0, s0, 6\ns_xor_b32 s1, s0, 1")
            for hf in range(2):
                S(f"s_lshl2_add_u32 s32, s21, {16*hf}\ns_lshr_b32 s32, s36, s32\ns_and_b32 s32, s32, 7\ns_lshl_b32 s32, s32, 7\ns_add_u32 s{93+hf}, s32, s39")
            S("s_lshl_b32 s32, s23, 2\ns_lshr_b32 s87, s36, s32")
            if isB:
                for q in range(4): S(f"v_mov_b32 v{VW+q}, v{VX+q}")
                S(f"s_mov_b32 s{SW}, s{SX}\ns_mov_b32 s{SW+1}, s{SX+1}\ns_mov_b32 s{SW+2}, 1835008\ns_mov_b32 s{SW+3}, 0x20000")
                S("s_mov_b32 s38, s37")
                S(f"s_mov_b32 s{SX}, s4\ns_mov_b32 s{SX+1}, s5\ns_mov_b32 s{SX+2}, 0x200000")
                S(f"v_lshrrev_b32 v{T1}, 3, v{LANE}\nv_lshrrev_b32 v{T2}, 4, v{LANE}")
                S(f"v_xor_b32 v{T3}, v{T2}, v{LANE}\nv_and_b32 v{T3}, 7, v{T3}\nv_lshlrev_b32 v{T1}, 10, v{T1}")
                S(f"v_lshl_add_u32 v{VX}, v{T3}, 4, v{T1}")
                S(f"v_xor_b32 v{VX+1}, 64, v{VX}")
                S(f"v_add_u32 v{VX+1}, {7*1024}, v{VX+1}")
                S(f"v_add_u32 v{VX+2}, {14*1024}, v{VX}")
                S(f"v_add_u32 v{VX+3}, {14*1024}, v{VX+1}")
            if SH1 == 32:
                S(f"v_and_b32 v{T1}, 31, v{LANE}")
                S(f"v_bfe_u32 v{T2}, v{LANE}, 1, 3")
                S(f"v_lshrrev_b32 v{T3}, 5, v{LANE}")
                S(f"v_xor_b32 v{T2}, v{T2}, v{T3}")
                S(f"v_lshlrev_b32 v{T1}, 7, v{T1}")
                if isB: S(f"v_add_u32 v{T1}, {8*BLK:#x}, v{T1}")
                for ks in range(4):
                    S(f"v_xor_b32 v{T3}, {2*ks}, v{T2}")
                    S(f"v_lshl_add_u32 v{XA+ks}, v{T3}, 4, v{T1}")
                S(f"v_lshrrev_b32 v{T1}, 5, v{LANE}")
                S(f"v_lshlrev_b32 v{T1}, 3, v{T1}")
                S(f"v_bfe_u32 v{T2}, v{LANE}, 2, 2")
                S(f"v_add_u32 v{T1}, v{T1}, v{T2}")
                S(f"v_lshlrev_b32 v{T1}, 7, v{T1}")
                S(f"v_bfe_u32 v{T2}, v{LANE}, 4, 1")
                S(f"v_lshl_add_u32 v{T1}, v{T2}, 13, v{T1}")
                S(f"v_bfe_u32 v{T3}, v{LANE}, 3, 1")
                S(f"v_lshl_add_u32 v{T2}, v{T3}, 1, v{T2}")
                S(f"v_xor_b32 v{T2}, s21, v{T2}")
                S(f"v_lshl_add_u32 v{T1}, v{T2}, 5, v{T1}")
                S(f"v_and_b32 v{T2}, 1, v{LANE}")
                S(f"v_lshl_add_u32 v{T1}, v{T2}, 4, v{T1}")
                S(f"v_bfe_u32 v{T2}, v{LANE}, 1, 1")
                S(f"v_lshl_add_u32 v{T1}, v{T2}, 3, v{T1}")
                S(f"v_add_u32 v{WA}, 0x10000, v{T1}")
            else:
                S(f"v_and_b32 v{T1}, 15, v{LANE}")
                S(f"v_bfe_u32 v{T2}, v{LANE}, 1, 3")
                S(f"v_lshrrev_b32 v{T3}, 4, v{LANE}")
                S(f"v_xor_b32 v{T2}, v{T2}, v{T3}")
                S(f"v_lshlrev_b32 v{T1}, 7, v{T1}")
                if isB: S(f"v_add_u32 v{T1}, {8*BLK:#x}, v{T1}")
                S(f"v_lshl_add_u32 v{XA}, v{T2}, 4, v{T1}")
                S(f"v_xor_b32 v{XA+1}, 64, v{XA}")
                S(f"v_lshlrev_b32 v{T1}, 3, v{T3}")
                S(f"v_bfe_u32 v{T2}, v{LANE}, 2, 2")
                S(f"v_add_u32 v{T1}, v{T1}, v{T2}")
                S(f"v_lshlrev_b32 v{T1}, 7, v{T1}")
                S(f"v_bfe_u32 v{T2}, v{LANE}, 4, 1")
                S(f"v_bfe_u32 v{T3}, v{LANE}, 3, 1")
                S(f"v_lshl_add_u32 v{T2}, v{T3}, 1, v{T2}")
                S(f"v_xor_b32 v{T2}, s21, v{T2}")
                S(f"v_lshl_add_u32 v{T1}, v{T2}, 5, v{T1}")
                S(f"v_and_b32 v{T2}, 3, v{LANE}")
                S(f"v_lshl_add_u32 v{T1}, v{T2}, 3, v{T1}")
                S(f"v_add_u32 v{WA}, 0x10000, v{T1}")
            for it in plan[-1]:
                if (it[0] == "W") == isB and it not in issued: item(it)
            if cfg.get("defer", 1): cut[0] = len(S.ins)
            S(f"s_mov_b32 s32, {f2u(C0):#x}\ns_mov_b32 s12, {f2u(C1):#x}")
            S(f"v_mov_b32 v{CC0}, s32")
            if cfg.get("pk", 0): S("v_mov_b32 v242, s32")
            S(f"s_lshl2_add_u32 s13, s17, s21\ns_mul_i32 s32, s16, {8*HSTR}\ns_add_u32 s13, s13, s32")
            if off: S(f"v_add_u32 v{VE}, s33, v{L16}\nv_add_u32 v{VE+1}, 0x10000, v{VE}\nv_add_u32 v{VE+2}, 0x20000, v{VE}")
            for g in range(8):
                if eowner(g) != SET: continue
                r = HS + g
                S(gexp(g, r) + f"\ns_mul_i32 s{r}, s{r}, {HSTR}\ns_add_u32 s{r}, s{r}, s13\ns_lshl_b32 s{r}, s{r}, 10")
            S("s_mul_i32 s92, s16, 14336\ns_lshl_b32 s32, s17, 7\ns_add_u32 s92, s92, s32\ns_lshl2_add_u32 s92, s21, s92")
            if isB:
                S(f"v_lshrrev_b32 v{T1}, 1, v{LANE}\nv_lshl_add_u32 v{VF2}, v{T1}, 20, v{L16}")
        if not isB and not spare:
            for n_, ev in enumerate(sorted(set(cfg.get("aflag", {}).values()))):
                r = 4 + n_
                S(f"s_add_u32 s{r}, s84, {ev//2}\ns_and_b32 s{r}, s{r}, 3\ns_mul_i32 s{r}, s{r}, 3584\ns_add_u32 s{r}, s{r}, s92")
                if ev >= 6: S(f"s_and_b32 s32, s{ev-6}, 1\ns_lshl4_add_u32 s{r}, s32, s{r}")
        if isB or spare:
            S(f"s_mov_b32 s{SD}, s10\ns_mov_b32 s{SD+1}, s11\ns_mov_b32 s{SD+2}, {0 if cfg.get('nod') else 1835008}\ns_mov_b32 s{SD+3}, 0x20000")
        if isB:
            S(f"v_bfe_u32 v{T3}, v{LANE}, 4, 1\nv_lshlrev_b32 v{T3}, 2, v{T3}\nv_xor_b32 v{T3}, v{T3}, v{LANE}\nv_and_b32 v{T3}, 7, v{T3}")
            S(f"v_lshrrev_b32 v{T1}, 3, v{LANE}\nv_lshlrev_b32 v{T1}, 10, v{T1}")
            S(f"v_lshl_add_u32 v{VD}, v{T3}, 4, v{T1}")
            if SH2 == 32:
                for q in range(1, 4): S(f"v_add_u32 v{VD+q}, {q*7*1024}, v{VD}")
            else:
                S(f"v_xor_b32 v{VD+1}, 32, v{VD}\nv_add_u32 v{VD+1}, {7*1024}, v{VD+1}\nv_add_u32 v{VD+2}, {14*1024}, v{VD}\nv_add_u32 v{VD+3}, {14*1024}, v{VD+1}")
        S(f"v_and_b32 v{T1}, 15, v{LANE}")
        S("s_lshl_b32 s32, s22, 1\ns_xor_b32 s32, s32, 2")
        S(f"v_subrev_u32 v{T2}, 10, v{T1}\nv_xor_b32 v{T2}, s32, v{T2}\nv_add_u32 v{T2}, 10, v{T2}")
        S(f"v_cmp_le_u32 vcc, 26, v{LANE}")
        S("s_nop 1")
        S(f"v_cndmask_b32 v{T1}, v{T1}, v{T2}, vcc")
        S(f"v_lshl_add_u32 v{T1}, v{T1}, 1, s23")
        S(f"v_mul_u32_u24 v{T2}, 37, v{T1}\nv_lshrrev_b32 v{T2}, 8, v{T2}")
        S(f"v_mul_u32_u24 v{T3}, 7, v{T2}\nv_sub_u32 v{T3}, v{T1}, v{T3}")
        S(f"v_add_u32 v{T3}, s34, v{T3}")
        S(f"v_subrev_u32 v{T4}, 7, v{T3}\nv_min_u32 v{T4}, v{T3}, v{T4}")
        S(f"v_mul_u32_u24 v{T5}, 86, v{T3}\nv_lshrrev_b32 v{T5}, 8, v{T5}\nv_mul_u32_u24 v{T5}, 3, v{T5}\nv_sub_u32 v{T5}, v{T3}, v{T5}")
        S(f"v_lshl_add_u32 v{T5}, v{T5}, 1, 1")
        S(f"v_cmp_le_u32 vcc, 21, v{T1}")
        S(f"v_and_b32 v{T3}, 3, v{T3}\nv_lshlrev_b32 v{T3}, 1, v{T3}")
        S(f"v_cndmask_b32 v{T4}, v{T4}, v{T5}, vcc")
        S(f"v_cmp_le_u32 vcc, 24, v{T1}")
        S(f"v_sub_u32 v{T2}, s35, v{T2}\nv_and_b32 v{T2}, 3, v{T2}")
        S(f"v_cndmask_b32 v{T4}, v{T4}, v{T3}, vcc")
        S(f"v_mad_u32_u24 v{T1}, v{T2}, 7, v{T4}" if XROT else f"v_lshl_add_u32 v{T1}, v{T4}, 2, v{T2}")
        S("s_lshl_b32 s95, s19, 7")
        if isB:
            S("s_lshl_b32 s32, s22, 15\ns_add_u32 s32, s32, s95")
            S(f"v_lshl_add_u32 v{T2}, v{T1}, 16, s32")
            S("s_mul_i32 s32, s18, 3584\ns_lshl4_add_u32 s32, s22, s32")
            S(f"v_lshl_add_u32 v{FV}, v{T1}, 7, s32")
            for j in range(14): S(f"v_readlane_b32 s{TB+j}, v{T2}, {j}")
            S(f"s_lshl1_add_u32 s32, s18, s22\ns_mul_i32 s32, s32, {HSTR*1024}")
            S(f"v_lshl_add_u32 v{T2}, v{T1}, 12, s32\ns_nop 0")
            for j in range(NB): S(f"v_readlane_b32 s{HS+j}, v{T2}, {j}")
            da16(BDA, 0)
            S(f"v_lshl_add_u32 v{BDA+5}, s33, 1, v{L16}\nv_add_u32 v{BDA+5}, {PB:#x}, v{BDA+5}")
        else:
            S(f"s_lshl1_add_u32 s32, s18, s22\ns_mul_i32 s32, s32, {HSTR*1024}")
            if cfg.get("hfake"):
                S(f"s_lshl1_add_u32 s32, s35, s22\ns_mul_i32 s32, s32, {HSTR*1024}\ns_and_b32 s84, s14, 1\ns_lshl_b32 s84, s84, 20\ns_add_u32 s32, s32, s84")
                S("s_mov_b32 s84, s4\ns_mov_b32 s85, s5\ns_mov_b32 s86, 0x200000\ns_mov_b32 s87, 0x20000")
            S(f"v_lshl_add_u32 v{T2}, v{T1}, 12, s32")
            S(f"v_lshrrev_b32 v{T1}, 5, v{LANE}")
            for j in range(14): S(f"v_readlane_b32 s{TB+j}, v{T2}, {16+j}")
            if SH2 == 32:
                S(f"v_lshlrev_b32 v{T1}, 3, v{T1}")
                S(f"v_bfe_u32 v{T2}, v{LANE}, 2, 2")
                S(f"v_add_u32 v{T1}, v{T1}, v{T2}")
                S(f"v_lshlrev_b32 v{T1}, 7, v{T1}")
                S(f"v_bfe_u32 v{T2}, v{LANE}, 3, 1")
                S(f"v_lshl_add_u32 v{T1}, v{T2}, 6, v{T1}")
                S(f"v_bfe_u32 v{T2}, v{LANE}, 4, 1")
                S(f"v_lshl_add_u32 v{T1}, v{T2}, 5, v{T1}")
                S(f"v_and_b32 v{T2}, 1, v{LANE}")
                S(f"v_lshl_add_u32 v{T1}, v{T2}, 4, v{T1}")
                S(f"v_bfe_u32 v{T2}, v{LANE}, 1, 1")
                S(f"v_lshl_add_u32 v{T1}, v{T2}, 3, v{T1}")
                S(f"s_lshl_b32 s32, s23, 13\ns_add_u32 s32, s32, {blk[('D', 0)]*BLK}")
                S(f"v_add_u32 v{DA+1}, s32, v{T1}")
                S(f"s_lshl_b32 s32, s23, 6\nv_xor_b32 v{DA+1}, s32, v{DA+1}")
                S(f"v_xor_b32 v{DA}, 64, v{DA+1}")
                S("s_cmp_eq_u32 s22, 1")
                o1 = [blk[("D", 9)]] + [blk[("D", 10 + i)] for i in range(4)]
                o0 = [blk[("D", 9)]] + [blk[("D", 10 + (i ^ 2))] for i in range(4)]
                for i in range(4): S(f"s_cselect_b32 s{88+i}, {o1[i+1]-o1[i]}, {o0[i+1]-o0[i]}")
                for i in range(4): S(f"s_lshl_b32 s{88+i}, s{88+i}, 14")
            else:
                da16(DA, blk[("D", NB)] * BLK)
                S(f"v_lshl_add_u32 v{DA+5}, s33, 1, v{L16}\nv_add_u32 v{DA+5}, {PB:#x}, v{DA+5}\nv_xor_b32 v{DA+6}, 0x4000, v{DA+5}")
                S("s_cmp_eq_u32 s22, 1")
                o1 = [blk[("D", 9)]] + [blk[("D", 10 + i)] for i in range(4)]
                o0 = [blk[("D", 9)]] + [blk[("D", 10 + (i ^ 2))] for i in range(4)]
                for i in range(4): S(f"s_cselect_b32 s{88+i}, {o1[i+1]-o1[i]}, {o0[i+1]-o0[i]}")
                for i in range(4): S(f"s_lshl_b32 s{88+i}, s{88+i}, 14")
            S(f"s_mov_b32 s{SW}, s26\ns_mov_b32 s{SW+1}, s27\ns_mov_b32 s{SW+2}, 0x200000\ns_mov_b32 s{SW+3}, 0x20000")
            if cfg.get("o64", 0):
                S(f"v_and_b32 v{T1}, 15, v{LANE}\nv_lshlrev_b32 v{T1}, 10, v{T1}\nv_lshrrev_b32 v{T2}, 5, v{LANE}\nv_lshl_add_u32 v{T1}, v{T2}, 4, v{T1}\nv_bfe_u32 v{T2}, v{LANE}, 4, 1\nv_lshl_add_u32 v{VOUT}, v{T2}, 5, v{T1}")
            else:
                S(f"v_and_b32 v{T1}, 31, v{LANE}\nv_lshlrev_b32 v{T1}, 10, v{T1}\nv_lshrrev_b32 v{T2}, 5, v{LANE}\nv_lshl_add_u32 v{VOUT}, v{T2}, 4, v{T1}")
            S("s_lshl_b32 s32, s18, 16\ns_add_u32 s95, s95, s32\ns_lshl_b32 s32, s22, 15\ns_add_u32 s95, s95, s32\ns_lshl_b32 s32, s23, 6\ns_add_u32 s95, s95, s32")
            S(f"s_add_u32 s32, s33, {blk[('D', XJ)]*BLK}\nv_add_u32 v{VEX}, s32, v{L16}\nv_xor_b32 v{VEX+1}, 0x2000, v{VEX}")
        S(f"s_mov_b32 s{SH}, s30\ns_mov_b32 s{SH+1}, s31\ns_mov_b32 s{SH+2}, {0 if cfg.get('noh') else 64*HSTR*1024}\ns_mov_b32 s{SH+3}, 0x20000")
        lateq = []
        if cut[0] is not None:
            lateq = [re.sub(r"\bs32\b", "s85", i["t"]) for i in S.ins[cut[0]:]]
            del S.ins[cut[0]:]
        def late(n):
            while lateq and n > 0:
                S(lateq.pop(0)); n -= 1
            while lateq and lateq[0].startswith(("s_cselect", "s_addc", "v_cndmask", "s_nop", "v_readlane")):
                S(lateq.pop(0))
        if lite and not isB: S(f"v_mov_b32 v{LT}, 0\nv_mov_b32 v{LT+1}, 0\nv_mov_b32 v{LT+2}, 0")
        myplan = {s: [] for s in range(NST)}
        def c3x():
            S(f"s_mov_b32 s{SX}, s4\ns_mov_b32 s{SX+1}, s5\ns_mov_b32 s{SX+2}, 0x200000\ns_mov_b32 s{SX+3}, 0x20000")
            S(f"v_lshrrev_b32 v{T1}, 3, v{LANE}\nv_lshlrev_b32 v{T1}, 10, v{T1}\nv_and_b32 v{T2}, 0x70, v{L16}\nv_add_u32 v{T1}, v{T1}, v{T2}")
            S("s_lshl2_add_u32 s32, s16, s21\ns_lshl_b32 s32, s32, 16\ns_add_u32 s32, s32, 384")
            for i in range(8):
                S.add(f"buffer_load_dwordx4 v[{64+4*i}:{67+4*i}], v{T1}, s[{SX}:{SX+3}], s32 offen", vm=("c3x", i))
                S("s_add_u32 s32, s32, 8192")
        def c3w():
            S("s_cmp_eq_u32 s22, 0")
            S(f"s_cselect_b32 s{SX}, s6, s8\ns_cselect_b32 s{SX+1}, s7, s9\ns_mov_b32 s{SX+2}, 1835008\ns_mov_b32 s{SX+3}, 0x20000")
            S(f"v_min_u32 v{T1}, 880, v{L16}")
            S("s_lshl1_add_u32 s32, s35, s23\ns_lshl_b32 s32, s32, 3\ns_add_u32 s32, s32, 192\ns_mul_i32 s32, s32, 3584\ns_lshr_b32 s96, s14, 1\ns_mul_i32 s96, s96, 896\ns_add_u32 s32, s32, s96")
            for i in range(8):
                S.add(f"buffer_load_dwordx4 v[{128+4*i}:{131+4*i}], v{T1}, s[{SX}:{SX+3}], s32 offen", vm=("c3w", i))
                S("s_add_u32 s32, s32, 3584")
        def c3p():
            S(f"s_mov_b32 s{SX}, s4\ns_mov_b32 s{SX+1}, s5\ns_mov_b32 s{SX+2}, 0x200000\ns_mov_b32 s{SX+3}, 0x20000")
            S(f"v_lshrrev_b32 v{T1}, 3, v{LANE}\nv_lshlrev_b32 v{T1}, 10, v{T1}\nv_and_b32 v{T2}, 0x70, v{L16}\nv_add_u32 v{T1}, v{T1}, v{T2}")
            for pp in range(NS // 2):
                S(f"s_add_u32 s32, s84, {pp}\ns_and_b32 s32, s32, 3\ns_lshl2_add_u32 s32, s16, s32\ns_lshl2_add_u32 s32, s32, s21\ns_lshl_b32 s32, s32, 14\ns_add_u32 s32, s32, 384")
                for i in range(2):
                    S.add(f"buffer_load_dwordx4 v[{160+8*pp+4*i}:{163+8*pp+4*i}], v{T1}, s[{SX}:{SX+3}], s32 offen", vm=("c3p", pp, i))
                    S("s_add_u32 s32, s32, 8192")
        def xpair(n_):
            S(f"s_mov_b32 s{SX}, s4\ns_mov_b32 s{SX+1}, s5\ns_mov_b32 s{SX+2}, 0x200000\ns_mov_b32 s{SX+3}, 0x20000")
            S(f"s_add_u32 s32, s84, {n_}\ns_and_b32 s32, s32, 3\ns_lshl2_add_u32 s32, s16, s32\ns_lshl_b32 s32, s32, 16\ns_lshl_b32 s96, s21, 12\ns_add_u32 s32, s32, s96")
            for i in range(16):
                if i and i % 4 == 0: S("s_add_u32 s32, s32, 16384")
                S.add(f"buffer_load_dwordx4 v[{64+4*i}:{67+4*i}], v{L16}, s[{SX}:{SX+3}], s32 offen offset:{(i%4)*1024}", vm=("xp", n_, i), need_vm=([("xp", n_-1, i)] if str(n_-1) in cfg["spare_order"] else []))
        def warm():
            S("s_sub_u32 s32, s2, 224\ns_lshl2_add_u32 s32, s32, s21\ns_mul_i32 s32, s32, 14336")
            for i in range(14):
                if i and i % 4 == 0: S("s_add_u32 s32, s32, 4096")
                S.add(f"buffer_load_dwordx4 v[{4*i}:{4*i+3}], v{L16}, s[{SD}:{SD+3}], s32 offen offset:{(i%4)*1024}", vm=("wm", i))
        if spare:
            if isB:
                S("s_barrier")
                save = dict(blk)
                for j in range(NB): blk[("D", j)] = blk[("D", 10 + j)]
                for j in range(10): item(("D", j))
                blk.update(save)
            else:
                S("s_barrier")
                for f in cfg.get("spare_order", "wxm"): {"w": c3w, "x": c3x, "m": warm, "p": c3p, "1": lambda: xpair(1), "2": lambda: xpair(2), "3": lambda: xpair(3), "b": lambda: S("s_barrier"), "z": lambda: S.add("", need_vm=["ALL"])}[f]()
                S.add("" if "b" in cfg.get("spare_order", "wxm") else "s_barrier", need_vm=["ALL"])
        elif isB:
            myplan = {s: plan[s] for s in range(NST)}

        M = []
        pooln = [0]
        def pool():
            r = POOL + 4 * (pooln[0] % NPOOL); pooln[0] += 1; return r
        def wreads(i):
            wo = (blk[("W", i)] - 4) * BLK
            out = {}
            for sl in range(4):
                slot = 4*i + sl; wreg = WR + 4*slot
                off = wo + sl*2048 if SH1 == 32 else wo + (sl % 2)*8192 + (sl // 2)*4096
                out[slot] = [(("w", slot, j), f"ds_read_b64_tr_b16 v[{wreg+2*j}:{wreg+2*j+1}], v{WA} offset:{off + j*512}") for j in range(2)]
            return out
        def p1(step, i, g, xo, readw):
            a = ACC[accof[g]]
            wr = wreads(i) if readw else {}
            lastg = (g == groups[SET][-1])
            res = []
            if SH1 == 32:
                for ks in range(4):
                    slot = 4*i + ks
                    res.append([dict(step=step, d=a, n=16, A=WR + 4*slot, rd=wr.get(slot, []), xrd=(("x", g, slot), f"v{XA+ks} offset:{xo}"),
                                     first=(slot == 0), last=(slot == 31), g=g, wdead=(slot if lastg else None), slot=slot)])
            else:
                for k2 in range(2):
                    sub_l = []
                    for sub in range(2):
                        for mat in range(2):
                            slot = 4*i + 2*k2 + mat
                            sub_l.append(dict(step=step, d=a + 8*mat + 4*sub, n=4, A=WR + 4*slot, rd=(wr.get(slot, []) if sub == 0 else []),
                                              xrd=((("x", g, i, k2, sub), f"v{XA+k2} offset:{xo + sub*2048}") if mat == 0 else None),
                                              first=(i == 0 and k2 == 0), last=(i == 7 and k2 == 1 and sub == 1 and mat == 1), g=g,
                                              wdead=(slot if lastg and sub == 1 else None), slot=slot))
                    res.append(sub_l)
            return res
        def push(lst):
            for m in lst:
                if m["xrd"] is not None:
                    xr = pool(); push.cur = xr
                    m["rd"] = m["rd"] + [(m["xrd"][0], f"ds_read_b128 v[{xr}:{xr+3}], {m['xrd'][1]}")]
                    m["pool"] = 1
                else: m["pool"] = 0
                m["B"] = push.cur
                M.append(m)
        if not spare and not isB:
            for i in range(8):
                gs = [p1(i, i, g, (blk[("X", i // 2)]*BLK + (2*(i % 2) + u)*4096 if NS == 2 else blk[("X", i)]*BLK + u*4096), u == 0) for u, g in enumerate(SP)]
                for parts in zip(*gs):
                    for u in parts: push(u)
            for n_, g in enumerate(AL):
                for i in range(8):
                    for u in p1(8 + 2*n_ + i // 4, i, g, blk[("X", XS + 2*n_ + i // 4)]*BLK + (i % 4)*4096, False): push(u)
        if not spare and isB:
            for n_, (g, bs) in enumerate(bgroups):
                for i in range(8):
                    assert bs[i] >= i
                    for u in p1(bs[i], i, g, (blk[("Y", 2*n_ + i // 4)] - 8)*BLK + (i % 4)*4096, False): push(u)
        if not isB and SH2 == 16:
            for j in range(NB, 14):
                order = [(k2, i) for k2 in range(2) for i in range(4)] if j < 13 else [(k2, 2*t + jj) for t in range(2) for k2 in range(2) for jj in range(2)]
                seen = set()
                for k2, i in order:
                    r = pool()
                    rd = []
                    if j > NB and i not in seen:
                        dl = f"s{88 + j - 10}" if j >= 10 else f"{((blk[('D', j)] - blk[('D', j-1)]) * BLK) & 0xffffffff:#x}"
                        rd.append((None, f"v_add_u32 v{DA+i}, {dl}, v{DA+i}"))
                    seen.add(i)
                    rd += [(("d", j, k2, i, jj), f"ds_read_b64_tr_b16 v[{r+2*jj}:{r+2*jj+1}], v{DA+i} offset:{k2*4096 + jj*512}") for jj in range(2)]
                    for sub in range(2):
                        n = 4*j + 2*k2 + sub
                        M.append(dict(step=P2 + (j - NB) // 2, d=A2[i // 2] + 8*(i % 2) + 4*sub, n=4, A=r, B=WR + 4*((n - 4*NB) % 32), first=(j == NB and k2 == 0),
                                      rd=(rd if sub == 0 else []), h=n, hc=(n + 1 if i == 3 else 4*j + 2*k2), last=False, pool=(1 if sub == 0 else 0)))
        TK = cfg.get("tk", 4)
        if not isB and SH2 == 32:
            order = [(n, t) for n in range(56 - TK) for t in range(2)] + [(n, t) for t in range(2) for n in range(56 - TK, 56)]
            for n, t in order:
                j, ks = n // 4, n % 4
                r = pool()
                rd = []
                if j > 0 and ks == 0:
                    dl = f"s{88 + j - 10}" if j >= 10 else f"{((blk[('D', j)] - blk[('D', j-1)]) * BLK) & 0xffffffff:#x}"
                    rd.append((None, f"v_add_u32 v{DA+t}, {dl}, v{DA+t}"))
                rd += [(("d", j, ks, t, jj), f"ds_read_b64_tr_b16 v[{r+2*jj}:{r+2*jj+1}], v{DA+t} offset:{ks*2048 + jj*512}") for jj in range(2)]
                M.append(dict(step=P2 + j // 2, d=A2[t], n=16, A=r, B=WR + 4*(n % 32), first=(n == 0), rd=rd, h=n, t=t, last=False, pool=1))
        NM = len(M)
        cum = [0]
        for m in M: cum.append(cum[-1] + m["pool"])
        def epi(g):
            a = ACC[baccof[g] if (isB and g in off) else accof[g]]
            L = []
            if g in off and not isB:
                b = off[g]
                return [dict(text=f"ds_write_b128 v{VE + b // 4}, v[{a+4*i}:{a+4*i+3}] offset:{(b % 4)*BLK + 1024*i}", lds=("ew", g, i), vr=range(a+4*i, a+4*i+4), cost=99) for i in range(4)]
            T = lambda i: TMP + i
            idx = range(8)
            TC = cfg.get("tcost", 2)
            if cfg.get("mix", 0):
                nl = [("er", g, 3)] if g in off else []
                stg = lambda i: [dict(text=f"v_mul_f32 v{T(i)}, v{a+i}, v{a+i}", vr=[a+i], cost=1, nl=nl),
                                 dict(text=f"v_fma_f32 v{T(i)}, v{T(i)}, s12, v{CC0}", cost=1),
                                 dict(text=f"v_mul_f32 v{T(i)}, v{T(i)}, v{a+i}", cost=1),
                                 dict(text=f"v_exp_f32 v{T(i)}, v{T(i)}", cost=TC, trans=T(i)),
                                 dict(text=f"v_mul_f32 v{a+8+i}, v{a+i}, v{a+8+i}", vr=[a+8+i], cost=1),
                                 dict(text=f"v_add_f32 v{T(i)}, 1.0, v{T(i)}", vr=[T(i)], cost=1),
                                 dict(text=f"v_rcp_f32 v{T(i)}, v{T(i)}", cost=TC, trans=T(i)),
                                 dict(text=f"v_mul_f32 v{a+8+i}, v{a+8+i}, v{T(i)}", vr=[T(i)], cost=1)]
                al_ = {i: stg(i) for i in idx}
                if cfg.get("pk", 0):
                    P = lambda r: f"v[{r}:{r+1}]"
                    PC = cfg.get("pcost", 1)
                    which = cfg["pk"]
                    for i in range(0, 8, 2):
                        pkop = {0: dict(text=f"v_pk_mul_f32 {P(T(i))}, {P(a+i)}, {P(a+i)}", vr=[a+i, a+i+1], cost=PC),
                                1: dict(text=f"v_pk_fma_f32 {P(T(i))}, {P(T(i))}, s[12:13], {P(242)} op_sel_hi:[1,0,0]", cost=PC),
                                2: dict(text=f"v_pk_mul_f32 {P(T(i))}, {P(T(i))}, {P(a+i)}", cost=PC),
                                4: dict(text=f"v_pk_mul_f32 {P(a+8+i)}, {P(a+i)}, {P(a+8+i)}", vr=[a+8+i, a+9+i], cost=PC)}
                        for k_ in which:
                            al_[i][k_] = pkop[k_]; al_[i+1][k_] = None
                o_ = HOLDR if g in cfg.get("hold", ()) else a
                if cfg.get("cvtspread", 1):
                    for i in range(1, 8, 2):
                        al_[i].append(None)
                        al_[i].append(dict(text=f"v_cvt_pk_bf16_f32 v{o_+i//2}, v{a+7+i}, v{a+8+i}", cost=cfg.get("ccost", 1), vw=[o_+i//2]))
                ops = sorted(((2*i + k_, i, k_) for i in idx for k_ in range(len(al_[i]))))
                L += [al_[i][k_] for _, i, k_ in ops if al_[i][k_] is not None]
                if cfg.get("noepi"): L = [dict(text="", cost=e_["cost"]) for e_ in L]
                idx = ()
            for i in idx: L.append(dict(text=f"v_mul_f32 v{T(i)}, v{a+i}, v{a+i}", vr=[a+i], cost=1, nl=([("er", g, 3)] if g in off else [])))
            for i in idx: L.append(dict(text=f"v_fma_f32 v{T(i)}, v{T(i)}, s12, v{CC0}", cost=1))
            for i in idx: L.append(dict(text=f"v_mul_f32 v{T(i)}, v{T(i)}, v{a+i}", cost=1))
            for i in idx:
                L.append(dict(text=f"v_exp_f32 v{T(i)}, v{T(i)}", cost=2, trans=T(i)))
                L.append(dict(text=f"v_mul_f32 v{a+8+i}, v{a+i}, v{a+8+i}", vr=[a+8+i], cost=1))
            for i in idx: L.append(dict(text=f"v_add_f32 v{T(i)}, 1.0, v{T(i)}", vr=[T(i)], cost=1))
            for i in idx: L.append(dict(text=f"v_rcp_f32 v{T(i)}, v{T(i)}", cost=2, trans=T(i)))
            for i in idx: L.append(dict(text=f"v_mul_f32 v{a+8+i}, v{a+8+i}, v{T(i)}", vr=[T(i)], cost=1))
            o = HOLDR if g in cfg.get("hold", ()) else a
            if not (cfg.get("mix", 0) and cfg.get("cvtspread", 1)):
                for i in range(4): L.append(dict(text=f"v_cvt_pk_bf16_f32 v{o+i}, v{a+8+2*i}, v{a+8+2*i+1}", cost=1, vw=[o+i]))
            if SH1 == 16:
                for i in range(2): L.append(dict(text=f"v_permlane16_swap_b32 v{o+i}, v{o+2+i}", cost=1, pr=[o+i, o+2+i]))
            L.append(dict(text=f"buffer_store_dwordx4 v[{o}:{o+3}], v{L16}, s[{SH}:{SH+3}], s{HS+g} offen sc1", vm=("st", g), cost=1))
            return L
        def put(e):
            if e.get("vm"):
                g = e["vm"][1]
                if g in hold:
                    assert not held; held.append((e, -100)); return
                for h_, _ in held: S.add(h_["text"], vm=h_["vm"])
                held.clear()
            S.add(e["text"], vm=e.get("vm"), lds=e.get("lds"), need_lds=e.get("nl", ()), vr=e.get("vr", ()), trans=e.get("trans"), vw=e.get("vw", ()), pr=e.get("pr", ()))
        aflag = cfg.get("aflag", {})
        hold = cfg.get("hold", ())
        held = []
        covers = lambda ev: (ev - 1, ev) if ev < 6 else (ev,)
        flagged = set()
        def flag(ev):
            nv = [("st", g) for g in covers(ev) if eowner(g) == 1]
            S(f"s_add_u32 s97, s84, {ev//2}\ns_and_b32 s97, s97, 3\ns_mul_i32 s97, s97, 3584\ns_add_u32 s97, s97, s92")
            if ev >= 6: S(f"s_and_b32 s13, s{ev-6}, 1\ns_lshl4_add_u32 s97, s13, s97")
            S.add(f"buffer_store_dword v{TAG}, v{VF2 if ev < 6 else VF}, s[{SF}:{SF+3}], s97 offen sc1", vm=("flag", ev), need_vm=nv)
            flagged.add(ev)
        def tag_issue():
            S.add("s_load_dwordx2 s[14:15], s[74:75], 0", need_lds=["ALL"])
            if isB and cfg.get("swarm", 1): S(f"s_load_dword s4, s[{SF}:{SF+1}], {FSZ-64}")
        def tag_check():
            S("s_mov_b32 s97, 0")
            S.add("s_waitcnt lgkmcnt(0)", need_lds=["ALL"])
            S(f"L_tag{sfx}:")
            S("s_cmp_lg_u32 s15, 0")
            S(f"s_cbranch_scc1 L_tagok{sfx}")
            S("~s_add_u32 s97, s97, 1")
            S("~s_cmp_ge_u32 s97, 0x100000")
            S(f"~s_cbranch_scc1 L_tagok{sfx}")
            S("~s_sleep 2")
            S(f"~v_mov_b32 v{PR+2}, 0")
            S(f"~global_load_dwordx2 v[{PR}:{PR+1}], v{PR+2}, s[74:75] sc1")
            S("~s_waitcnt vmcnt(0)")
            S(f"~v_readfirstlane_b32 s14, v{PR}")
            S(f"~v_readfirstlane_b32 s15, v{PR+1}")
            S("~s_nop 1")
            S(f"~s_branch L_tag{sfx}")
            S(f"L_tagok{sfx}:")
            S(f"v_mov_b32 v{TAG}, s14")
            S("s_mov_b32 s15, s14")
        polling = [None]
        pmask = lambda c: (((1 << pg[c][1]) - 1) ^ ((1 << pg[c][0]) - 1)) << 16
        PD4 = (4, 8, 24, 28)
        def poll_loads(c, pre=""):
            for i in range(pg[c][1] - pg[c][0]):
                S(f"{pre}s_load_dwordx4 s[{PD4[i]}:{PD4[i]+3}], s[{SF}:{SF+1}], s{88+i} glc")
        def poll_issue(c):
            assert polling[0] is None; polling[0] = c
            for i, j in enumerate(range(*pg[c])): S(f"v_readlane_b32 s{88+i}, v{FV}, {16+j}")
            S.add("s_nop 3", need_lds=["ALL"])
            poll_loads(c)
        def poll_check(c):
            assert polling[0] == c; polling[0] = None
            prs = [r + d for r in PD4[:pg[c][1] - pg[c][0]] for d in (0, 2)]
            S("s_mov_b32 s96, 0")
            S(f"L_poll{sfx}{c}:")
            S.add("s_waitcnt lgkmcnt(0)", need_lds=["ALL"])
            for r in prs: S(f"s_xor_b64 s[{r}:{r+1}], s[{r}:{r+1}], s[14:15]")
            for r in prs[1:]: S(f"s_or_b64 s[4:5], s[4:5], s[{r}:{r+1}]")
            S(f"s_cbranch_scc0 L_ok{sfx}{c}")
            S("~s_add_u32 s96, s96, 1")
            S("~s_cmp_ge_u32 s96, 0x100000")
            S(f"~s_cbranch_scc1 L_ok{sfx}{c}")
            if spare: S(f"~s_sleep {8 if c == 0 else 2}")
            S("~s_and_b32 s4, s96, 63")
            S(f"~s_cbranch_scc1 L_sp{sfx}{c}")
            S(f"~s_mov_b64 exec, {pmask(c):#x}")
            S(f"~buffer_load_dwordx4 v[{PR}:{PR+3}], v{FV}, s[{SF}:{SF+3}], 0 offen sc1")
            S("~s_mov_b64 exec, -1")
            S("~s_waitcnt vmcnt(0)")
            S(f"~v_cmp_eq_u64 vcc, s[14:15], v[{PR}:{PR+1}]")
            S(f"~v_cmp_eq_u64_e64 s[4:5], s[14:15], v[{PR+2}:{PR+3}]")
            S("~s_nop 1")
            S("~s_and_b32 s4, s4, vcc_lo")
            S(f"~s_andn2_b32 s4, {pmask(c):#x}, s4")
            S(f"~s_cbranch_scc0 L_ok{sfx}{c}")
            S(f"L_sp{sfx}{c}:")
            poll_loads(c, "~")
            S(f"~s_branch L_poll{sfx}{c}")
            S(f"L_ok{sfx}{c}:")
            bok[0] = pg[c][1]
        pts = [(rel(a), rel(b)) for a, b in (cfg["ppts_s"] if spare else cfg["ppts"])]
        def points(s, k):
            if not spare:
                if cfg["tag_pts"][0] == (s, k): tag_issue()
                if cfg["tag_pts"][1] == (s, k): tag_check()
                for ev, pt in flag_pts.items():
                    if pt == (s, k): flag(ev)
            for c, (pi, pc) in enumerate(pts):
                if pc == (s, k) and pi != pc: poll_check(c)
            for c, (pi, pc) in enumerate(pts):
                if pi == (s, k):
                    poll_issue(c)
                    if pi == pc: poll_check(c)

        first = P2 - 2 if spare else 0
        st = dict(rd=0, h=4*NB, bar=first - 1, wdead=(32 if spare else 0), n=0, hcons=4*NB, ok=0)
        epq = []; dmaq = []; lpend = []; wq = []
        def barrier():
            s = st["bar"] + 1
            assert not dmaq
            late(cfg.get("late_at", ({1: 70, 2: 40, 3: 0, 4: 50, 5: 999},) * 2)[SET].get(s, 0))
            nv = [(k, i, 3) for (k, i) in issued if vstep(first_use((k, i))) < next_bar(s)]
            drain = ["ALL"] if (isB or s < ES) else []
            if not spare and not isB:
                for ev, pt in flag_pts.items():
                    if s == prev_bar(pt[0]): nv += [("st", g) for g in covers(ev) if eowner(g) == 0]
            lt = lite and not isB
            if not isB and not spare and aflag and s == cfg["atag"][1]: tag_check()
            if s not in nobar:
                if lt:
                    S.add("s_waitcnt lgkmcnt(0)" if drain else "", need_lds=drain, need_vm=nv)
                    for (r, v, idx) in lpend: S(f"v_writelane_b32 v{v}, s{r}, {idx}")
                    lpend.clear()
                    S("s_memtime s[8:9]"); lpend.append((8, LT + 1, s + 1))
                S.add("s_barrier", need_lds=drain, need_vm=nv)
            if lt:
                r = [x for x in (98, 96, 6) if not any(y[0] == x for y in lpend)][0]
                S(f"s_memtime s[{r}:{r+1}]"); lpend.append((r, LT + 2, s + 1))
                if s not in nobar: S("s_memrealtime s[10:11]"); lpend.append((10, LT, s + 1))
            st["bar"] = s
            if not isB and not spare and aflag and s == cfg["atag"][0]: tag_issue()
            if isB and cfg.get("diag") == s: S("s_memrealtime s[82:83]")
            for c, (pi, pc) in enumerate(pts):
                if s == next_bar(pc[0]): st["ok"] = max(st["ok"], pg[c][1])
            for it in myplan[s]:
                if it[0] == "D": assert not lateq
                if it[0] == "D" and it[1] in stage and not spare: continue
                su, dm = item_ops(it)
                dmaq.append((su, None, None))
                for k, (t, tag) in enumerate(dm): dmaq.append((t, tag, it if k == 3 else None))
            if isB and not spare:
                for j, ss in stage.items():
                    if ss == s:
                        assert st["n"] == NM or sreg[j] >= 128, "W registers of set B still in use"
                        for q in range(4):
                            r = sreg[j] + 4*q
                            dmaq.append((f"buffer_load_dwordx4 v[{r}:{r+3}], v{VD+q}, s[{SD}:{SD+3}], s{TB+j} offen offset:{1024*q}", ("sg", j, q), None))
        def unstage(s):
            for it in myplan[s]:
                if it[0] == "D" and it[1] in stage and not spare:
                    j = it[1]
                    S(f"s_add_u32 s32, s33, {blk[it]*BLK}\nv_add_u32 v{XA+3}, s32, v{L16}")
                    for q in range(4):
                        r = sreg[j] + 4*q
                        S.add(f"ds_write_b128 v{XA+3}, v[{r}:{r+3}] offset:{1024*q}", lds=("us", j, q), need_vm=[("sg", j, q)])
        def issue_dma(n):
            while dmaq and n > 0:
                t, tag, it = dmaq.pop(0)
                if tag is None: S(t); continue
                S.add(t, vm=tag); n -= 1
                if it: issued.append(it)
        def issue_reads(n, maxn, lim):
            cnt = 0
            while st["rd"] < NM and (M[st["rd"]]["step"] if isB else vstep(M[st["rd"]]["step"])) < lim and cnt < maxn:
                k = st["rd"]
                lo = cum[n + 1] - 1 if n >= 0 else 0
                if cum[k + 1] - lo > (cfg.get("look2", 6) if "h" in M[k] else cfg.get("look", NPOOL)): break
                if cfg.get("rsplit") and ("hc" in M[k] or (cfg["rsplit"] > 1 and M[k]["n"] == 4 and not isB)) and maxn < 99 and M[k]["rd"]:
                    done = M[k].setdefault("nis", 0)
                    while True:
                        i, t = M[k]["rd"][done]; S.add(t, lds=i); done += 1
                        if i is not None: break
                    M[k]["nis"] = done
                    if done == len(M[k]["rd"]):
                        st["rd"] += 1
                        while st["rd"] < NM and not M[st["rd"]]["rd"] and M[st["rd"]]["step"] == M[k]["step"]: st["rd"] += 1
                    return
                for (i, t) in M[k]["rd"][M[k].get("nis", 0):]: S.add(t, lds=i)
                if M[k]["rd"]: cnt += 1
                st["rd"] += 1
        def issue_h(maxn):
            cnt = 0
            while st["h"] < 56 and cnt < maxn:
                h = st["h"]
                lim = 56 if spare else hmax.get(st["bar"], 0 if st["bar"] < min(hmax) else 56)
                if not (h < lim and (h - 4*NB < st["wdead"] if h - 4*NB < 32 else h - 32 < st["hcons"]) and h // 4 < st["ok"]): break
                r = WR + 4 * ((h - 4*NB) % 32)
                S.add(f"buffer_load_dwordx4 v[{r}:{r+3}], v{L16 if SH2 == 32 else DA+4}, s[{SH}:{SH+3}], s{TB + h//4} offen offset:{(h % 4)*1024 if SH2 == 32 else (h % 4 // 2)*2048 + (h % 2)*256} sc1", vm=("h", h))
                st["h"] += 1; cnt += 1
        def issue_epi(budget):
            used = 0
            while epq and used < budget:
                e = epq[0][0].pop(0)
                put(e); used += e["cost"]
                if not epq[0][0]: epq.pop(0)
            return used
        WB = cfg.get("wb", 2)
        def mfma():
            n = st["n"]; m = M[n]
            ph2 = "h" in m
            nv = [("h", m["h"])] if ph2 else []
            if ph2 and "hc" in m and m["h"] % 2 == 0 and m["h"] + 1 < st["h"]: nv = [("h", m["h"] + 1)]
            if ph2: assert m["h"] < st["h"], ("h not issued", m["h"], st["h"], n)
            assert st["rd"] > n, ("reads not issued", n)
            if m["first"]:
                for e in epq + held + wq: assert not (e[1] <= m["d"] < e[1] + 16), ("acc reuse", n, m["step"])
            d, nn = m["d"], m["n"]
            c = "0" if m["first"] else f"v[{d}:{d+nn-1}]"
            op = "v_mfma_f32_32x32x16_bf16" if nn == 16 else "v_mfma_f32_16x16x32_bf16"
            wb = WB * (1 if nn == 16 else 2)
            nl = [i for k in range(n, min(n + (wb if n % wb == 0 else 1), st["rd"])) for i, _ in M[k]["rd"] if i is not None]
            if isB: nl += [("w", m["slot"], 0), ("w", m["slot"], 1)]
            S.add(f"{op} v[{d}:{d+nn-1}], v[{m['A']}:{m['A']+3}], v[{m['B']}:{m['B']+3}], {c}" if not (cfg.get("nomf") and n % 2) else "", need_lds=nl, need_vm=nv, mw=(d, d + nn - 1))
            if m.get("wdead") is not None: st["wdead"] = m["wdead"] + 1
            if m["last"]:
                ent = [epi(m["g"]), ACC[accof[m["g"]]], n + 1 + (cfg.get("elast", 4 * MUL) if m["g"] == groups[0][-1] else cfg.get("estart", 4) * MUL), m["g"]]
                if m["g"] in off: wq.append(ent)
                else: epq.append(ent)
            if ph2: st["hcons"] = max(st["hcons"], m["hc"]) if "hc" in m else m["h"] + m["t"]
            st["n"] += 1
            if ph2 and SH2 == 16:
                if n in (NM - 5, NM - 3):
                    for i in ((0, 1) if n == NM - 5 else (2, 3)):
                        S.add(f"ds_write_b128 v{VEX}, v[{A2[0]+4*i}:{A2[0]+4*i+3}] offset:{1024*i}", lds=("xw", i), vr=range(A2[0]+4*i, A2[0]+4*i+4))
                if n == NM - 1: exch()
            elif ph2:
                w0 = NM - TK + 1
                if n in (w0, w0 + 1):
                    for i in (2*(n - w0), 2*(n - w0) + 1):
                        S.add(f"ds_write_b128 v{VEX}, v[{A2[0]+4*i}:{A2[0]+4*i+3}] offset:{1024*i}", lds=("xw", i), vr=range(A2[0]+4*i, A2[0]+4*i+4))
                if n == NM - 1 - cfg.get("tb", 0): exch()
        def exch():
            assert st["rd"] == NM and not aq
            S.add("s_barrier", need_lds=["ALL"])
            for i in range(4):
                S.add(f"ds_read_b128 v[{RED+4*i}:{RED+4*i+3}], v{VEX+1} offset:{1024*i}", lds=("xr", i))
        if isB and not spare and cfg.get("pages", 0) == 1:
            for p_ in range(1, touch["n"]):
                if (p_ - 1) % 4 // 2 != var: continue
                S(f"s_cmp_eq_u32 s22, {(p_ - 1) % 2}")
                S(f"s_cbranch_scc0 L_nt{sfx}{p_}")
                S(f"s_call_b64 s[98:99], L_stub{p_}")
                S(f"L_nt{sfx}{p_}:")
        if not isB and not spare and cfg.get("pages", 0) == 3: S("@TOUCH@")
        bok = [0]
        def b_tr(j, b):
            dl = (b * BLK - b_tr.cur) & 0xffffffff; b_tr.cur = b * BLK
            assert polling[0] is None
            for i in range(4):
                S(f"v_add_u32 v{BDA+i}, {dl:#x}, v{BDA+i}")
                for k2 in range(2):
                    r = 32*j + 16*k2 + 4*i
                    for jj in range(2): S.add(f"ds_read_b64_tr_b16 v[{r+2*jj}:{r+2*jj+1}], v{BDA+i} offset:{k2*4096 + jj*512}", lds=("bt", j, k2, i, jj))
        b_tr.cur = 0
        def b_h(j):
            assert j < bok[0], ("B h not confirmed", j)
            for q in range(4):
                r = BHR + 4*((4*j + q) % 12)
                S.add(f"buffer_load_dwordx4 v[{r}:{r+3}], v{BDA+4}, s[{SH}:{SH+3}], s{HS+j} offen offset:{(q // 2)*2048 + (q % 2)*256} sc1", vm=("bh", j, q))
        def b_mm(j):
            for k2 in range(2):
                for i in range(4):
                    for sub in range(2):
                        d = BACC[i // 2] + 8*(i % 2) + 4*sub; a_ = 32*j + 16*k2 + 4*i; b_ = BHR + 4*((4*j + 2*k2 + sub) % 12)
                        c = "0" if (j == 0 and k2 == 0) else f"v[{d}:{d+3}]"
                        S.add(f"v_mfma_f32_16x16x32_bf16 v[{d}:{d+3}], v[{a_}:{a_+3}], v[{b_}:{b_+3}], {c}", need_vm=[("bh", j, 2*k2 + 1)], mw=(d, d + 3))
        def b_pw():
            for i in range(8):
                r = BACC[0] + 4*i
                S.add(f"ds_write_b128 v{BDA+5}, v[{r}:{r+3}] offset:{1024*i}", lds=("pw", i), vr=range(r, r + 4))
        bact = cfg["bact_s"] if spare else cfg["bact"]
        def b_points(s, k):
            for act in bact.get((s - P2, k), ()):
                {"h": b_h, "m": b_mm}[act[0]](int(act[1]))
            if s == PW and k == cfg.get("pwk", 0): b_pw()
        if spare:
            if isB:
                S.add("s_barrier", need_vm=[("D", 3, 3)])
                for j in range(NB): b_tr(j, blk[("D", 10 + j)])
                S.add("s_barrier", need_lds=["ALL"])
                for j in range(10, 14): item(("D", j))
            else: S("s_barrier\ns_barrier")
        aq = []
        prio = cfg.get("prio", (1, 0))
        S(f"s_setprio {prio[SET]}")
        if spare and isB:
            tag_issue(); tag_check()
            points(first - 1, 99)
            b_points(first - 1, 99)
        lastB = max([next_bar(pc[0]) for _, pc in pts] + [vstep(first_use(("D", 13))), next_bar(PW)])
        for s in range(first, NST):
            if isB and s > lastB: break
            barrier()
            end = st["n"]
            while end < NM and M[end]["step"] <= s: end += 1
            if not isB:
                BK = cfg.get("bk", 3) * (MUL if s < P2 else MUL2)
                if s + 1 >= ES: BK = 0
                if s < LAST and end > st["n"]: end -= BK
                if s == next_bar(PW):
                    for i in range(4): aq.append(dict(text=f"ds_read_b128 v[{PS1+4*i}:{PS1+4*i+3}], v{DA+5} offset:{4096 + 1024*i}", lds=("pa", i)))
                    for i in range(4): aq.append(dict(text=f"ds_read_b128 v[{RED+4*i}:{RED+4*i+3}], v{DA+6} offset:{1024*i}", lds=("pb", i)))
                    for i in range(8): aq.append(None)
                    for i in range(16): aq.append(dict(text=f"v_add_f32 v{PS1+i}, v{PS1+i}, v{RED+i}", nl=[("pb", 3)]))
                soft = cfg.get("soft", 0) and st["rd"] > st["n"] + 2
                if soft:
                    for _ in range(cfg["soft"]): issue_reads(st["n"] - 1, 1, next_bar(s))
                else: issue_reads(st["n"] - 1, 99, next_bar(s))
                if spare and s < P2: issue_h(99)
                k = 0
                while st["n"] < end:
                    mfma(); k += 1
                    if lite and s in cfg.get("fine", ()) and k % 2 == 0 and k <= 16:
                        r = (36, 38, 40, 42, 48, 50, 56, 58)[k // 2 - 1]
                        S(f"s_memtime s[{r}:{r+1}]"); lpend.append((r, LT + 2, 30 + 8 * cfg["fine"].index(s) + k // 2 - 1))
                    issue_reads(st["n"] - 1, 2, next_bar(s))
                    if soft and k <= 3 and M[st["n"] - 1]["n"] == 4: issue_reads(st["n"] - 1, 1, next_bar(s))
                    if not spare and (s - P2, k) in aflag:
                        ev = aflag[(s - P2, k)]
                        S.add(f"buffer_store_dword v{TAG}, v{VF}, s[{SF}:{SF+3}], s{4 + sorted(aflag.values()).index(ev)} offen sc1", vm=("flag", ev), need_vm=[("st", ev)])
                    if aq:
                        e_ = aq.pop(0)
                        if e_: put(e_)
                    nn = M[st["n"] - 1]["n"]
                    per = cfg.get("hper_at", {}).get(s - P2, cfg.get("hper", 2)) * (MUL if s < P2 else MUL2)
                    if k % per == per - 1 or (s >= P2 and st["h"] < st["hcons"] + 6): issue_h(1)
                    if wq and st["n"] >= wq[0][2] and (nn == 16 or k % 2):
                        put(wq[0][0].pop(0))
                        if not wq[0][0]: wq.pop(0)
                    elif epq and st["n"] >= epq[0][2]:
                        eb = cfg.get("eon2", 5) if s >= P2 else cfg.get("eon_at", {}).get(s, cfg["eon"])
                        if nn == 16: issue_epi(eb)
                        elif cfg.get("split16", 0):
                            st["cr"] = min(st.get("cr", 0), 0) + (eb // 2 if M[st["n"] - 1]["pool"] else eb - eb // 2)
                            if st["cr"] > 0: st["cr"] -= issue_epi(st["cr"])
                        elif k % 2: issue_epi(eb)
                if cfg.get("rsplit"): issue_reads(st["n"] - 1, 99, next_bar(s) if s + 1 < ES else 0)
                assert not wq, ("hand-over not finished", s)
                assert s == LAST or s + 1 in nobar or (spare and s < P2) or s + 1 >= ES or st["rd"] == end + BK, (s, st["rd"], end)
            else:
                pa = {(P2 + k_[0] if isinstance(k_, tuple) else k_): v for k_, v in cfg.get("prio_at", {}).items()}
                if s in pa: S(f"s_setprio {pa[s]}")
                lag = cfg.get("blag", 1)
                if lag:
                    while st["n"] < NM and M[st["n"]]["step"] < s:
                        mfma()
                        if M[st["n"] - 1]["n"] == 16 or st["n"] % 2 == 0: issue_dma(1)
                if s < 8 and not spare and bgroups:
                    for slot, rds in wreads(s).items():
                        for (i, t) in rds: S.add(t, lds=i)
                        issue_dma(1)
                issue_reads(st["n"] - 2 if False else st["n"] - 1, 99, s + 1)
                if lag: assert st["rd"] == end, (s, st["rd"], end)
                if not spare:
                    for g in sorted(off):
                        if gend[g] + 1 == s:
                            a = ACC[baccof[g]]; b = off[g]
                            assert polling[0] is None, ("scalar poll in flight over LDS reads", s)
                            for e in epq: assert e[1] != a, ("B acc reuse", g)
                            for i in range(4):
                                S.add(f"ds_read_b128 v[{a+4*i}:{a+4*i+3}], v{VE + b // 4} offset:{(b % 4)*BLK + 1024*i}", lds=("er", g, i))
                            epq.append([epi(g), a, 0, g])
                eb = cfg.get("eoff_at", {}).get(s, cfg["eoff"])
                efirst = (var == 1 or s in cfg.get("epi_first", ()))
                if not spare:
                    for j in range(NB):
                        if trs[j] == s: b_tr(j, blk[("D", j)])
                b_points(s, 0)
                points(s, 0)
                if efirst: issue_epi(eb)
                unstage(s)
                issue_dma(99)
                points(s, 50)
                b_points(s, 50)
                while not lag and st["n"] < end:
                    mfma()
                    issue_reads(st["n"] - 1, 2, s + 1)
                if not efirst: issue_epi(eb)
                points(s, 99)
                b_points(s, 99)
                if cfg.get("pages") == 4 and not spare:
                    for p_, bi in enumerate(touch["at"]):
                        if s == max(0, bi - cfg.get("tdist", 3)):
                            S(f"s_cmp_eq_u32 s21, {p_ % 4}\ns_cbranch_scc0 L_nt{sfx}{p_}\n~s_call_b64 s[98:99], L_stub{p_}\nL_nt{sfx}{p_}:")
        assert not epq and st["n"] == NM
        if isB:
            if not spare: assert flagged | set(aflag.values()) == {1, 3, 5, 6, 7} and not flagged & set(aflag.values()), flagged
            if cfg.get("diag") is not None and not spare:
                S(f"s_cmp_lg_u32 s2, {cfg.get('diagwg', 8)}")
                S("s_cbranch_scc1 L_end")
                for s in range(lastB + 1, NST):
                    if s not in nobar: S("s_barrier")
                S("s_barrier")
                if cfg["diag"] == 99: S("s_memrealtime s[82:83]")
                S("s_waitcnt lgkmcnt(0)")
                if cfg["diag"] < 0: S("s_mov_b32 s82, s100")
                S("s_sub_u32 s98, s82, s100\ns_lshl_b32 s98, s98, 2\ns_add_u32 s98, s98, 3000")
                S(f"L_dg{sfx}:")
                S("s_memrealtime s[96:97]\ns_waitcnt lgkmcnt(0)\ns_sub_u32 s96, s96, s100\ns_cmp_lt_u32 s96, s98\ns_cbranch_scc1 L_dg" + sfx)
            S("s_endpgm")
            return S.render()
        assert st["h"] == 56
        R = RED; keep = A2[1]
        for q in range(2):
            if q == 0:
                for i in range(16): S.add(f"v_add_f32 v{PS1+i}, v{PS1+i}, v{keep+i}", vr=[keep+i])
            for i in range(8*q, 8*q + 8): S.add(f"v_add_f32 v{R+i}, v{R+i}, v{PS1+i}", need_lds=[("xr", i // 4)])
            for i in range(4): S.add(f"v_cvt_pk_bf16_f32 v{TMP+4*q+i}, v{R+8*q+2*i}, v{R+8*q+2*i+1}", vw=[TMP+4*q+i])
            if SH2 == 16:
                for i in range(2): S.add(f"v_permlane16_swap_b32 v{TMP+4*q+i}, v{TMP+4*q+2+i}", pr=[TMP+4*q+i, TMP+4*q+2+i], vw=[TMP+4*q+i, TMP+4*q+2+i])
            if not cfg.get("o64", 0): S(f"buffer_store_dwordx4 v[{TMP+4*q}:{TMP+4*q+3}], v{VOUT}, s[{SW}:{SW+3}], s95 offen offset:{32*q}")
        if cfg.get("o64", 0):
            S("s_add_u32 s94, s95, 16384")
            for i in range(4): S.add(f"v_permlane16_swap_b32 v{TMP+i}, v{TMP+4+i}", pr=[TMP+i, TMP+4+i])
            for q in range(2): S(f"buffer_store_dwordx4 v[{TMP+4*q}:{TMP+4*q+3}], v{VOUT}, s[{SW}:{SW+3}], s{95-q} offen {cfg.get('outsc', '')}")
        if lite:
            for (r, v, idx) in lpend: S(f"v_writelane_b32 v{v}, s{r}, {idx}")
            S("s_memrealtime s[96:97]\ns_memtime s[36:37]\ns_waitcnt vmcnt(0)\ns_memrealtime s[98:99]\ns_waitcnt lgkmcnt(0)")
            S(f"v_writelane_b32 v{LT}, s100, 0\nv_writelane_b32 v{LT}, s96, 60\nv_writelane_b32 v{LT}, s98, 61")
            for x in range(NST + 1, 29): S(f"v_writelane_b32 v{LT+2}, s36, {x}")
            S(f"s_cmp_lg_u32 s20, {cfg.get('stwave', 1)}")
            S("s_cbranch_scc1 L_end")
            S(f"s_add_u32 s30, s{SH}, 0x8000000\ns_addc_u32 s31, s{SH+1}, 0")
            S(f"s_lshl_b32 s32, s2, 8\nv_lshrrev_b32 v0, 2, v{L16}\nv_add_u32 v0, s32, v0")
            for v in (LT, LT + 1, LT + 2):
                S(f"global_store_dword v0, v{v}, s[30:31]")
                S("v_add_u32 v0, 0x10000, v0")
        S("s_endpgm")
        return S.render()

    E = Stream()
    E("s_load_dwordx8 s[4:11], s[0:1], 0")
    E("s_load_dwordx4 s[24:27], s[0:1], 24")
    E("s_load_dwordx4 s[28:31], s[0:1], 40")
    if cfg.get("codepf") in (5, 6):
        if cfg["codepf"] == 5:
            E("s_cmp_ge_u32 s2, 224\ns_cbranch_scc0 L_reg0")
        E(f"s_getpc_b64 s[{SH}:{SH+1}]")
        E("L_pc:")
        if cfg["codepf"] == 5:
            E(f"s_bfe_u32 s35, s2, 0x20003\nv_lshlrev_b32 v{T1}, 4, v0\nv_lshl_add_u32 v{T1}, s35, 13, v{T1}")
        else:
            E(f"s_bfe_u32 s35, s2, 0x50003\nv_lshlrev_b32 v{T1}, 1, v0\nv_and_b32 v{T1}, 0x3fc, v{T1}\nv_lshl_add_u32 v{T1}, s35, 10, v{T1}")
        E(f"v_min_u32 v{T1}, L_codeend-L_pc-16, v{T1}")
        E(f"v_mov_b32 v{T2}, s{SH+1}")
        E(f"v_add_co_u32 v{T1}, vcc, s{SH}, v{T1}")
        E("s_nop 1")
        E(f"v_addc_co_u32 v{T2}, vcc, 0, v{T2}, vcc")
        E(f"global_load_dwordx4 v[204:207], v[{T1}:{T2}], off" if cfg["codepf"] == 5 else f"global_load_dword v204, v[{T1}:{T2}], off")
        E("L_reg0:")
    if lite or cfg.get("diag") is not None: E("s_memrealtime s[100:101]")
    E("v_lshrrev_b32 v1, 6, v0")
    E("s_cmp_ge_u32 s2, 256")
    E("s_cbranch_scc1 L_end")
    E("v_readfirstlane_b32 s20, v1")
    E("s_and_b32 s14, s2, 7\ns_lshr_b32 s15, s2, 3")
    E("s_and_b32 s35, s15, 3\ns_lshr_b32 s19, s15, 2")
    E("s_and_b32 s32, s14, 1\ns_lshl2_add_u32 s16, s32, s35")
    E("s_lshr_b32 s84, s14, 1\ns_mul_i32 s17, s84, 7\ns_add_u32 s17, s17, s19")
    if not XROT: E("s_mov_b32 s84, s17")
    E("s_lshl2_add_u32 s18, s14, s35")
    E("s_and_b32 s21, s20, 3")
    if cfg.get("nbswap", 1):
        E("s_mov_b32 s34, s19\ns_cmp_eq_u32 s19, 3\ns_cselect_b32 s19, 7, s19\ns_cmp_eq_u32 s34, 7\ns_cselect_b32 s19, 3, s19\ns_cselect_b32 s34, 0, s34")
    else:
        E("s_cmp_eq_u32 s19, 7\ns_cselect_b32 s34, 0, s19")
    if cfg.get("codepf") == 4:
        E("s_cbranch_scc0 L_reg")
        E(f"s_getpc_b64 s[{SH}:{SH+1}]")
        E("L_pc:")
        E(f"v_lshlrev_b32 v{T1}, 4, v0")
        E(f"v_lshl_add_u32 v{T1}, s35, 13, v{T1}")
        E(f"v_min_u32 v{T1}, L_codeend-L_pc-16, v{T1}")
        E(f"v_mov_b32 v{T2}, s{SH+1}")
        E(f"v_add_co_u32 v{T1}, vcc, s{SH}, v{T1}")
        E("s_nop 1")
        E(f"v_addc_co_u32 v{T2}, vcc, 0, v{T2}, vcc")
        E(f"global_load_dwordx4 v[204:207], v[{T1}:{T2}], off")
        E("s_branch L_spare")
        E("L_reg:")
    else:
        E("s_cbranch_scc1 L_spare")
    E(f"v_and_b32 v{LANE}, 63, v0")
    CM = cfg.get("cmode", 0)
    if CM == 0: E("s_lshl1_add_u32 s36, s35, s32")
    elif CM == 1: E("s_lshr_b32 s36, s35, 1\ns_mul_i32 s36, s36, 3\ns_lshl1_add_u32 s36, s32, s36\ns_add_u32 s36, s36, s32")
    elif CM == 2: E("s_mul_i32 s36, s32, 3")
    elif CM == 3: E("s_min_u32 s36, s14, 6")
    if cfg.get("crot", 1) == 1: E("s_lshr_b32 s32, s17, 2\ns_add_u32 s36, s36, s32")
    if cfg.get("crot", 1) == 2: E("s_add_u32 s36, s36, s34")
    if cfg.get("c3last", 1):
        E("s_sub_u32 s32, s36, 7\ns_min_u32 s36, s36, s32\ns_lshl_b32 s36, s36, 2")
        E("s_mov_b32 s96, 0x07654210\ns_mov_b32 s97, 0x65421\ns_lshr_b64 s[96:97], s[96:97], s36")
        E("s_and_b32 s36, s96, 0x0fffffff\ns_or_b32 s36, s36, 0x30000000")
    else:
        E("s_and_b32 s36, s36, 7\ns_lshl_b32 s36, s36, 2")
        E("s_mov_b32 s96, 0x76543210\ns_mov_b32 s97, s96\ns_lshr_b64 s[96:97], s[96:97], s36\ns_mov_b32 s36, s96")
    E("s_lshl_b32 s39, s16, 18")
    assert SP in ([0, 1], [0, 1, 2, 3])
    E("s_and_b32 s37, s21, 1")
    E(("s_lshl1_add_u32 s3, s84, s37" if NS == 2 else "s_lshl1_add_u32 s3, s84, s21") + "\ns_and_b32 s3, s3, 7\ns_lshl_b32 s3, s3, 15\ns_add_u32 s3, s3, s39")
    E("s_mul_i32 s37, s37, 114688\ns_lshl_b32 s32, s17, 7\ns_add_u32 s37, s37, s32")
    E("s_and_b32 s22, s21, 2")
    E("s_lshl_b32 s33, s21, 12")
    E("s_cmp_lt_u32 s20, 4")
    E("s_cselect_b32 s37, s3, s37")
    E("s_cselect_b32 s38, 1, 1792")
    E("s_cselect_b32 s12, 3, 1\ns_cselect_b32 s13, 0, 2")
    E(f"s_cselect_b32 s23, 0, {'s22' if SH1 == 32 else '0'}")
    E(f"s_cselect_b32 s92, 64, {0 if SH1 == 32 else 32}")
    E("s_cselect_b32 s93, 2, 7")
    E(f"s_cselect_b32 s{SX+2}, 8, 7")
    E("s_cselect_b32 s94, 0, 0x10000")
    E("s_cselect_b32 s95, s22, 0" if NS == 2 else "s_mov_b32 s95, 0")
    E(f"s_lshl_b32 s38, s38, 7\ns_lshl_b32 s93, s93, 9\ns_lshl_b32 s{SX+2}, s{SX+2}, 18")
    E(f"v_lshrrev_b32 v{T1}, 3, v{LANE}")
    E(f"v_lshrrev_b32 v{T2}, 4, v{LANE}")
    E(f"v_and_b32 v{T2}, s12, v{T2}")
    E(f"v_lshlrev_b32 v{T2}, s13, v{T2}")
    E(f"v_or_b32 v{T2}, s23, v{T2}")
    E(f"v_xor_b32 v{T2}, v{T2}, v{LANE}")
    E(f"v_and_b32 v{T2}, 7, v{T2}")
    E(f"v_mul_u32_u24 v{T1}, s93, v{T1}")
    E(f"v_lshl_add_u32 v{VX}, v{T2}, 4, v{T1}")
    E("s_lshl_b32 s93, s93, 3\ns_sub_u32 s93, s93, 1024")
    E(f"v_xor_b32 v{VX+1}, s92, v{VX}")
    E(f"v_add_u32 v{VX+1}, s93, v{VX+1}")
    E("s_lshl_b32 s93, s93, 1")
    E(f"v_add_u32 v{VX+2}, s93, v{VX}")
    E(f"v_add_u32 v{VX+3}, s93, v{VX+1}")
    E(f"s_mov_b32 s{SX+3}, 0x20000")
    E("s_add_u32 s33, s33, s94")
    E("s_lshl_b32 s95, s95, 1\ns_lshr_b32 s32, s36, s95\ns_and_b32 s32, s32, 7\ns_mul_i32 s32, s32, s38\ns_add_u32 s32, s32, s37")
    E("s_mov_b32 m0, s33")
    E("s_cmp_eq_u32 s22, 0")
    E("s_waitcnt lgkmcnt(0)")
    E(f"s_cselect_b32 s{SX}, s6, s8\ns_cselect_b32 s{SX+1}, s7, s9")
    E("s_cmp_lt_u32 s20, 4")
    E(f"s_cselect_b32 s{SX}, s4, s{SX}\ns_cselect_b32 s{SX+1}, s5, s{SX+1}")
    for q in range(4): E(f"buffer_load_dwordx4 v{VX+q}, s[{SX}:{SX+3}], s32 offen offset:{1024*q} lds")
    E("s_cbranch_scc0 L_B")
    body = E.render()
    atext = wave(False, False)
    nstub = 0
    if cfg.get("pages", 0):
        lines = atext.split("\n")
        bars = [i for i, l in enumerate(lines) if l.strip() == "s_barrier"]
        sz = [isize(l.strip()) if l.strip() else 0 for l in lines]
        cumsz = [0]
        for x in sz: cumsz.append(cumsz[-1] + x)
        cuts = [bars[0]]
        if cfg["pages"] == 4:
            esz = 0x300 + sum(isize(l.strip()) for l in body.split("\n") if l.strip())
            cuts = [[b for b in bars if esz + cumsz[b] <= 4070][-1]]
            if "cut0" in cfg: cuts = [bars[cfg["cut0"]]]
        while cumsz[-1] - cumsz[cuts[-1]] > 4080:
            ok = [b for b in bars if b > cuts[-1] and cumsz[b] - cumsz[cuts[-1]] <= 4080]
            cuts.append(ok[-1])
        touch["at"] = [bars.index(c) for c in cuts]
        out = []
        for i, l in enumerate(lines):
            if i in cuts:
                out += [f"    s_branch L_pg{nstub}", ".p2align 12", f"L_stub{nstub}:", "    s_setpc_b64 s[98:99]", f"L_pg{nstub}:"]
                nstub += 1
            out.append(l)
        atext = "\n".join(out)
        tt = ""
        for p_ in range(1, nstub):
            tt += f"    s_cmp_eq_u32 s21, {(p_ - 1) % 4}\n    s_cbranch_scc0 L_nta{p_}\n    s_call_b64 s[98:99], L_stub{p_}\nL_nta{p_}:\n"
        atext = atext.replace("    @TOUCH@\n", tt)
    touch["n"] = nstub
    body += ".p2align 3\n" + atext
    def bpage(t, nm):
        if not cfg.get("bpages", 0): return t
        i_ = t.index("    s_setprio")
        return t[:i_] + f"    s_branch L_bp{nm}\n.p2align 12\nL_bp{nm}:\n" + t[i_:]
    if off:
        body += ".p2align 6\nL_B:\n    s_cmp_eq_u32 s22, 0\n    s_cbranch_scc0 L_B1\n" + bpage(wave(True, False, 0), 0)
        body += ".p2align 6\nL_B1:\n" + bpage(wave(True, False, 1), 1)
    else:
        body += ".p2align 6\nL_B:\n" + bpage(wave(True, False, 0), 0)
    body += ".p2align 6\nL_spare:\n    s_cmp_lt_u32 s20, 4\n    s_cbranch_scc0 L_Bs\n"
    body += wave(False, True)
    body += ".p2align 6\nL_Bs:\n" + wave(True, True)
    body += "L_end:\n    s_endpgm\nL_codeend:\n"
    return single_file(body, 256, 512, 163840, 256)

R = "r"
DEF = dict(sp=[0, 2], al=[3, 4, 5, 6, 7], bgroups=[(1, [1, 2, 3, 4, 5, 6, 7, 8])],
           sched={("W", 1): -1, ("Y", 0): -1, ("X", 1): 0, ("W", 2): 0, ("W", 3): 1, ("X", 2): 2, ("W", 4): 1, ("W", 5): 2, ("Y", 1): 3, ("X", 3): 4,
                  ("W", 6): 3, ("W", 7): 4, ("X", 4): 5, ("X", 5): 6},
           dsched={0: 6, 1: 7, 2: 8, 3: 9, 4: 10, 5: 11, 6: 12, 7: -2, 8: -1, 9: 0, 10: 1, 11: 1, 12: 2, 13: 2},
           stage={9: 11, 10: 13, 11: 14, 12: 14, 13: 15},
           nobar2=(6,), eon=4, eon2=5, eoff=45, prio=(1, 2), prio_at={9: 0, (0,): 2},
           tag_pts=((9, 99), (10, 99)),
           flag_pts={1: (12, 0), 3: (14, 0), 5: (-1, 0, R), 6: (1, 0, R), 7: (3, 0, R)},
           pgroups=[(0, 3), (3, 7), (7, 10), (10, 12), (12, 14)],
           ppts=[((-4, 0, R), (-3, 99, R)), ((-2, 0, R), (-1, 99, R)), ((0, 99, R), (1, 99, R)), ((2, 99, R), (3, 99, R)), ((4, 0, R), (4, 99, R))],
           ppts_s=[((-3, 99, R), (-3, 99, R)), ((-2, 99, R), (-2, 99, R)), ((1, 99, R), (1, 99, R)), ((3, 99, R), (3, 99, R)), ((4, 99, R), (4, 99, R))],
           hper_at={4: 1, 5: 1},
           hmax={-2: 5, -1: 12, 0: 20, 1: 28, 2: 36, 3: 40, 4: 56})
def emit(variants):
    for k, v in variants.items():
        open(k + ".s", "w").write(build(dict(v)))
        open(k + "_lt.s", "w").write(build(dict(v, lite=True)))
NB = dict(DEF, sp=[0, 1], al=[2, 3, 4, 5, 6, 7], bgroups=[],
          sched={("W", 1): -1, ("X", 1): -1, ("W", 2): 0, ("W", 3): 0, ("W", 4): 1, ("X", 2): 1, ("W", 5): 2, ("W", 6): 3, ("X", 3): 3, ("W", 7): 4, ("X", 4): 5, ("X", 5): 6},
          dblk=[3, 8, 9, 4, 5, 6, 7, 1, 2, 0],
          dsched={0: 6, 1: 7, 2: 8, 3: 9, 4: 10, 5: 11, 6: 12, 7: -2, 8: -1, 9: 0, 10: 1, 11: 1, 12: 2, 13: 2},
          stage={9: 13, 10: 14, 11: 15, 12: 16, 13: 17},
          prio=(1, 0), prio_at={}, tag_pts=((8, 99), (9, 99)),
          flag_pts={1: (14, 0), 3: (17, 0), 5: (0, 0, R), 6: (2, 0, R), 7: (3, 0, R)},
          ppts=[((-4, 0, R), (-3, 99, R)), ((-2, 99, R), (-1, 99, R)), ((1, 0, R), (1, 99, R)), ((3, 0, R), (3, 99, R)), ((4, 0, R), (4, 99, R))],
          eon_at={16: 6, 17: 6, 18: 6, 19: 6}, eon2=6)
NC = dict(NB, flag_pts={1: (13, 0), 3: (16, 0), 5: (-1, 0, R), 6: (1, 0, R), 7: (3, 0, R)},
          ppts=[((-4, 0, R), (-3, 99, R)), ((-2, 99, R), (-1, 99, R)), ((0, 99, R), (1, 99, R)), ((2, 99, R), (3, 99, R)), ((4, 0, R), (4, 99, R))])
ND = dict(NC, dsched={0: 8, 1: 9, 2: 10, 3: 11, 4: 12, 5: 13, 6: 14, 7: -2, 8: -1, 9: 0, 10: 1, 11: 1, 12: 2, 13: 2}, stage={9: 15, 10: 16, 11: 17, 12: 14, 13: 16})
NE = dict(NC, dsched={0: 4, 1: 6, 2: 7, 3: 7, 4: 9, 5: 10, 6: 11, 7: -2, 8: -1, 9: 0, 10: 1, 11: 1, 12: 2, 13: 2}, stage={9: 12, 10: 13, 11: 14, 12: 15, 13: 16},
          spare_order="wx", look=6)
NF = dict(NE, hold=(0, 2, 4), aflag={3: 1, 5: 3, 6: 5, 7: 6}, atag=(7, 8), flag_pts={7: (3, 0, R)})
SG = {("W", 1): -1, ("X", 1): -1, ("W", 2): 0, ("W", 3): 0, ("W", 4): 1, ("X", 2): 1, ("W", 5): 2, ("X", 3): 2, ("W", 6): 3, ("W", 7): 4, ("X", 4): 4, ("X", 5): 5}
NG = dict(NE, hold=(0, 2, 4), nobar=(6, 7), sched=SG, blk={("X", 5): 3},
          dblk=[8, 9, 4, 5, 6, 7, 3, 1, 2, 0],
          dsched={0: 5, 1: 5, 2: 8, 3: 8, 4: 10, 5: 11, 6: 12, 7: -2, 8: -1, 9: 0, 10: 1, 11: 1, 12: 2, 13: 2},
          stage={9: 13, 10: 14, 11: 15, 12: 16, 13: 17})
OF = dict(NC, look=6, off={0: 3, 2: 3, 3: 3, 4: 3, 5: 3, 6: 3, 7: 3}, eon=3, eon_at={}, eoff=46,
          dblk=[8, 9, 4, 5, 6, 7, 1, 2, 0, 3],
          dsched={0: 6, 1: 7, 2: 8, 3: 9, 4: 10, 5: 11, 6: 18, 7: -1, 8: 0, 9: 2, 10: 1, 11: 1, 12: 2, 13: 3},
          stage={8: 12, 9: 13, 10: 14, 11: 15, 12: 16, 13: 17},
          tag_pts=((7, 99), (8, 99)), eoff_at={21: 90}, epi_first=(21,), prio_at={21: 2},
          flag_pts={1: (12, 99), 3: (16, 50), 5: (0, 50, R), 6: (2, 0, R), 7: (3, 0, R)},
          ppts=[((-5, 99, R), (-4, 99, R)), ((-1, 0, R), (-1, 99, R)), ((1, 50, R), (1, 99, R)), ((3, 0, R), (3, 99, R)), ((4, 0, R), (4, 99, R))])
O1 = dict(NC, look=6, off={0: 7}, eon=3, eoff=30, mix=1, tag_pts=((7, 99), (8, 99)),
          flag_pts={1: (13, 99), 3: (16, 0), 5: (-1, 0, R), 6: (1, 0, R), 7: (3, 0, R)}, eon_at={16: 5, 17: 5, 18: 5, 19: 5})
T1_ = dict(NE, hold=(0, 2, 4), tag_pts=((6, 99), (11, 99)), mix=1)
T2_ = dict(NC, look=6, tag_pts=((6, 99), (11, 99)), mix=1)
SE = {("W", 1): -1, ("X", 1): -1, ("W", 2): 0, ("W", 3): 0, ("W", 4): 1, ("X", 2): 1, ("W", 5): 2, ("W", 6): 3, ("X", 3): 3, ("W", 7): 4, ("X", 4): 5, ("X", 5): 5, ("X", 6): 6}
E1 = dict(T2_, defer=0, es=9, xring=4, sched=SE, look=8, look2=7,
          dblk=[8, 9, 4, 5, 6, 7, 0, 1, 2, 3],
          dsched={0: 6, 1: 7, 2: 8, 3: 9, 4: 10, 5: 11, 6: 17, 7: -2, 8: -1, 9: 0, 10: 1, 11: 1, 12: 2, 13: 2},
          stage={9: 12, 10: 13, 11: 14, 12: 15, 13: 16})
ORD = [0, 4, 7, 11, 1, 5, 8, 12, 2, 6, 9, 13, 3, 10]
def inter(base, start, xr4):
    ds = dict(base["dsched"]); stg = {}
    for n, j in enumerate(ORD):
        if j >= (6 if xr4 else 7): stg[j] = start + n
        else: ds[j] = start + n
    return dict(base, dsched=ds, stage=stg)
if __name__ == "__main__":
    B0_ = dict(T2_, defer=0, sh1=16, look=6, dblk=[3, 4, 5, 6, 8, 7, 9, 1, 2, 0])
    I1 = dict(inter(B0_, 6, False), split16=1, eon_at={}, eon2=4)
    O2 = dict(I1, off={0: 9}, eon=3, eoff=30, tag_pts=((6, 99), (8, 99)), flag_pts={1: (13, 99), 3: (16, 0), 5: (0, 0, R), 6: (2, 0, R), 7: (3, 0, R)})
    O3 = dict(O2, eon_at={16: 4, 17: 4, 18: 4, 19: 4}, flag_pts={1: (13, 99), 3: (16, 0), 5: (-1, 0, R), 6: (1, 0, R), 7: (3, 0, R)})
    P_ = dict(I1, pages=3, bpages=1)
    F1 = dict(P_, eon2=99, flag_pts={1: (13, 0), 3: (16, 0), 5: (-1, 0, R), 6: (1, 0, R), 7: (2, 0, R)},
              ppts=[((-4, 0, R), (-3, 99, R)), ((-2, 99, R), (-1, 99, R)), ((0, 99, R), (1, 99, R)), ((2, 99, R), (3, 99, R)), ((3, 99, R), (4, 99, R))])
    F2 = dict(F1, eon2=12)
    F3 = dict(F1, flag_pts={1: (13, 0), 3: (16, 0), 5: (-1, 0, R), 6: (2, 0, R), 7: (2, 0, R)},
              ppts=[((-4, 0, R), (-3, 99, R)), ((-2, 99, R), (-1, 99, R)), ((0, 99, R), (1, 99, R)), ((3, 0, R), (3, 99, R)), ((3, 99, R), (4, 99, R))])
    F4 = dict(F1, dsched={**F1["dsched"], 10: 1, 11: 2, 12: 3, 13: 4})
    def reord(base, order, start, staged):
        ds = dict(base["dsched"]); stg = {}
        for n, j in enumerate(order):
            if j is None: continue
            if j in staged: stg[j] = start + n
            else: ds[j] = start + n
        return dict(base, dsched=ds, stage=stg)
    G1 = reord(F4, [0, 4, 11, 9, 1, 5, 12, None, 2, 6, 13, 3], 6, (9, 11, 12, 13))
    G2 = dict(F4, hmax={-2: 3, -1: 8, 0: 16, 1: 26, 2: 34, 3: 40, 4: 56}, hper_at={1: 1, 4: 1, 5: 1})
    G3 = dict(F4, eon2=12)
    G4 = dict(F4, eon_at={16: 5, 17: 5, 18: 3, 19: 3})
    G5 = dict(G1, hmax=G2["hmax"], hper_at=G2["hper_at"], eon2=12)
    G6 = dict(F4, nobar=(5, 7), sched={**F4["sched"], ("X", 4): 4}, dsched={**F4["dsched"]})
    X1 = dict(F4, xrot=1, spare_order="pw12b3", crot=2)
    X2 = dict(X1, spare_order="pw1b23")
    ST = (7, 8, 9, 10, 11, 12, 13)
    def fix(c):
        return dict(c, dsched={**c["dsched"], **{j: F4["dsched"][j] for j in ST}})
    Y1 = fix(reord(X1, [0, None, 4, 7, 11, 1, 5, 8, 12, 2, 6, 9, 13, 3, 10], 4, ST))
    Y2 = fix(reord(X1, ORD, 5, ST))
    Y3 = dict(X1, nobar=(5, 7), sched={**F4["sched"], ("X", 4): 4})
    Y4 = dict(Y2, nobar=(3, 5, 7), sched={("W", 1): -1, ("X", 1): -1, ("W", 2): 0, ("W", 3): 0, ("W", 4): 1, ("X", 2): 1, ("W", 5): 2, ("X", 3): 2, ("W", 6): 4, ("W", 7): 4, ("X", 4): 4, ("X", 5): 6})
    Y5 = dict(X1, bk=4)
    Z = dict(X1, spare_order="pwm", pages=0, bpages=0)
    S4 = {("W", 1): -1, ("X", 1): -1}
    for i_ in range(2, 8): S4[("W", i_)] = i_ - 2; S4[("X", i_)] = i_ - 2
    N4 = dict(Z, sp=[0, 1, 2, 3], al=[4, 5, 6, 7], sched=S4, eon=6, tag_pts=((5, 99), (9, 99)),
              flag_pts={1: (12, 0), 3: (13, 99), 5: (-1, 0, R), 6: (1, 0, R), 7: (2, 0, R)},
              ppts=[((-3, 0, R), (-3, 99, R)), ((-2, 99, R), (-1, 99, R)), ((0, 99, R), (1, 99, R)), ((2, 99, R), (3, 99, R)), ((3, 99, R), (4, 99, R))])
    def pack(base, slots):
        ds = dict(base["dsched"]); stg = {}
        for st_, js in slots.items():
            for j in js:
                if j >= 7: stg[j] = st_
                else: ds[j] = st_
        return dict(base, dsched=ds, stage=stg)
    N4a = pack(N4, {6: [0], 7: [4], 8: [7, 11], 9: [1], 10: [5, 8], 11: [12, 2], 12: [6, 9], 13: [13, 3], 14: [10]})
    N4b = pack(N4, {6: [0], 7: [4], 8: [11], 9: [1], 10: [5], 11: [12], 12: [2], 13: [6], 14: [3]})
    D1 = dict(Z, defer=1, late_at=({0: 999}, {3: 30, 5: 999}))
    D2 = dict(Z, defer=1, late_at=({0: 80, 1: 40, 2: 15, 4: 999}, {3: 30, 5: 999}))
    D3 = dict(Z, defer=1, late_at=({1: 40, 2: 20, 4: 20, 6: 20, 7: 20, 8: 999}, {3: 30, 5: 999}))
    D4 = dict(D2, cmode=1, crot=0)
    D5 = dict(D2, spare_order="pw")
    D6 = dict(Z, defer=1, late_at=({0: 90, 1: 999}, {1: 999}))
    D7 = dict(Z, defer=1, late_at=({0: 999}, {1: 999}))
    SQ = {("W", 1): -1, ("W", 2): -1, ("X", 1): 0, ("W", 3): 0, ("W", 4): 1, ("X", 2): 1, ("W", 5): 2, ("W", 6): 3, ("X", 3): 3, ("W", 7): 4, ("X", 4): 5, ("X", 5): 6}
    D8 = dict(D6, sched=SQ)
    D9 = dict(D6, pages=3)
    def keep(c): return dict(c, dsched={**c["dsched"], **{j: Z["dsched"][j] for j in range(7, 14)}})
    K1 = keep(reord(Z, [0, 4, 11, 10, 1, 5, 12, 9, 2, 6, 13, 3], 6, (9, 10, 11, 12, 13)))
    K2 = keep(reord(Z, [0, 4, 11, None, 1, 5, 12, None, 2, 6, 13, 3], 6, (11, 12, 13)))
    K3 = dict(K1, dsched={**K1["dsched"], 9: 0, 10: 1, 11: 1, 12: 2, 13: 2}, nobar2=(6,))
    K4 = dict(K1, eon2=16)
    K5 = dict(K1, hmax={-2: 6, -1: 12, 0: 18, 1: 28, 2: 36, 3: 40, 4: 56}, hper_at={1: 1, 4: 1, 5: 1})
    K6 = dict(K1, prio=(2, 0))
    ST7 = (7, 8, 9, 10, 11, 12, 13)
    L1 = keep(reord(Z, [0, 7, 4, 1, 8, 5, 2, 9, 6, 3, 10, 11, 12, 13], 6, ST7))
    L2 = keep(reord(Z, [0, 7, 4, 1, 8, 5, 2, 9, 6, 3, 10, 11, 12, 13], 5, ST7))
    L3 = keep(reord(Z, [0, None, 4, 1, None, 5, 2, 9, 6, 3, 10, 11], 6, (9, 10, 11)))
    L4 = keep(reord(Z, [0, 4, 1, 5, 2, 9, 6, 3, 10, 11, 12, 13], 6, (9, 10, 11, 12, 13)))
    L5 = dict(L1, pages=3)
    W1 = dict(L1, spare_order="pwmx")
    W2 = dict(W1, pages=4, cut0=4, tdist=4, bpages=1)
    W3 = dict(W2, tk=8, tb=3)
    W4 = dict(W3, o64=1, outsc="sc1")
    W5 = dict(W4, elast=3)
    W6 = dict(W5, es=21, dsched={**W5["dsched"], 10: 1, 11: 2, 12: 2, 13: 3})
    W7 = dict(W5, es=20, dsched={**W5["dsched"], 10: 1, 11: 2, 12: 2, 13: 3})
    W8 = dict(W5, estart=3)
    W9 = dict(W5, flag_pts={1: (13, 0), 3: (16, 0), 5: (0, 0, R), 6: (2, 0, R), 7: (2, 0, R)},
              ppts=[((-4, 0, R), (-3, 99, R)), ((-2, 99, R), (-1, 99, R)), ((1, 0, R), (1, 99, R)), ((3, 0, R), (3, 99, R)), ((3, 99, R), (4, 99, R))])
    def slots(base, sl, staged):
        ds = dict(base["dsched"]); stg = {}
        for st_, js in sl.items():
            for j in js:
                if j in staged: stg[j] = st_
                else: ds[j] = st_
        return dict(base, dsched=ds, stage=stg)
    BF = dict(W5, al=[2, 3, 4, 6, 7], bgroups=[(5, [5, 6, 7, 8, 9, 10, 11, 12])], dblk=[3, 4, 5, 9, 6, 7, 8, 2, 0, 1],
              sched={**W5["sched"], ("Y", 0): 2, ("Y", 1): 7}, eoff=45, prio=(1, 0), tag_pts=((12, 99), (13, 50)),
              flag_pts={1: (13, 50), 3: (15, 99), 5: (-1, 99, R), 6: (1, 0, R), 7: (2, 0, R)},
              ppts=[((-4, 99, R), (-3, 99, R)), ((-1, 0, R), (-1, 99, R)), ((0, 99, R), (1, 99, R)), ((2, 99, R), (3, 99, R)), ((3, 99, R), (4, 99, R))])
    BF1 = slots(BF, {6: [0], 8: [7], 9: [4], 10: [1], 11: [8], 12: [5], 13: [2], 14: [9, 6], 15: [3, 10], 16: [11, 12], 17: [13]}, (7, 8, 9, 10, 11, 12, 13))
    FIN = dict(W5, codepf=5)
    BG = dict(FIN, al=[2, 3, 4, 5, 7], bgroups=[(6, [8, 9, 10, 11, 12, 13, 14, 15])], dblk=[3, 4, 5, 9, 6, 7, 8, 2, 0, 1],
              sched={**FIN["sched"], ("Y", 0): 6, ("Y", 1): 9}, eoff=45, prio=(1, 0), tag_pts=((7, 99), (8, 0)), eon_at={16: 6, 17: 6},
              flag_pts={1: (13, 0), 3: (16, 0), 5: (1, 0, R), 6: (1, 99, R), 7: (2, 0, R)},
              ppts=[((-3, 99, R), (-2, 99, R)), ((-1, 50, R), (0, 99, R)), ((2, 0, R), (2, 99, R)), ((3, 0, R), (3, 99, R)), ((3, 99, R), (4, 99, R))],
              hmax={-1: 10, 0: 12, 1: 28, 2: 28, 3: 40, 4: 56}, hper_at={-1: 1, 1: 1, 3: 1, 4: 1, 5: 1})
    BG1 = slots(BG, {7: [0], 8: [4], 10: [1], 11: [5], 12: [2], 13: [6], 14: [10], 15: [11], 16: [3]}, (10, 11))
    BG1["dsched"].update({7: -2, 8: -1, 9: 0, 10: 1, 11: 2, 12: 2, 13: 3})
    BH = dict(FIN, al=[2, 3, 4, 6, 7], bgroups=[(5, [7, 8, 9, 10, 11, 12, 13, 14])], dblk=[3, 4, 5, 9, 6, 7, 8, 2, 0, 1],
              sched={**FIN["sched"], ("Y", 0): 5, ("Y", 1): 9}, eoff=60, prio=(1, 0), tag_pts=((6, 99), (7, 0)),
              flag_pts={1: (13, 0), 3: (16, 0), 5: (0, 0, R), 6: (1, 0, R), 7: (2, 0, R)},
              ppts=[((-4, 99, R), (-3, 99, R)), ((-1, 0, R), (-1, 99, R)), ((1, 0, R), (1, 99, R)), ((2, 99, R), (3, 99, R)), ((3, 99, R), (4, 99, R))])
    BH1 = slots(BH, {7: [0], 8: [4], 10: [1], 11: [5], 12: [2], 13: [6], 14: [10], 15: [], 16: [3]}, (10,))
    BH1["dsched"].update({7: -1, 8: -1, 9: 0, 10: 1, 11: 2, 12: 2, 13: 3})
    BI = dict(BG, tag_pts=((9, 0), (9, 99)),
              ppts=[((-3, 0, R), (-3, 99, R)), ((-1, 0, R), (-1, 99, R)), ((1, 99, R), (2, 99, R)), ((3, 0, R), (3, 99, R)), ((3, 99, R), (4, 99, R))],
              flag_pts={1: (13, 0), 3: (15, 99), 5: (1, 0, R), 6: (1, 99, R), 7: (2, 0, R)},
              hmax={-2: 5, -1: 12, 0: 20, 1: 28, 2: 28, 3: 40, 4: 56}, hper_at={3: 1, 4: 1, 5: 1}, eoff=30)
    BI1 = slots(BI, {5: [0], 7: [4], 8: [1], 10: [5], 11: [2], 12: [6], 13: [10], 14: [11], 16: [3]}, (10, 11))
    BI1["dsched"].update({7: -2, 8: -1, 9: 0, 10: 1, 11: 1, 12: 2, 13: 2})
    BI2 = slots(BI, {5: [0], 7: [4], 8: [1], 10: [5], 11: [2], 12: [6], 13: [7], 14: [8], 16: [3], 17: [12, 13]}, (7, 8, 12, 13))
    BI2["dsched"].update({7: -2, 8: -1, 9: 0, 10: 1, 11: 2, 12: 2, 13: 3})
    SA = {("W", 1): -1, ("X", 1): 0, ("W", 2): 0, ("W", 3): 1, ("W", 4): 1, ("X", 2): 2, ("W", 5): 2, ("W", 6): 3, ("X", 3): 4, ("W", 7): 4, ("X", 4): 5, ("X", 5): 6}
    SB = {("W", 1): -1, ("W", 2): -1, ("X", 1): -1, ("W", 3): 0, ("X", 2): 0, ("W", 4): 1, ("W", 5): 2, ("X", 3): 2, ("W", 6): 3, ("W", 7): 4, ("X", 4): 4, ("X", 5): 6}
    L6 = keep(reord(FIN, [0, 7, 4, 1, 8, 5, 2, 9, 6, 3, 10, 11, 12], 7, (7, 8, 9, 10, 11, 12)))
    Q = dict(FIN, eon=12, mix=0)
    Q1 = dict(Q, flag_pts={1: (12, 0), 3: (15, 0), 5: (-1, 0, R), 6: (1, 0, R), 7: (2, 0, R)},
              ppts=[((-5, 0, R), (-4, 99, R)), ((-3, 0, R), (-2, 99, R)), ((0, 99, R), (1, 99, R)), ((2, 99, R), (3, 99, R)), ((3, 99, R), (4, 99, R))])
    Q2 = dict(Q1, hmax={-2: 4, -1: 16, 0: 22, 1: 28, 2: 36, 3: 40, 4: 56}, hper_at={-1: 1, 4: 1, 5: 1})
    Q3 = slots(Q2, {6: [0], 7: [7], 8: [4, 1], 10: [8, 5], 11: [2], 12: [9, 6], 13: [3], 14: [10, 11], 16: [12, 13]}, ST7)
    Q4 = dict(Q3, flag_pts={1: (12, 0), 3: (15, 0), 5: (-2, 99, R), 6: (0, 99, R), 7: (2, 0, R)},
              ppts=[((-5, 0, R), (-4, 99, R)), ((-3, 0, R), (-2, 99, R)), ((0, 0, R), (0, 99, R)), ((2, 0, R), (2, 99, R)), ((3, 99, R), (4, 99, R))],
              hmax={-2: 4, -1: 16, 0: 22, 1: 30, 2: 38, 3: 48, 4: 48, 5: 56}, hper_at={-1: 1, 5: 1})
    Q5 = dict(Q3, estart=2)
    U1 = dict(FIN, dsched={**FIN["dsched"], 7: 0, 8: 0, 9: 0})
    U2 = dict(U1, elast=1)
    U3 = dict(FIN, dsched={**FIN["dsched"], 7: -2, 8: 0, 9: 0}, eon_at={18: 170}, elast=1)
    U4 = dict(U2, eon_at={16: 8, 17: 8})
    U5 = dict(U2, eon_at={16: 170, 18: 170})
    V = dict(U1, sh2=16, elast=6, eon2=200)
    VC = dict(V, rsplit=1, es=21, dsched={**V["dsched"], 10: 1, 11: 2, 12: 2, 13: 3})
    PBc = dict(VC, stage={}, es=21, nobar2=(4,), trs={0: 8, 1: 11, 2: 14, 3: 11},
               dblk=[3, 9, 3, 8, 4, 5, 9, 6, 7, 8, 3, 1, 2, 0],
               dsched={0: 6, 7: 7, 4: 8, 1: 9, 3: 9, 8: 10, 5: 11, 2: 12, 9: 13, 6: 14, 10: 15, 11: 18, 12: 19, 13: 20},
               tag_pts=((6, 99), (7, 99)), eon_at={12: 8, 13: 8, 18: 170},
               flag_pts={1: (13, 0), 3: (15, 0), 5: (19, 0), 6: (0, 0, R), 7: (2, 0, R)},
               ppts=[((-6, 99, R), (-5, 99, R)), ((-4, 99, R), (-3, 99, R)), ((0, 0, R), (0, 99, R)), ((1, 50, R), (1, 99, R)), ((2, 50, R), (2, 99, R))],
               ppts_s=[((-3, 99, R), (-3, 99, R)), ((-2, 99, R), (-2, 99, R)), ((0, 99, R), (0, 99, R)), ((1, 99, R), (1, 99, R)), ((2, 99, R), (2, 99, R))],
               bact={(-4, 50): ["h0", "h1"], (-3, 50): ["h2", "m0"], (-2, 50): ["h3", "m1"], (-1, 50): ["m2"], (0, 50): ["m3"]},
               bact_s={(-3, 99): ["h0", "h1", "h2", "m0"], (-2, 99): ["h3", "m1", "m2", "m3"]},
               hmax={-2: 21, -1: 28, 0: 28, 1: 40, 2: 48, 3: 56}, hper_at={1: 1, 2: 1, 3: 1})
    PC = dict(PBc, trs={0: 8, 1: 11, 2: 14, 3: 18}, dblk=[3, 9, 3, 3, 4, 5, 9, 6, 7, 8, 3, 1, 2, 0],
              dsched={0: 6, 7: 7, 4: 8, 1: 9, 8: 10, 5: 11, 2: 12, 9: 13, 6: 14, 3: 15, 11: 18, 12: 20, 10: 20, 13: 21},
              tag_pts=((8, 99), (10, 99)), atag=(12, 13), aflag={(0, 4): 6, (1, 16): 7},
              flag_pts={1: (13, 0), 3: (15, 0), 5: (19, 0)},
              bact={(-4, 50): ["h0"], (-3, 50): ["h1", "m0"], (-2, 0): ["h2", "h3"], (-2, 50): ["m1"], (-1, 50): ["m2"], (0, 50): ["m3"]},
              ppts=[((-6, 99, R), (-5, 99, R)), ((-4, 99, R), (-3, 99, R)), ((0, 0, R), (0, 99, R)), ((1, 50, R), (1, 99, R)), ((2, 0, R), (2, 99, R))])
    PD = dict(PC, eon_at={12: 8, 13: 8, 16: 170, 18: 170}, flag_pts={1: (13, 0), 3: (15, 0), 5: (18, 99)}, aflag={(-1, 24): 6, (1, 10): 7},
              ppts=[((-6, 99, R), (-5, 99, R)), ((-4, 99, R), (-3, 99, R)), ((-1, 99, R), (0, 99, R)), ((1, 0, R), (1, 99, R)), ((2, 0, R), (2, 99, R))])
    PE = dict(PC, trs={0: 11, 1: 12, 2: 14, 3: 14}, dblk=[3, 9, 7, 8, 4, 5, 8, 6, 3, 9, 7, 1, 2, 0],
              dsched={0: 6, 7: 7, 4: 8, 1: 9, 5: 12, 2: 10, 3: 11, 8: 13, 9: 14, 6: 15, 10: 19, 11: 18, 12: 20, 13: 20},
              tag_pts=((7, 99), (10, 99)), eon_at={18: 170}, flag_pts={1: (13, 0), 3: (16, 0), 5: (19, 0)},
              bact={(-4, 50): ["h0"], (-3, 50): ["h1"], (-2, 50): ["h2", "m0", "m1"], (-1, 0): ["h3"], (0, 50): ["m2", "m3"]},
              ppts=[((-6, 99, R), (-5, 99, R)), ((-3, 99, R), (-2, 99, R)), ((0, 0, R), (0, 99, R)), ((1, 0, R), (1, 99, R)), ((2, 0, R), (2, 99, R))],
              pwk=50, hmax={-1: 26, 0: 28, 1: 40, 2: 48, 3: 56}, hper_at={-1: 1, 1: 1, 2: 1, 3: 1})
    PF = dict(PE, eon_at={12: 6, 13: 6, 18: 170}, flag_pts={1: (13, 0), 3: (15, 99), 5: (19, 0)},
              ppts=[((-6, 99, R), (-5, 99, R)), ((-3, 0, R), (-3, 99, R)), ((0, 0, R), (0, 99, R)), ((1, 0, R), (1, 99, R)), ((2, 0, R), (2, 99, R))],
              hmax={-2: 21, -1: 28, 0: 28, 1: 40, 2: 48, 3: 56}, hper_at={1: 1, 2: 1, 3: 1})
    PG = dict(PE, pw=2, pwk=0, ppts=PE["ppts"][:4] + [((2, 0, R), (2, 99, R))])
    PH = dict(PE, trs={0: 11, 1: 12, 2: 13, 3: 14}, nobar2=(1, 4), pw=2, pwk=50,
              dsched={0: 6, 7: 7, 4: 8, 1: 9, 2: 10, 3: 11, 5: 12, 8: 13, 9: 14, 6: 15, 10: 16, 11: 18, 12: 20, 13: 20},
              eon_at={16: 170, 18: 170}, flag_pts={1: (13, 0), 3: (16, 0), 5: (18, 99)}, aflag={(0, 2): 6, (1, 12): 7},
              bact={(-3, 50): ["h0", "h1"], (-2, 50): ["h2", "m0"], (-1, 0): ["h3"], (-1, 50): ["m1"], (0, 50): ["m2", "m3"]},
              ppts=[((-5, 0, R), (-4, 99, R)), ((-3, 99, R), (-2, 99, R)), ((-1, 50, R), (-1, 99, R)), ((1, 0, R), (1, 99, R)), ((2, 0, R), (2, 99, R))],
              ppts_s=[((-3, 99, R), (-3, 99, R)), ((-2, 99, R), (-2, 99, R)), ((-1, 99, R), (-1, 99, R)), ((1, 99, R), (1, 99, R)), ((2, 99, R), (2, 99, R))],
              hmax={-1: 24, 0: 32, 1: 40, 2: 48, 3: 56}, hper_at={2: 1, 3: 1})
    PI = dict(PH, flag_pts={1: (13, 0), 3: (16, 0), 5: (18, 0)})
    emit({"v73a": PH, "v73b": PI})
```

```python
import sys, struct, math, re
from common import *
from gen3 import Stream, f2u, C0, C1, isize

BLK = 16384
FO = 8 << 20
FSZ = 897 * 128
HSTR = 112
WR = 0
ACC = [128, 144, 160, 176, 192]
POOL = 208; NPOOL = 6
TMP = 232
XA = 240
WA = 244
L16 = 245
CC0 = 246
DA = 176
VOUT, VEX = 249, 250
LT = 252
VX = 192
PR = 196
VW = 200
VD = 176
VF, VF2, TAG, FV = 180, 181, 182, 183
HOLDR = 200
VE_A = VE_B = -1000
T1, T2, T3, LANE, T4, T5 = TMP, TMP + 1, TMP + 2, TMP + 3, TMP + 4, TMP + 5
SX, SW, SD, SH, SF = 40, 44, 48, 52, 56
TB = 60
HS = 76

def build(cfg):
    SH1 = cfg.get("sh1", 32)
    MUL = 2 if SH1 == 16 else 1
    XROT = cfg.get("xrot", 0)
    SH2 = cfg.get("sh2", 32)
    MUL2 = 2 if SH2 == 16 else 1
    lite = cfg.get("lite", False)
    bgroups = cfg["bgroups"]
    SP = cfg["sp"]
    AL = cfg["al"]
    assert sorted(SP + AL + [g for g, _ in bgroups]) == list(range(8))
    P2 = 8 + 2 * len(AL); LAST = P2 + 6; NST = LAST + 1
    NS = len(SP); NA = NS + 1; XS = 2 * NS
    NX = XS + 2 * len(AL)
    groups = {0: SP + AL, 1: [g for g, _ in bgroups]}
    accof = {g: i % NA for S_ in (0, 1) for i, g in enumerate(groups[S_])}
    A2 = [ACC[(len(groups[0])) % NA], ACC[(len(groups[0]) + 1) % NA]]
    RED = ACC[(len(groups[0]) + 2) % NA]
    ES = cfg.get("es", 99)
    XR = cfg.get("xring", 3)
    vstep = lambda t: t - 1 if t >= ES else t
    blk = {("X", j): j % XR for j in range(NX)}
    blk.update({("W", i): 4 + i % 4 for i in range(8)})
    blk.update({("Y", j): 8 + j % 2 for j in range(2 * len(bgroups))})
    blk.update(cfg.get("blk", {}))
    dorder = cfg.get("dblk", [3, 4, 5, 6, 7, 8, 9, (NX - 3) % 3, (NX - 2) % 3, (NX - 1) % 3])
    blk.update({("D", j): dorder[j % 10] for j in range(14)})
    off = cfg.get("off", {})
    gend = {g: 8 for g in SP}
    gend.update({g: 10 + 2*n for n, g in enumerate(AL)})
    eowner = lambda g: 1 if (g in off or g in groups[1]) else 0
    baccof = {g: i % 3 for i, g in enumerate(sorted(off, key=lambda g: (gend[g], g)))}
    plan = {s: [] for s in range(-1, NST)}
    sched = dict(cfg["sched"])
    for j in range(XS, NX): sched.setdefault(("X", j), j - XS + 9 - XR)
    for j, s in cfg["dsched"].items(): sched[("D", j)] = s + (P2 if j >= 7 else 0)
    for k in "WXYD":
        for it in sorted(x for x in sched if x[0] == k): plan[sched[it]].append(it)
    def first_use(it):
        k, i = it
        if k == "W": return i
        if k == "X": return (i * 8 // XS) if i < XS else i - XS + 8
        if k == "Y": return min(bgroups[i // 2][1][4*(i % 2):4*(i % 2) + 4])
        return P2 + min(i, 10) // 2
    def last_use(it):
        k, i = it
        if k == "Y": return max(bgroups[i // 2][1][4*(i % 2):4*(i % 2) + 4])
        return first_use(it) + (1 if k == "X" and i < XS and NS == 2 else 0)
    nobar = set(P2 + x for x in cfg.get("nobar2", ())) | set(cfg.get("nobar", ()))
    def prev_bar(s):
        while s in nobar: s -= 1
        return s
    def next_bar(s):
        s += 1
        while s in nobar: s += 1
        return s
    occ = {0: ("X", 0), 4: ("W", 0)}
    lu = lambda it: (gend[it[1]] + 1 if it[0] == "E" else last_use(it))
    for s in range(-1, NST):
        for it in plan[s] + [("E", g) for g in off if gend[g] == s]:
            b = off[it[1]] if it[0] == "E" else blk[it]
            if b in occ: assert lu(occ[b]) < prev_bar(s), (it, s, occ[b])
            if it[0] == "E": assert s + 1 not in nobar
            else: assert next_bar(s) <= vstep(first_use(it)), it
            occ[b] = it
    assert set(sched) | {("X", 0), ("W", 0)} == set(blk), set(blk) - set(sched)
    XJ = max(j for j in range(4, 10) if first_use(("D", j)) < prev_bar(LAST))
    rel = lambda p: (p[0] + P2 if len(p) > 2 else p[0], p[1])
    flag_pts = {g: rel(p) for g, p in cfg["flag_pts"].items()}
    stage = cfg.get("stage", {})
    bend = max([max(bs) + 1 for _, bs in bgroups] + [-1])
    early = sorted(j for j in stage if stage[j] <= bend)
    assert len(early) <= 2
    sreg = {j: 144 + 16 * n for n, j in enumerate(early)}
    sreg.update({j: 16 * n for n, j in enumerate(sorted(j for j in stage if j not in early))})
    hmax = {P2 + s: v for s, v in cfg["hmax"].items()}
    pg = cfg["pgroups"]

    touch = {"n": 0}
    def wave(isB, spare, var=0):
        S = Stream(cfg.get("align", 0))
        sfx = ("b" if isB else "a") + ("s" if spare else "r") + str(var)
        SET = 1 if isB else 0
        VE = VE_B if isB else VE_A
        issued = []
        cut = [None]
        if not spare:
            k = "W" if isB else "X"
            for q in range(4): S.add("", vm=(k, 0, q))
            issued.append((k, 0))
        else:
            S(f"v_and_b32 v{LANE}, 63, v0")
            S("s_waitcnt lgkmcnt(0)")
        S("s_lshl_b32 s33, s21, 12")
        if isB and not spare and cfg.get("wfast", 0):
            for it in plan[-1]:
                if it[0] != "W": continue
                S(f"s_add_u32 m0, s33, {blk[it]*BLK}\ns_bfe_u32 s32, s36, {0x30000 + 4*it[1]:#x}\ns_mul_i32 s32, s32, {64*3584}\ns_add_u32 s32, s32, s37")
                for q in range(4): S.add(f"buffer_load_dwordx4 v{VX+q}, s[{SX}:{SX+3}], s32 offen offset:{1024*q} lds", vm=(it[0], it[1], q))
                issued.append(it)
        S(f"v_lshlrev_b32 v{L16}, 4, v{LANE}")
        S("s_lshr_b32 s23, s21, 1\ns_and_b32 s22, s21, 1")
        if cfg.get("qx", 1):
            S("s_add_u32 s34, s34, s14\ns_sub_u32 s32, s34, 7\ns_min_u32 s34, s34, s32")
        if cfg.get("codepf", True) == 2 and spare:
            S(f"s_getpc_b64 s[{SH}:{SH+1}]")
            S(f"L_pc{sfx}:")
            S(f"s_lshl3_add_u32 s32, s35, s20\ns_min_u32 s32, s32, ((L_codeend-{KNAME})>>10)-1\ns_lshl_b32 s32, s32, 10")
            S(f"s_sub_u32 s{SH}, s{SH}, L_pc{sfx}-{KNAME}")
            S(f"s_subb_u32 s{SH+1}, s{SH+1}, 0")
            S(f"s_add_u32 s{SH}, s{SH}, s32\ns_addc_u32 s{SH+1}, s{SH+1}, 0")
            S(f"v_mov_b32 v{T2}, s{SH+1}")
            S(f"v_add_co_u32 v{T1}, vcc, s{SH}, v{L16}")
            S("s_nop 1")
            S(f"v_addc_co_u32 v{T2}, vcc, 0, v{T2}, vcc")
            S.add(f"global_load_dwordx4 v[204:207], v[{T1}:{T2}], off", vm="pf")
        if cfg.get("codepf", True) == 3 and not isB and not spare:
            S(f"s_lshl2_add_u32 s32, s15, s21\ns_cmp_lt_u32 s32, (L_codeend-{KNAME})>>10\ns_cbranch_scc0 L_nopf")
            S(f"~s_getpc_b64 s[{SH}:{SH+1}]")
            S(f"L_pc{sfx}:")
            S(f"~s_lshl_b32 s32, s32, 10\n~s_sub_u32 s{SH}, s{SH}, L_pc{sfx}-{KNAME}\n~s_subb_u32 s{SH+1}, s{SH+1}, 0")
            S(f"~s_add_u32 s{SH}, s{SH}, s32\n~s_addc_u32 s{SH+1}, s{SH+1}, 0\n~v_mov_b32 v{T2}, s{SH+1}")
            S(f"~v_add_co_u32 v{T1}, vcc, s{SH}, v{L16}\n~s_nop 1\n~v_addc_co_u32 v{T2}, vcc, 0, v{T2}, vcc")
            S(f"~global_load_dwordx4 v[{PR}:{PR+3}], v[{T1}:{T2}], off")
            S("L_nopf:")
        if cfg.get("codepf", True) is True and not isB:
            S(f"s_getpc_b64 s[{SH}:{SH+1}]")
            S(f"L_pc{sfx}:")
            S(f"s_lshl2_add_u32 s32, s15, s21\ns_min_u32 s32, s32, ((L_codeend-{KNAME})>>8)-1\ns_lshl_b32 s32, s32, 8")
            S(f"s_sub_u32 s{SH}, s{SH}, L_pc{sfx}-{KNAME}")
            S(f"s_subb_u32 s{SH+1}, s{SH+1}, 0")
            S(f"s_add_u32 s{SH}, s{SH}, s32\ns_addc_u32 s{SH+1}, s{SH+1}, 0")
            S(f"v_mov_b32 v{T2}, s{SH+1}")
            S(f"v_lshlrev_b32 v{T1}, 2, v{LANE}")
            S(f"v_add_co_u32 v{T1}, vcc, s{SH}, v{T1}")
            S("s_nop 1")
            S(f"v_addc_co_u32 v{T2}, vcc, 0, v{T2}, vcc")
            S.add(f"global_load_dword v{PR}, v[{T1}:{T2}], off", vm="pf")
        gexp = lambda p, r: (f"s_lshl1_add_u32 s{r}, s84, {p}\ns_and_b32 s{r}, s{r}, 7" if p < 6 else f"s_and_b32 s{r}, s{p-6}, 7")
        def item_ops(it):
            k, i = it
            su = ""
            if k == "X" and i < XS and NS == 4:
                su = f"s_bfe_u32 s32, s36, {0x30000 + 4*i:#x}\ns_lshl_b32 s32, s32, 7\ns_add_u32 s32, s32, s3"
                v, srd, so = VX, SX, 32
            elif k == "X" and i < XS:
                su = f"s_bfe_u32 s32, s87, {0x30000 + 8*i:#x}\ns_lshl_b32 s32, s32, 7\ns_add_u32 s32, s32, s3"
                v, srd, so = VX, SX, 32
            elif k in "XY":
                p = AL[(i - XS) // 2] if k == "X" else bgroups[i // 2][0]
                su = gexp(p, 32) + f"\ns_lshl_b32 s32, s32, 15\ns_add_u32 s32, s32, s{93 + i % 2}"
                v, srd, so = VX, SX, 32
            elif k == "W":
                su = f"s_bfe_u32 s32, s36, {0x30000 + 4*i:#x}\ns_mul_i32 s32, s32, {64*3584}\ns_add_u32 s32, s32, s38"
                v, srd, so = VW, SW, 32
            else:
                su = "s_nop 0"
                v, srd, so = VD, SD, TB + i
            su = f"s_add_u32 m0, s33, {blk[it]*BLK}\n" + su
            return su, [(f"buffer_load_dwordx4 v{v+q}, s[{srd}:{srd+3}], s{so} offen offset:{1024*q} lds", (k, i, q)) for q in range(4)]
        def item(it):
            su, dm = item_ops(it)
            S(su)
            for t, tag in dm: S.add(t, vm=tag)
            issued.append(it)
        if isB:
            S(f"s_add_u32 s{SF}, s30, {FO}\ns_addc_u32 s{SF+1}, s31, 0\ns_mov_b32 s{SF+2}, {FSZ}\ns_mov_b32 s{SF+3}, 0x20000")
            S(f"v_lshlrev_b32 v{VF}, 20, v{LANE}")
            S("s_mov_b32 s74, s28\ns_mov_b32 s75, s29")
        if spare and isB:
            S("s_cmp_eq_u32 s2, 224\ns_cselect_b32 s32, s21, 0\ns_cmp_eq_u32 s32, 1")
            S("s_cbranch_scc0 L_notag")
            S("s_mov_b32 s88, s28\ns_mov_b32 s89, s29\ns_mov_b32 s90, 256\ns_mov_b32 s91, 0x20000")
            S(f"s_mov_b32 s32, {FSZ-128}")
            S(f"buffer_load_dword v{PR}, v{VF}, s[{SF}:{SF+3}], s32 offen sc1")
            S(f"v_mov_b32 v{PR+1}, 1")
            S("s_waitcnt vmcnt(0)")
            S(f"v_add_u32 v{PR}, 1, v{PR}")
            S(f"buffer_store_dwordx2 v[{PR}:{PR+1}], v{VF}, s[88:91], 0 offen sc1")
            S(f"buffer_store_dword v{PR}, v{VF}, s[{SF}:{SF+3}], s32 offen sc1")
            S("L_notag:")
            S("s_barrier")
        if not spare:
            S(("s_bfe_u32 s32, s15, 0x10002" if XROT else "s_bfe_u32 s32, s17, 0x10002") + "\ns_lshl1_add_u32 s0, s84, s32\ns_add_u32 s0, s0, 6\ns_xor_b32 s1, s0, 1")
            for hf in range(2):
                S(f"s_lshl2_add_u32 s32, s21, {16*hf}\ns_lshr_b32 s32, s36, s32\ns_and_b32 s32, s32, 7\ns_lshl_b32 s32, s32, 7\ns_add_u32 s{93+hf}, s32, s39")
            S("s_lshl_b32 s32, s23, 2\ns_lshr_b32 s87, s36, s32")
            if isB:
                for q in range(4): S(f"v_mov_b32 v{VW+q}, v{VX+q}")
                S(f"s_mov_b32 s{SW}, s{SX}\ns_mov_b32 s{SW+1}, s{SX+1}\ns_mov_b32 s{SW+2}, 1835008\ns_mov_b32 s{SW+3}, 0x20000")
                S("s_mov_b32 s38, s37")
                S(f"s_mov_b32 s{SX}, s4\ns_mov_b32 s{SX+1}, s5\ns_mov_b32 s{SX+2}, 0x200000")
                S(f"v_lshrrev_b32 v{T1}, 3, v{LANE}\nv_lshrrev_b32 v{T2}, 4, v{LANE}")
                S(f"v_xor_b32 v{T3}, v{T2}, v{LANE}\nv_and_b32 v{T3}, 7, v{T3}\nv_lshlrev_b32 v{T1}, 10, v{T1}")
                S(f"v_lshl_add_u32 v{VX}, v{T3}, 4, v{T1}")
                S(f"v_xor_b32 v{VX+1}, 64, v{VX}")
                S(f"v_add_u32 v{VX+1}, {7*1024}, v{VX+1}")
                S(f"v_add_u32 v{VX+2}, {14*1024}, v{VX}")
                S(f"v_add_u32 v{VX+3}, {14*1024}, v{VX+1}")
            if SH1 == 32:
                S(f"v_and_b32 v{T1}, 31, v{LANE}")
                S(f"v_bfe_u32 v{T2}, v{LANE}, 1, 3")
                S(f"v_lshrrev_b32 v{T3}, 5, v{LANE}")
                S(f"v_xor_b32 v{T2}, v{T2}, v{T3}")
                S(f"v_lshlrev_b32 v{T1}, 7, v{T1}")
                if isB: S(f"v_add_u32 v{T1}, {8*BLK:#x}, v{T1}")
                for ks in range(4):
                    S(f"v_xor_b32 v{T3}, {2*ks}, v{T2}")
                    S(f"v_lshl_add_u32 v{XA+ks}, v{T3}, 4, v{T1}")
                S(f"v_lshrrev_b32 v{T1}, 5, v{LANE}")
                S(f"v_lshlrev_b32 v{T1}, 3, v{T1}")
                S(f"v_bfe_u32 v{T2}, v{LANE}, 2, 2")
                S(f"v_add_u32 v{T1}, v{T1}, v{T2}")
                S(f"v_lshlrev_b32 v{T1}, 7, v{T1}")
                S(f"v_bfe_u32 v{T2}, v{LANE}, 4, 1")
                S(f"v_lshl_add_u32 v{T1}, v{T2}, 13, v{T1}")
                S(f"v_bfe_u32 v{T3}, v{LANE}, 3, 1")
                S(f"v_lshl_add_u32 v{T2}, v{T3}, 1, v{T2}")
                S(f"v_xor_b32 v{T2}, s21, v{T2}")
                S(f"v_lshl_add_u32 v{T1}, v{T2}, 5, v{T1}")
                S(f"v_and_b32 v{T2}, 1, v{LANE}")
                S(f"v_lshl_add_u32 v{T1}, v{T2}, 4, v{T1}")
                S(f"v_bfe_u32 v{T2}, v{LANE}, 1, 1")
                S(f"v_lshl_add_u32 v{T1}, v{T2}, 3, v{T1}")
                S(f"v_add_u32 v{WA}, 0x10000, v{T1}")
            else:
                S(f"v_and_b32 v{T1}, 15, v{LANE}")
                S(f"v_bfe_u32 v{T2}, v{LANE}, 1, 3")
                S(f"v_lshrrev_b32 v{T3}, 4, v{LANE}")
                S(f"v_xor_b32 v{T2}, v{T2}, v{T3}")
                S(f"v_lshlrev_b32 v{T1}, 7, v{T1}")
                if isB: S(f"v_add_u32 v{T1}, {8*BLK:#x}, v{T1}")
                S(f"v_lshl_add_u32 v{XA}, v{T2}, 4, v{T1}")
                S(f"v_xor_b32 v{XA+1}, 64, v{XA}")
                S(f"v_lshlrev_b32 v{T1}, 3, v{T3}")
                S(f"v_bfe_u32 v{T2}, v{LANE}, 2, 2")
                S(f"v_add_u32 v{T1}, v{T1}, v{T2}")
                S(f"v_lshlrev_b32 v{T1}, 7, v{T1}")
                S(f"v_bfe_u32 v{T2}, v{LANE}, 4, 1")
                S(f"v_bfe_u32 v{T3}, v{LANE}, 3, 1")
                S(f"v_lshl_add_u32 v{T2}, v{T3}, 1, v{T2}")
                S(f"v_xor_b32 v{T2}, s21, v{T2}")
                S(f"v_lshl_add_u32 v{T1}, v{T2}, 5, v{T1}")
                S(f"v_and_b32 v{T2}, 3, v{LANE}")
                S(f"v_lshl_add_u32 v{T1}, v{T2}, 3, v{T1}")
                S(f"v_add_u32 v{WA}, 0x10000, v{T1}")
            for it in plan[-1]:
                if (it[0] == "W") == isB and it not in issued: item(it)
            if cfg.get("defer", 1): cut[0] = len(S.ins)
            S(f"s_mov_b32 s32, {f2u(C0):#x}\ns_mov_b32 s12, {f2u(C1):#x}")
            S(f"v_mov_b32 v{CC0}, s32")
            if cfg.get("pk", 0): S("v_mov_b32 v242, s32")
            S(f"s_lshl2_add_u32 s13, s17, s21\ns_mul_i32 s32, s16, {8*HSTR}\ns_add_u32 s13, s13, s32")
            if off: S(f"v_add_u32 v{VE}, s33, v{L16}\nv_add_u32 v{VE+1}, 0x10000, v{VE}\nv_add_u32 v{VE+2}, 0x20000, v{VE}")
            for g in range(8):
                if eowner(g) != SET: continue
                r = HS + g
                S(gexp(g, r) + f"\ns_mul_i32 s{r}, s{r}, {HSTR}\ns_add_u32 s{r}, s{r}, s13\ns_lshl_b32 s{r}, s{r}, 10")
            if isB:
                S("s_mul_i32 s92, s16, 14336\ns_lshl_b32 s32, s17, 7\ns_add_u32 s92, s92, s32\ns_lshl2_add_u32 s92, s21, s92")
                if cfg.get("f1"):
                    S(f"v_lshlrev_b32 v{T2}, 2, v{LANE}\nv_lshrrev_b32 v{T1}, 3, v{LANE}\nv_lshl_add_u32 v{VF2}, v{T1}, 20, v{T2}\nv_lshrrev_b32 v{T1}, 2, v{LANE}\nv_lshl_add_u32 v{VF}, v{T1}, 20, v{T2}")
                    S("s_lshl_b32 s32, s21, 24\ns_add_u32 s92, s92, s32")
                else:
                    S(f"v_lshrrev_b32 v{T1}, 1, v{LANE}\nv_lshl_add_u32 v{VF2}, v{T1}, 20, v{L16}")
        if not isB and not spare:
            for n_, ev in enumerate(sorted(set(cfg.get("aflag", {}).values()))):
                r = 4 + n_
                S(f"s_add_u32 s{r}, s17, {ev//2}\ns_and_b32 s{r}, s{r}, 3\ns_mul_i32 s{r}, s{r}, 3584\ns_add_u32 s{r}, s{r}, s92")
                if ev >= 6: S(f"s_and_b32 s32, s{ev-6}, 1\ns_lshl4_add_u32 s{r}, s32, s{r}")
        if isB or spare:
            S(f"s_mov_b32 s{SD}, s10\ns_mov_b32 s{SD+1}, s11\ns_mov_b32 s{SD+2}, {0 if cfg.get('nod') else 1835008}\ns_mov_b32 s{SD+3}, 0x20000")
        if isB:
            S(f"v_bfe_u32 v{T3}, v{LANE}, 4, 1\nv_lshlrev_b32 v{T3}, 2, v{T3}\nv_xor_b32 v{T3}, v{T3}, v{LANE}\nv_and_b32 v{T3}, 7, v{T3}")
            S(f"v_lshrrev_b32 v{T1}, 3, v{LANE}\nv_lshlrev_b32 v{T1}, 10, v{T1}")
            S(f"v_lshl_add_u32 v{VD}, v{T3}, 4, v{T1}")
            if SH2 == 32:
                for q in range(1, 4): S(f"v_add_u32 v{VD+q}, {q*7*1024}, v{VD}")
            else:
                S(f"v_xor_b32 v{VD+1}, 32, v{VD}\nv_add_u32 v{VD+1}, {7*1024}, v{VD+1}\nv_add_u32 v{VD+2}, {14*1024}, v{VD}\nv_add_u32 v{VD+3}, {14*1024}, v{VD+1}")
        S(f"v_and_b32 v{T1}, 15, v{LANE}")
        S("s_lshl_b32 s32, s22, 1\ns_xor_b32 s32, s32, 2")
        S(f"v_subrev_u32 v{T2}, 10, v{T1}\nv_xor_b32 v{T2}, s32, v{T2}\nv_add_u32 v{T2}, 10, v{T2}")
        S(f"v_cmp_le_u32 vcc, 26, v{LANE}")
        S("s_nop 1")
        S(f"v_cndmask_b32 v{T1}, v{T1}, v{T2}, vcc")
        S(f"v_lshl_add_u32 v{T1}, v{T1}, 1, s23")
        S(f"v_mul_u32_u24 v{T2}, 37, v{T1}\nv_lshrrev_b32 v{T2}, 8, v{T2}")
        S(f"v_mul_u32_u24 v{T3}, 7, v{T2}\nv_sub_u32 v{T3}, v{T1}, v{T3}")
        S(f"v_add_u32 v{T3}, s34, v{T3}")
        S(f"v_subrev_u32 v{T4}, 7, v{T3}\nv_min_u32 v{T4}, v{T3}, v{T4}")
        S(f"v_mul_u32_u24 v{T5}, 86, v{T3}\nv_lshrrev_b32 v{T5}, 8, v{T5}\nv_mul_u32_u24 v{T5}, 3, v{T5}\nv_sub_u32 v{T5}, v{T3}, v{T5}")
        S(f"v_lshl_add_u32 v{T5}, v{T5}, 1, 1")
        S(f"v_cmp_le_u32 vcc, 21, v{T1}")
        S(f"v_and_b32 v{T3}, 3, v{T3}\nv_lshlrev_b32 v{T3}, 1, v{T3}")
        S(f"v_cndmask_b32 v{T4}, v{T4}, v{T5}, vcc")
        S(f"v_cmp_le_u32 vcc, 24, v{T1}")
        S(f"v_sub_u32 v{T2}, s35, v{T2}\nv_and_b32 v{T2}, 3, v{T2}")
        S(f"v_cndmask_b32 v{T4}, v{T4}, v{T3}, vcc")
        S(f"v_mad_u32_u24 v{T1}, v{T2}, 7, v{T4}" if XROT else f"v_lshl_add_u32 v{T1}, v{T4}, 2, v{T2}")
        S("s_lshl_b32 s95, s19, 7")
        if isB:
            S("s_lshl_b32 s32, s22, 15\ns_add_u32 s32, s32, s95")
            S(f"v_lshl_add_u32 v{T2}, v{T1}, 16, s32")
            S("s_mul_i32 s32, s18, 3584\ns_lshl4_add_u32 s32, s22, s32")
            S(f"v_lshl_add_u32 v{FV}, v{T1}, 7, s32")
            for j in range(14): S(f"v_readlane_b32 s{TB+j}, v{T2}, {j}")
        else:
            S(f"s_lshl1_add_u32 s32, s18, s22\ns_mul_i32 s32, s32, {HSTR*1024}")
            if cfg.get("hfake"):
                S(f"s_lshl1_add_u32 s32, s35, s22\ns_mul_i32 s32, s32, {HSTR*1024}\ns_and_b32 s84, s14, 1\ns_lshl_b32 s84, s84, 20\ns_add_u32 s32, s32, s84")
                S("s_mov_b32 s84, s4\ns_mov_b32 s85, s5\ns_mov_b32 s86, 0x200000\ns_mov_b32 s87, 0x20000")
            S(f"v_lshl_add_u32 v{T2}, v{T1}, 12, s32")
            S(f"v_lshrrev_b32 v{T1}, 5, v{LANE}")
            for j in range(14): S(f"v_readlane_b32 s{TB+j}, v{T2}, {16+j}")
            if SH2 == 32:
                S(f"v_lshlrev_b32 v{T1}, 3, v{T1}")
                S(f"v_bfe_u32 v{T2}, v{LANE}, 2, 2")
                S(f"v_add_u32 v{T1}, v{T1}, v{T2}")
                S(f"v_lshlrev_b32 v{T1}, 7, v{T1}")
                S(f"v_bfe_u32 v{T2}, v{LANE}, 3, 1")
                S(f"v_lshl_add_u32 v{T1}, v{T2}, 6, v{T1}")
                S(f"v_bfe_u32 v{T2}, v{LANE}, 4, 1")
                S(f"v_lshl_add_u32 v{T1}, v{T2}, 5, v{T1}")
                S(f"v_and_b32 v{T2}, 1, v{LANE}")
                S(f"v_lshl_add_u32 v{T1}, v{T2}, 4, v{T1}")
                S(f"v_bfe_u32 v{T2}, v{LANE}, 1, 1")
                S(f"v_lshl_add_u32 v{T1}, v{T2}, 3, v{T1}")
                S(f"s_lshl_b32 s32, s23, 13\ns_add_u32 s32, s32, {blk[('D', 0)]*BLK}")
                S(f"v_add_u32 v{DA+1}, s32, v{T1}")
                S(f"s_lshl_b32 s32, s23, 6\nv_xor_b32 v{DA+1}, s32, v{DA+1}")
                S(f"v_xor_b32 v{DA}, 64, v{DA+1}")
                S("s_cmp_eq_u32 s22, 1")
                o1 = [blk[("D", 9)]] + [blk[("D", 10 + i)] for i in range(4)]
                o0 = [blk[("D", 9)]] + [blk[("D", 10 + (i ^ 2))] for i in range(4)]
                for i in range(4): S(f"s_cselect_b32 s{88+i}, {o1[i+1]-o1[i]}, {o0[i+1]-o0[i]}")
                for i in range(4): S(f"s_lshl_b32 s{88+i}, s{88+i}, 14")
            else:
                S(f"v_lshrrev_b32 v{T1}, 4, v{LANE}\nv_lshlrev_b32 v{T1}, 3, v{T1}")
                S(f"v_bfe_u32 v{T2}, v{LANE}, 2, 2")
                S(f"v_add_u32 v{T1}, v{T1}, v{T2}")
                S(f"v_lshlrev_b32 v{T1}, 7, v{T1}")
                S(f"v_bfe_u32 v{T2}, v{LANE}, 3, 1")
                S(f"v_lshl_add_u32 v{T1}, v{T2}, 6, v{T1}")
                S(f"v_bfe_u32 v{T2}, v{LANE}, 4, 1")
                S(f"v_lshl_add_u32 v{T1}, v{T2}, 5, v{T1}")
                S(f"v_and_b32 v{T2}, 3, v{LANE}")
                S(f"v_lshl_add_u32 v{T1}, v{T2}, 3, v{T1}")
                S(f"s_lshl_b32 s32, s23, 13\ns_add_u32 s32, s32, {blk[('D', 0)]*BLK}")
                S(f"v_add_u32 v{DA+2}, s32, v{T1}")
                S(f"s_lshl_b32 s32, s23, 6\nv_xor_b32 v{DA+2}, s32, v{DA+2}")
                S(f"v_xor_b32 v{DA+3}, 32, v{DA+2}\nv_xor_b32 v{DA}, 64, v{DA+2}\nv_xor_b32 v{DA+1}, 64, v{DA+3}")
                S(f"v_lshrrev_b32 v{T1}, 4, v{LANE}\nv_lshlrev_b32 v{T1}, 9, v{T1}\nv_and_b32 v{T2}, 0xf0, v{L16}\nv_add_u32 v{DA+4}, v{T1}, v{T2}")
                S("s_cmp_eq_u32 s22, 1")
                o1 = [blk[("D", 9)]] + [blk[("D", 10 + i)] for i in range(4)]
                o0 = [blk[("D", 9)]] + [blk[("D", 10 + (i ^ 2))] for i in range(4)]
                for i in range(4): S(f"s_cselect_b32 s{88+i}, {o1[i+1]-o1[i]}, {o0[i+1]-o0[i]}")
                for i in range(4): S(f"s_lshl_b32 s{88+i}, s{88+i}, 14")
            S(f"s_mov_b32 s{SW}, s26\ns_mov_b32 s{SW+1}, s27\ns_mov_b32 s{SW+2}, 0x200000\ns_mov_b32 s{SW+3}, 0x20000")
            if cfg.get("o64", 0):
                S(f"v_and_b32 v{T1}, 15, v{LANE}\nv_lshlrev_b32 v{T1}, 10, v{T1}\nv_lshrrev_b32 v{T2}, 5, v{LANE}\nv_lshl_add_u32 v{T1}, v{T2}, 4, v{T1}\nv_bfe_u32 v{T2}, v{LANE}, 4, 1\nv_lshl_add_u32 v{VOUT}, v{T2}, 5, v{T1}")
            else:
                S(f"v_and_b32 v{T1}, 31, v{LANE}\nv_lshlrev_b32 v{T1}, 10, v{T1}\nv_lshrrev_b32 v{T2}, 5, v{LANE}\nv_lshl_add_u32 v{VOUT}, v{T2}, 4, v{T1}")
            S("s_lshl_b32 s32, s18, 16\ns_add_u32 s95, s95, s32\ns_lshl_b32 s32, s22, 15\ns_add_u32 s95, s95, s32\ns_lshl_b32 s32, s23, 6\ns_add_u32 s95, s95, s32")
            S(f"s_add_u32 s32, s33, {blk[('D', XJ)]*BLK}\nv_add_u32 v{VEX}, s32, v{L16}\nv_xor_b32 v{VEX+1}, 0x2000, v{VEX}")
        S(f"s_mov_b32 s{SH}, s30\ns_mov_b32 s{SH+1}, s31\ns_mov_b32 s{SH+2}, {0 if cfg.get('noh') else 64*HSTR*1024}\ns_mov_b32 s{SH+3}, 0x20000")
        lateq = []
        if cut[0] is not None:
            lateq = [re.sub(r"\bs32\b", "s85", i["t"]) for i in S.ins[cut[0]:]]
            del S.ins[cut[0]:]
        def late(n):
            while lateq and n > 0:
                S(lateq.pop(0)); n -= 1
            while lateq and lateq[0].startswith(("s_cselect", "s_addc", "v_cndmask", "s_nop", "v_readlane")):
                S(lateq.pop(0))
        if lite and not isB: S(f"v_mov_b32 v{LT}, 0\nv_mov_b32 v{LT+1}, 0\nv_mov_b32 v{LT+2}, 0")
        myplan = {s: [] for s in range(NST)}
        def c3x():
            S(f"s_mov_b32 s{SX}, s4\ns_mov_b32 s{SX+1}, s5\ns_mov_b32 s{SX+2}, 0x200000\ns_mov_b32 s{SX+3}, 0x20000")
            S(f"v_lshrrev_b32 v{T1}, 3, v{LANE}\nv_lshlrev_b32 v{T1}, 10, v{T1}\nv_and_b32 v{T2}, 0x70, v{L16}\nv_add_u32 v{T1}, v{T1}, v{T2}")
            S("s_lshl2_add_u32 s32, s16, s21\ns_lshl_b32 s32, s32, 16\ns_add_u32 s32, s32, 384")
            for i in range(8):
                S.add(f"buffer_load_dwordx4 v[{64+4*i}:{67+4*i}], v{T1}, s[{SX}:{SX+3}], s32 offen", vm=("c3x", i))
                S("s_add_u32 s32, s32, 8192")
        def c3w():
            S("s_cmp_eq_u32 s22, 0")
            S(f"s_cselect_b32 s{SX}, s6, s8\ns_cselect_b32 s{SX+1}, s7, s9\ns_mov_b32 s{SX+2}, 1835008\ns_mov_b32 s{SX+3}, 0x20000")
            S(f"v_min_u32 v{T1}, 880, v{L16}")
            S("s_lshl1_add_u32 s32, s35, s23\ns_lshl_b32 s32, s32, 3\ns_add_u32 s32, s32, 192\ns_mul_i32 s32, s32, 3584\ns_lshr_b32 s96, s14, 1\ns_mul_i32 s96, s96, 896\ns_add_u32 s32, s32, s96")
            for i in range(8):
                S.add(f"buffer_load_dwordx4 v[{128+4*i}:{131+4*i}], v{T1}, s[{SX}:{SX+3}], s32 offen", vm=("c3w", i))
                S("s_add_u32 s32, s32, 3584")
        def c3p():
            S(f"s_mov_b32 s{SX}, s4\ns_mov_b32 s{SX+1}, s5\ns_mov_b32 s{SX+2}, 0x200000\ns_mov_b32 s{SX+3}, 0x20000")
            S(f"v_lshrrev_b32 v{T1}, 3, v{LANE}\nv_lshlrev_b32 v{T1}, 10, v{T1}\nv_and_b32 v{T2}, 0x70, v{L16}\nv_add_u32 v{T1}, v{T1}, v{T2}")
            for pp in range(NS // 2):
                S(f"s_add_u32 s32, s84, {pp}\ns_and_b32 s32, s32, 3\ns_lshl2_add_u32 s32, s16, s32\ns_lshl2_add_u32 s32, s32, s21\ns_lshl_b32 s32, s32, 14\ns_add_u32 s32, s32, 384")
                for i in range(2):
                    S.add(f"buffer_load_dwordx4 v[{160+8*pp+4*i}:{163+8*pp+4*i}], v{T1}, s[{SX}:{SX+3}], s32 offen", vm=("c3p", pp, i))
                    S("s_add_u32 s32, s32, 8192")
        def xpair(n_):
            S(f"s_mov_b32 s{SX}, s4\ns_mov_b32 s{SX+1}, s5\ns_mov_b32 s{SX+2}, 0x200000\ns_mov_b32 s{SX+3}, 0x20000")
            S(f"s_add_u32 s32, s84, {n_}\ns_and_b32 s32, s32, 3\ns_lshl2_add_u32 s32, s16, s32\ns_lshl_b32 s32, s32, 16\ns_lshl_b32 s96, s21, 12\ns_add_u32 s32, s32, s96")
            for i in range(16):
                if i and i % 4 == 0: S("s_add_u32 s32, s32, 16384")
                S.add(f"buffer_load_dwordx4 v[{64+4*i}:{67+4*i}], v{L16}, s[{SX}:{SX+3}], s32 offen offset:{(i%4)*1024}", vm=("xp", n_, i), need_vm=([("xp", n_-1, i)] if str(n_-1) in cfg["spare_order"] else []))
        def warm():
            S("s_sub_u32 s32, s2, 224\ns_lshl2_add_u32 s32, s32, s21\ns_mul_i32 s32, s32, 14336")
            for i in range(14):
                if i and i % 4 == 0: S("s_add_u32 s32, s32, 4096")
                S.add(f"buffer_load_dwordx4 v[{4*i}:{4*i+3}], v{L16}, s[{SD}:{SD+3}], s32 offen offset:{(i%4)*1024}", vm=("wm", i))
        if spare:
            if isB:
                S("s_barrier")
                for j in range(10): item(("D", j))
                for j in range(10, 14): myplan[sched[("D", j)]].append(("D", j))
            else:
                S("s_barrier")
                for f in cfg.get("spare_order", "wxm"): {"w": c3w, "x": c3x, "m": warm, "p": c3p, "1": lambda: xpair(1), "2": lambda: xpair(2), "3": lambda: xpair(3), "b": lambda: S("s_barrier"), "z": lambda: S.add("", need_vm=["ALL"])}[f]()
                S.add("" if "b" in cfg.get("spare_order", "wxm") else "s_barrier", need_vm=["ALL"])
        elif isB:
            myplan = {s: plan[s] for s in range(NST)}

        M = []
        pooln = [0]
        def pool():
            r = POOL + 4 * (pooln[0] % NPOOL); pooln[0] += 1; return r
        def wreads(i):
            wo = (blk[("W", i)] - 4) * BLK
            out = {}
            for sl in range(4):
                slot = 4*i + sl; wreg = WR + 4*slot
                off = wo + sl*2048 if SH1 == 32 else wo + (sl % 2)*8192 + (sl // 2)*4096
                out[slot] = [(("w", slot, j), f"ds_read_b64_tr_b16 v[{wreg+2*j}:{wreg+2*j+1}], v{WA} offset:{off + j*512}") for j in range(2)]
            return out
        def p1(step, i, g, xo, readw):
            a = ACC[accof[g]]
            wr = wreads(i) if readw else {}
            lastg = (g == groups[SET][-1])
            res = []
            if SH1 == 32:
                for ks in range(4):
                    slot = 4*i + ks
                    res.append([dict(step=step, d=a, n=16, A=WR + 4*slot, rd=wr.get(slot, []), xrd=(("x", g, slot), f"v{XA+ks} offset:{xo}"),
                                     first=(slot == 0), last=(slot == 31), g=g, wdead=(slot if lastg else None), slot=slot)])
            else:
                for k2 in range(2):
                    sub_l = []
                    for sub in range(2):
                        for mat in range(2):
                            slot = 4*i + 2*k2 + mat
                            sub_l.append(dict(step=step, d=a + 8*mat + 4*sub, n=4, A=WR + 4*slot, rd=(wr.get(slot, []) if sub == 0 else []),
                                              xrd=((("x", g, i, k2, sub), f"v{XA+k2} offset:{xo + sub*2048}") if mat == 0 else None),
                                              first=(i == 0 and k2 == 0), last=(i == 7 and k2 == 1 and sub == 1 and mat == 1), g=g,
                                              wdead=(slot if lastg and sub == 1 else None), slot=slot))
                    res.append(sub_l)
            return res
        def push(lst):
            for m in lst:
                if m["xrd"] is not None:
                    xr = pool(); push.cur = xr
                    m["rd"] = m["rd"] + [(m["xrd"][0], f"ds_read_b128 v[{xr}:{xr+3}], {m['xrd'][1]}")]
                    m["pool"] = 1
                else: m["pool"] = 0
                m["B"] = push.cur
                M.append(m)
        if not spare and not isB:
            for i in range(8):
                gs = [p1(i, i, g, (blk[("X", i // 2)]*BLK + (2*(i % 2) + u)*4096 if NS == 2 else blk[("X", i)]*BLK + u*4096), u == 0) for u, g in enumerate(SP)]
                for parts in zip(*gs):
                    for u in parts: push(u)
            for n_, g in enumerate(AL):
                for i in range(8):
                    for u in p1(8 + 2*n_ + i // 4, i, g, blk[("X", XS + 2*n_ + i // 4)]*BLK + (i % 4)*4096, False): push(u)
        if not spare and isB:
            for n_, (g, bs) in enumerate(bgroups):
                for i in range(8):
                    assert bs[i] >= i
                    for u in p1(bs[i], i, g, (blk[("Y", 2*n_ + i // 4)] - 8)*BLK + (i % 4)*4096, False): push(u)
        if not isB and SH2 == 16:
            for j in range(14):
                order = [(k2, i) for k2 in range(2) for i in range(4)] if j < 13 else [(k2, 2*t + jj) for t in range(2) for k2 in range(2) for jj in range(2)]
                seen = set()
                for k2, i in order:
                    r = pool()
                    rd = []
                    if j > 0 and i not in seen:
                        dl = f"s{88 + j - 10}" if j >= 10 else f"{((blk[('D', j)] - blk[('D', j-1)]) * BLK) & 0xffffffff:#x}"
                        rd.append((None, f"v_add_u32 v{DA+i}, {dl}, v{DA+i}"))
                    seen.add(i)
                    rd += [(("d", j, k2, i, jj), f"ds_read_b64_tr_b16 v[{r+2*jj}:{r+2*jj+1}], v{DA+i} offset:{k2*4096 + jj*512}") for jj in range(2)]
                    for sub in range(2):
                        n = 4*j + 2*k2 + sub
                        M.append(dict(step=P2 + j // 2, d=A2[i // 2] + 8*(i % 2) + 4*sub, n=4, A=r, B=WR + 4*(n % 32), first=(j == 0 and k2 == 0),
                                      rd=(rd if sub == 0 else []), h=n, hc=(n + 1 if i == 3 else 4*j + 2*k2), last=False, pool=(1 if sub == 0 else 0)))
        TK = cfg.get("tk", 4)
        if not isB and SH2 == 32:
            order = [(n, t) for n in range(56 - TK) for t in range(2)] + [(n, t) for t in range(2) for n in range(56 - TK, 56)]
            for n, t in order:
                j, ks = n // 4, n % 4
                r = pool()
                rd = []
                if j > 0 and ks == 0:
                    dl = f"s{88 + j - 10}" if j >= 10 else f"{((blk[('D', j)] - blk[('D', j-1)]) * BLK) & 0xffffffff:#x}"
                    rd.append((None, f"v_add_u32 v{DA+t}, {dl}, v{DA+t}"))
                rd += [(("d", j, ks, t, jj), f"ds_read_b64_tr_b16 v[{r+2*jj}:{r+2*jj+1}], v{DA+t} offset:{ks*2048 + jj*512}") for jj in range(2)]
                M.append(dict(step=P2 + j // 2, d=A2[t], n=16, A=r, B=WR + 4*(n % 32), first=(n == 0), rd=rd, h=n, t=t, last=False, pool=1))
        NM = len(M)
        cum = [0]
        for m in M: cum.append(cum[-1] + m["pool"])
        def epi(g):
            a = ACC[baccof[g] if (isB and g in off) else accof[g]]
            L = []
            if g in off and not isB:
                b = off[g]
                return [dict(text=f"ds_write_b128 v{VE + b // 4}, v[{a+4*i}:{a+4*i+3}] offset:{(b % 4)*BLK + 1024*i}", lds=("ew", g, i), vr=range(a+4*i, a+4*i+4), cost=99) for i in range(4)]
            T = lambda i: TMP + i
            idx = range(8)
            TC = cfg.get("tcost", 2)
            if cfg.get("mix", 0):
                nl = [("er", g, 3)] if g in off else []
                stg = lambda i: [dict(text=f"v_mul_f32 v{T(i)}, v{a+i}, v{a+i}", vr=[a+i], cost=1, nl=nl),
                                 dict(text=f"v_fma_f32 v{T(i)}, v{T(i)}, s12, v{CC0}", cost=1),
                                 dict(text=f"v_mul_f32 v{T(i)}, v{T(i)}, v{a+i}", cost=1),
                                 dict(text=f"v_exp_f32 v{T(i)}, v{T(i)}", cost=TC, trans=T(i)),
                                 dict(text=f"v_mul_f32 v{a+8+i}, v{a+i}, v{a+8+i}", vr=[a+8+i], cost=1),
                                 dict(text=f"v_add_f32 v{T(i)}, 1.0, v{T(i)}", vr=[T(i)], cost=1),
                                 dict(text=f"v_rcp_f32 v{T(i)}, v{T(i)}", cost=TC, trans=T(i)),
                                 dict(text=f"v_mul_f32 v{a+8+i}, v{a+8+i}, v{T(i)}", vr=[T(i)], cost=1)]
                al_ = {i: stg(i) for i in idx}
                if cfg.get("pk", 0):
                    P = lambda r: f"v[{r}:{r+1}]"
                    PC = cfg.get("pcost", 1)
                    which = cfg["pk"]
                    for i in range(0, 8, 2):
                        pkop = {0: dict(text=f"v_pk_mul_f32 {P(T(i))}, {P(a+i)}, {P(a+i)}", vr=[a+i, a+i+1], cost=PC),
                                1: dict(text=f"v_pk_fma_f32 {P(T(i))}, {P(T(i))}, s[12:13], {P(242)} op_sel_hi:[1,0,0]", cost=PC),
                                2: dict(text=f"v_pk_mul_f32 {P(T(i))}, {P(T(i))}, {P(a+i)}", cost=PC),
                                4: dict(text=f"v_pk_mul_f32 {P(a+8+i)}, {P(a+i)}, {P(a+8+i)}", vr=[a+8+i, a+9+i], cost=PC)}
                        for k_ in which:
                            al_[i][k_] = pkop[k_]; al_[i+1][k_] = None
                o_ = HOLDR if g in cfg.get("hold", ()) else a
                if cfg.get("cvtspread", 1):
                    for i in range(1, 8, 2):
                        al_[i].append(None)
                        al_[i].append(dict(text=f"v_cvt_pk_bf16_f32 v{o_+i//2}, v{a+7+i}, v{a+8+i}", cost=cfg.get("ccost", 1), vw=[o_+i//2]))
                ops = sorted(((2*i + k_, i, k_) for i in idx for k_ in range(len(al_[i]))))
                L += [al_[i][k_] for _, i, k_ in ops if al_[i][k_] is not None]
                if cfg.get("noepi"): L = [dict(text="", cost=e_["cost"]) for e_ in L]
                idx = ()
            for i in idx: L.append(dict(text=f"v_mul_f32 v{T(i)}, v{a+i}, v{a+i}", vr=[a+i], cost=1, nl=([("er", g, 3)] if g in off else [])))
            for i in idx: L.append(dict(text=f"v_fma_f32 v{T(i)}, v{T(i)}, s12, v{CC0}", cost=1))
            for i in idx: L.append(dict(text=f"v_mul_f32 v{T(i)}, v{T(i)}, v{a+i}", cost=1))
            for i in idx:
                L.append(dict(text=f"v_exp_f32 v{T(i)}, v{T(i)}", cost=2, trans=T(i)))
                L.append(dict(text=f"v_mul_f32 v{a+8+i}, v{a+i}, v{a+8+i}", vr=[a+8+i], cost=1))
            for i in idx: L.append(dict(text=f"v_add_f32 v{T(i)}, 1.0, v{T(i)}", vr=[T(i)], cost=1))
            for i in idx: L.append(dict(text=f"v_rcp_f32 v{T(i)}, v{T(i)}", cost=2, trans=T(i)))
            for i in idx: L.append(dict(text=f"v_mul_f32 v{a+8+i}, v{a+8+i}, v{T(i)}", vr=[T(i)], cost=1))
            o = HOLDR if g in cfg.get("hold", ()) else a
            if not (cfg.get("mix", 0) and cfg.get("cvtspread", 1)):
                for i in range(4): L.append(dict(text=f"v_cvt_pk_bf16_f32 v{o+i}, v{a+8+2*i}, v{a+8+2*i+1}", cost=1, vw=[o+i]))
            if SH1 == 16:
                for i in range(2): L.append(dict(text=f"v_permlane16_swap_b32 v{o+i}, v{o+2+i}", cost=1, pr=[o+i, o+2+i]))
            L.append(dict(text=f"buffer_store_dwordx4 v[{o}:{o+3}], v{L16}, s[{SH}:{SH+3}], s{HS+g} offen sc1", vm=("st", g), cost=1))
            return L
        def put(e):
            if e.get("vm"):
                g = e["vm"][1]
                if g in hold:
                    assert not held; held.append((e, -100)); return
                for h_, _ in held: S.add(h_["text"], vm=h_["vm"])
                held.clear()
            S.add(e["text"], vm=e.get("vm"), lds=e.get("lds"), need_lds=e.get("nl", ()), vr=e.get("vr", ()), trans=e.get("trans"), vw=e.get("vw", ()), pr=e.get("pr", ()))
        aflag = cfg.get("aflag", {})
        hold = cfg.get("hold", ())
        held = []
        covers = lambda ev: (ev - 1, ev) if ev < 6 else (ev,)
        flagged = set()
        def flag(ev):
            nv = [("st", g) for g in covers(ev) if eowner(g) == 1]
            S(f"s_add_u32 s97, s84, {ev//2}\ns_and_b32 s97, s97, 3\ns_mul_i32 s97, s97, 3584\ns_add_u32 s97, s97, s92")
            if ev >= 6: S(f"s_and_b32 s13, s{ev-6}, 1\ns_lshl4_add_u32 s97, s13, s97")
            S.add(f"buffer_store_dword v{TAG}, v{VF2 if ev < 6 else VF}, s[{SF}:{SF+3}], s97 offen sc1", vm=("flag", ev), need_vm=nv)
            flagged.add(ev)
        def tag_issue():
            S.add("s_load_dwordx2 s[14:15], s[74:75], 0", need_lds=["ALL"])
            if isB and cfg.get("swarm", 1): S(f"s_load_dword s4, s[{SF}:{SF+1}], {FSZ-64}")
        def tag_check():
            S("s_mov_b32 s97, 0")
            S.add("s_waitcnt lgkmcnt(0)", need_lds=["ALL"])
            S(f"L_tag{sfx}:")
            S("s_cmp_lg_u32 s15, 0")
            S(f"s_cbranch_scc1 L_tagok{sfx}")
            S("~s_add_u32 s97, s97, 1")
            S("~s_cmp_ge_u32 s97, 0x100000")
            S(f"~s_cbranch_scc1 L_tagok{sfx}")
            S("~s_sleep 2")
            S(f"~v_mov_b32 v{PR+2}, 0")
            S(f"~global_load_dwordx2 v[{PR}:{PR+1}], v{PR+2}, s[74:75] sc1")
            S("~s_waitcnt vmcnt(0)")
            S(f"~v_readfirstlane_b32 s14, v{PR}")
            S(f"~v_readfirstlane_b32 s15, v{PR+1}")
            S("~s_nop 1")
            S(f"~s_branch L_tag{sfx}")
            S(f"L_tagok{sfx}:")
            S(f"v_mov_b32 v{TAG}, s14")
            S("s_mov_b32 s15, s14")
        polling = [None]
        pmask = lambda c: (((1 << pg[c][1]) - 1) ^ ((1 << pg[c][0]) - 1)) << 16
        PD4 = (4, 8, 24, 28)
        pn = lambda c: ((pg[c][1] - pg[c][0] + 1) // 2 if (cfg.get("phalf") and pg[c][1] <= 10) else pg[c][1] - pg[c][0])
        def poll_loads(c, pre=""):
            for i in range(pn(c)):
                S(f"{pre}s_load_dwordx4 s[{PD4[i]}:{PD4[i]+3}], s[{SF}:{SF+1}], s{88+i} glc")
        def poll_issue(c):
            assert polling[0] is None; polling[0] = c
            if pn(c) != pg[c][1] - pg[c][0]:
                for i in range(pn(c)):
                    S(f"s_add_u32 s{88+i}, s22, {16 + pg[c][0] + 2*i}\ns_min_u32 s{88+i}, s{88+i}, {16 + pg[c][1] - 1}")
                for i in range(pn(c)): S(f"v_readlane_b32 s{88+i}, v{FV}, s{88+i}")
            else:
                for i, j in enumerate(range(*pg[c])): S(f"v_readlane_b32 s{88+i}, v{FV}, {16+j}")
            S.add("s_nop 3", need_lds=["ALL"])
            poll_loads(c)
        def poll_check(c):
            assert polling[0] == c; polling[0] = None
            prs = [r + d for r in PD4[:pn(c)] for d in (0, 2)]
            S("s_mov_b32 s96, 0")
            S(f"L_poll{sfx}{c}:")
            S.add("s_waitcnt lgkmcnt(0)", need_lds=["ALL"])
            for r in prs: S(f"s_xor_b64 s[{r}:{r+1}], s[{r}:{r+1}], s[14:15]")
            for r in prs[1:]: S(f"s_or_b64 s[4:5], s[4:5], s[{r}:{r+1}]")
            S(f"s_cbranch_scc0 L_ok{sfx}{c}")
            S("~s_add_u32 s96, s96, 1")
            S("~s_cmp_ge_u32 s96, 0x100000")
            S(f"~s_cbranch_scc1 L_ok{sfx}{c}")
            if spare: S(f"~s_sleep {cfg.get('ssl', (8, 2))[0 if c == 0 else 1]}")
            S("~s_and_b32 s4, s96, 63")
            S(f"~s_cbranch_scc1 L_sp{sfx}{c}")
            S(f"~s_mov_b64 exec, {pmask(c):#x}")
            S(f"~buffer_load_dwordx4 v[{PR}:{PR+3}], v{FV}, s[{SF}:{SF+3}], 0 offen sc1")
            S("~s_mov_b64 exec, -1")
            S("~s_waitcnt vmcnt(0)")
            S(f"~v_cmp_eq_u64 vcc, s[14:15], v[{PR}:{PR+1}]")
            S(f"~v_cmp_eq_u64_e64 s[4:5], s[14:15], v[{PR+2}:{PR+3}]")
            S("~s_nop 1")
            S("~s_and_b32 s4, s4, vcc_lo")
            S(f"~s_andn2_b32 s4, {pmask(c):#x}, s4")
            S(f"~s_cbranch_scc0 L_ok{sfx}{c}")
            S(f"L_sp{sfx}{c}:")
            poll_loads(c, "~")
            S(f"~s_branch L_poll{sfx}{c}")
            S(f"L_ok{sfx}{c}:")
        pts = [(rel(a), rel(b)) for a, b in (cfg["ppts_s"] if spare else cfg["ppts"])]
        def points(s, k):
            if not spare:
                if cfg["tag_pts"][0] == (s, k): tag_issue()
                if cfg["tag_pts"][1] == (s, k): tag_check()
                for ev, pt in flag_pts.items():
                    if pt == (s, k): flag(ev)
            for c, (pi, pc) in enumerate(pts):
                if pc == (s, k) and pi != pc: poll_check(c)
            for c, (pi, pc) in enumerate(pts):
                if pi == (s, k):
                    poll_issue(c)
                    if pi == pc: poll_check(c)

        first = P2 - 2 if spare else 0
        st = dict(rd=0, h=0, bar=first - 1, wdead=(32 if spare else 0), n=0, hcons=0, ok=0)
        epq = []; dmaq = []; lpend = []; wq = []
        def barrier():
            s = st["bar"] + 1
            assert not dmaq
            late(cfg.get("late_at", ({1: 70, 2: 40, 3: 0, 4: 50, 5: 999},) * 2)[SET].get(s, 0))
            nv = [(k, i, 3) for (k, i) in issued if vstep(first_use((k, i))) < next_bar(s)]
            drain = ["ALL"] if (isB or s < ES) else []
            if not spare and not isB:
                for ev, pt in flag_pts.items():
                    if s == prev_bar(pt[0]): nv += [("st", g) for g in covers(ev) if eowner(g) == 0]
            if not spare and isB and cfg.get("f1"):
                for ev, pt in flag_pts.items():
                    if s == prev_bar(pt[0]): nv += [("st", g) for g in covers(ev) if eowner(g) == 1]
            lt = lite and not isB
            if not isB and not spare and aflag and s == cfg["atag"][1]: tag_check()
            if s not in nobar:
                if lt:
                    S.add("s_waitcnt lgkmcnt(0)" if drain else "", need_lds=drain, need_vm=nv)
                    for (r, v, idx) in lpend: S(f"v_writelane_b32 v{v}, s{r}, {idx}")
                    lpend.clear()
                    S("s_memtime s[8:9]"); lpend.append((8, LT + 1, s + 1))
                S.add("s_barrier", need_lds=drain, need_vm=nv)
            if lt:
                r = [x for x in (98, 96, 6) if not any(y[0] == x for y in lpend)][0]
                S(f"s_memtime s[{r}:{r+1}]"); lpend.append((r, LT + 2, s + 1))
                if s not in nobar: S("s_memrealtime s[10:11]"); lpend.append((10, LT, s + 1))
            st["bar"] = s
            if not isB and not spare and aflag and s == cfg["atag"][0]: tag_issue()
            if isB and cfg.get("diag") == s: S("s_memrealtime s[82:83]")
            for c, (pi, pc) in enumerate(pts):
                if s == next_bar(pc[0]): st["ok"] = max(st["ok"], pg[c][1])
            for it in myplan[s]:
                if it[0] == "D": assert not lateq
                if it[0] == "D" and it[1] in stage and not spare: continue
                su, dm = item_ops(it)
                dmaq.append((su, None, None))
                for k, (t, tag) in enumerate(dm): dmaq.append((t, tag, it if k == 3 else None))
            if isB and not spare:
                for j, ss in stage.items():
                    if ss == s:
                        assert st["n"] == NM or sreg[j] >= 128, "W registers of set B still in use"
                        for q in range(4):
                            r = sreg[j] + 4*q
                            dmaq.append((f"buffer_load_dwordx4 v[{r}:{r+3}], v{VD+q}, s[{SD}:{SD+3}], s{TB+j} offen offset:{1024*q}", ("sg", j, q), None))
        def unstage(s):
            for it in myplan[s]:
                if it[0] == "D" and it[1] in stage and not spare:
                    j = it[1]
                    S(f"s_add_u32 s32, s33, {blk[it]*BLK}\nv_add_u32 v{XA+3}, s32, v{L16}")
                    for q in range(4):
                        r = sreg[j] + 4*q
                        S.add(f"ds_write_b128 v{XA+3}, v[{r}:{r+3}] offset:{1024*q}", lds=("us", j, q), need_vm=[("sg", j, q)])
        def issue_dma(n):
            while dmaq and n > 0:
                t, tag, it = dmaq.pop(0)
                if tag is None: S(t); continue
                S.add(t, vm=tag); n -= 1
                if it: issued.append(it)
        def issue_reads(n, maxn, lim):
            cnt = 0
            while st["rd"] < NM and (M[st["rd"]]["step"] if isB else vstep(M[st["rd"]]["step"])) < lim and cnt < maxn:
                k = st["rd"]
                lo = cum[n + 1] - 1 if n >= 0 else 0
                if cum[k + 1] - lo > (cfg.get("look2", 6) if "h" in M[k] else cfg.get("look", NPOOL)): break
                if cfg.get("rsplit") and ("hc" in M[k] or (cfg["rsplit"] > 1 and M[k]["n"] == 4 and not isB)) and maxn < 99 and M[k]["rd"]:
                    done = M[k].setdefault("nis", 0)
                    while True:
                        i, t = M[k]["rd"][done]; S.add(t, lds=i); done += 1
                        if i is not None: break
                    M[k]["nis"] = done
                    if done == len(M[k]["rd"]):
                        st["rd"] += 1
                        while st["rd"] < NM and not M[st["rd"]]["rd"] and M[st["rd"]]["step"] == M[k]["step"]: st["rd"] += 1
                    return
                for (i, t) in M[k]["rd"][M[k].get("nis", 0):]: S.add(t, lds=i)
                if M[k]["rd"]: cnt += 1
                st["rd"] += 1
        def issue_h(maxn):
            cnt = 0
            while st["h"] < 56 and cnt < maxn:
                h = st["h"]
                lim = 56 if spare else hmax.get(st["bar"], 0 if st["bar"] < min(hmax) else 56)
                if not (h < lim and (h < st["wdead"] if h < 32 else h - 32 < st["hcons"]) and h // 4 < st["ok"]): break
                r = WR + 4 * (h % 32)
                S.add(f"buffer_load_dwordx4 v[{r}:{r+3}], v{L16 if SH2 == 32 else DA+4}, s[{SH}:{SH+3}], s{TB + h//4} offen offset:{(h % 4)*1024 if SH2 == 32 else (h % 4 // 2)*2048 + (h % 2)*256} sc1", vm=("h", h))
                st["h"] += 1; cnt += 1
        def issue_epi(budget):
            used = 0
            while epq and used < budget:
                e = epq[0][0].pop(0)
                put(e); used += e["cost"]
                if not epq[0][0]: epq.pop(0)
            return used
        WB = cfg.get("wb", 2)
        def mfma():
            n = st["n"]; m = M[n]
            ph2 = "h" in m
            nv = [("h", m["h"])] if ph2 else []
            if ph2 and "hc" in m and m["h"] % 2 == 0 and m["h"] + 1 < st["h"]: nv = [("h", m["h"] + 1)]
            if ph2: assert m["h"] < st["h"], ("h not issued", m["h"], st["h"], n)
            assert st["rd"] > n, ("reads not issued", n)
            if m["first"]:
                for e in epq + held + wq: assert not (e[1] <= m["d"] < e[1] + 16), ("acc reuse", n, m["step"])
            d, nn = m["d"], m["n"]
            c = "0" if m["first"] else f"v[{d}:{d+nn-1}]"
            op = "v_mfma_f32_32x32x16_bf16" if nn == 16 else "v_mfma_f32_16x16x32_bf16"
            wb = WB * (1 if nn == 16 else 2)
            nl = [i for k in range(n, min(n + (wb if n % wb == 0 else 1), st["rd"])) for i, _ in M[k]["rd"] if i is not None]
            if isB: nl += [("w", m["slot"], 0), ("w", m["slot"], 1)]
            S.add(f"{op} v[{d}:{d+nn-1}], v[{m['A']}:{m['A']+3}], v[{m['B']}:{m['B']+3}], {c}" if not (cfg.get("nomf") and n % 2) else "", need_lds=nl, need_vm=nv, mw=(d, d + nn - 1))
            if m.get("wdead") is not None: st["wdead"] = m["wdead"] + 1
            if m["last"]:
                ent = [epi(m["g"]), ACC[accof[m["g"]]], n + 1 + (cfg.get("elast", 4 * MUL) if m["g"] == groups[0][-1] else cfg.get("estart", 4) * MUL), m["g"]]
                if m["g"] in off: wq.append(ent)
                else: epq.append(ent)
            if ph2: st["hcons"] = max(st["hcons"], m["hc"]) if "hc" in m else m["h"] + m["t"]
            st["n"] += 1
            if ph2 and SH2 == 16:
                if n in (NM - 5, NM - 3):
                    for i in ((0, 1) if n == NM - 5 else (2, 3)):
                        S.add(f"ds_write_b128 v{VEX}, v[{A2[0]+4*i}:{A2[0]+4*i+3}] offset:{1024*i}", lds=("xw", i), vr=range(A2[0]+4*i, A2[0]+4*i+4))
                if n == NM - 1: exch()
            elif ph2:
                w0 = NM - TK + 1
                if n in (w0, w0 + 1):
                    for i in (2*(n - w0), 2*(n - w0) + 1):
                        S.add(f"ds_write_b128 v{VEX}, v[{A2[0]+4*i}:{A2[0]+4*i+3}] offset:{1024*i}", lds=("xw", i), vr=range(A2[0]+4*i, A2[0]+4*i+4))
                if n == NM - 1 - cfg.get("tb", 0): exch()
        def exch():
            assert st["rd"] == NM
            S.add("s_barrier", need_lds=["ALL"])
            for i in range(4):
                S.add(f"ds_read_b128 v[{RED+4*i}:{RED+4*i+3}], v{VEX+1} offset:{1024*i}", lds=("xr", i))
        if isB and not spare and cfg.get("pages", 0) == 1:
            for p_ in range(1, touch["n"]):
                if (p_ - 1) % 4 // 2 != var: continue
                S(f"s_cmp_eq_u32 s22, {(p_ - 1) % 2}")
                S(f"s_cbranch_scc0 L_nt{sfx}{p_}")
                S(f"s_call_b64 s[98:99], L_stub{p_}")
                S(f"L_nt{sfx}{p_}:")
        if not isB and not spare and cfg.get("pages", 0) == 3: S("@TOUCH@")
        prio = cfg.get("prio", (1, 0))
        S(f"s_setprio {prio[SET]}")
        if spare and isB:
            tag_issue(); tag_check()
            points(first - 1, 99)
        lastB = max([next_bar(pc[0]) for _, pc in pts] + [vstep(first_use(("D", 13)))])
        for s in range(first, NST):
            if isB and s > lastB: break
            barrier()
            end = st["n"]
            while end < NM and M[end]["step"] <= s: end += 1
            if not isB:
                BK = cfg.get("bk", 3) * (MUL if s < P2 else MUL2)
                if s + 1 >= ES: BK = 0
                if s < LAST and end > st["n"]: end -= BK
                soft = cfg.get("soft", 0) and st["rd"] > st["n"] + 2
                if soft:
                    for _ in range(cfg["soft"]): issue_reads(st["n"] - 1, 1, next_bar(s))
                else: issue_reads(st["n"] - 1, 99, next_bar(s))
                if spare and s < P2: issue_h(99)
                k = 0
                while st["n"] < end:
                    mfma(); k += 1
                    if lite and s in cfg.get("fine", ()) and k % 2 == 0 and k <= 16:
                        r = (36, 38, 40, 42, 48, 50, 56, 58)[k // 2 - 1]
                        S(f"s_memtime s[{r}:{r+1}]"); lpend.append((r, LT + 2, 30 + 8 * cfg["fine"].index(s) + k // 2 - 1))
                    issue_reads(st["n"] - 1, 2, next_bar(s))
                    if soft and k <= 3 and M[st["n"] - 1]["n"] == 4: issue_reads(st["n"] - 1, 1, next_bar(s))
                    nn = M[st["n"] - 1]["n"]
                    per = cfg.get("hper_at", {}).get(s - P2, cfg.get("hper", 2)) * (MUL if s < P2 else MUL2)
                    if k % per == per - 1 or (s >= P2 and st["h"] < st["hcons"] + 6): issue_h(1)
                    if wq and st["n"] >= wq[0][2] and (nn == 16 or k % 2):
                        put(wq[0][0].pop(0))
                        if not wq[0][0]: wq.pop(0)
                    elif epq and st["n"] >= epq[0][2]:
                        eb = cfg.get("eon2", 5) if s >= P2 else cfg.get("eon_at", {}).get(s, cfg["eon"])
                        if nn == 16: issue_epi(eb)
                        elif cfg.get("split16", 0):
                            st["cr"] = min(st.get("cr", 0), 0) + (eb // 2 if M[st["n"] - 1]["pool"] else eb - eb // 2)
                            if st["cr"] > 0: st["cr"] -= issue_epi(st["cr"])
                        elif k % 2: issue_epi(eb)
                if cfg.get("rsplit"): issue_reads(st["n"] - 1, 99, next_bar(s) if s + 1 < ES else 0)
                assert not wq, ("hand-over not finished", s)
                assert s == LAST or s + 1 in nobar or (spare and s < P2) or s + 1 >= ES or st["rd"] == end + BK, (s, st["rd"], end)
            else:
                pa = {(P2 + k_[0] if isinstance(k_, tuple) else k_): v for k_, v in cfg.get("prio_at", {}).items()}
                if s in pa: S(f"s_setprio {pa[s]}")
                lag = cfg.get("blag", 1)
                if lag:
                    while st["n"] < NM and M[st["n"]]["step"] < s:
                        mfma()
                        if M[st["n"] - 1]["n"] == 16 or st["n"] % 2 == 0: issue_dma(1)
                if s < 8 and not spare and bgroups:
                    for slot, rds in wreads(s).items():
                        for (i, t) in rds: S.add(t, lds=i)
                        issue_dma(1)
                issue_reads(st["n"] - 2 if False else st["n"] - 1, 99, s + 1)
                if lag: assert st["rd"] == end, (s, st["rd"], end)
                if not spare:
                    for g in sorted(off):
                        if gend[g] + 1 == s:
                            a = ACC[baccof[g]]; b = off[g]
                            assert polling[0] is None, ("scalar poll in flight over LDS reads", s)
                            for e in epq: assert e[1] != a, ("B acc reuse", g)
                            for i in range(4):
                                S.add(f"ds_read_b128 v[{a+4*i}:{a+4*i+3}], v{VE + b // 4} offset:{(b % 4)*BLK + 1024*i}", lds=("er", g, i))
                            epq.append([epi(g), a, 0, g])
                eb = cfg.get("eoff_at", {}).get(s, cfg["eoff"])
                efirst = (var == 1 or s in cfg.get("epi_first", ()))
                points(s, 0)
                if efirst: issue_epi(eb)
                unstage(s)
                issue_dma(99)
                points(s, 50)
                while not lag and st["n"] < end:
                    mfma()
                    issue_reads(st["n"] - 1, 2, s + 1)
                if not efirst: issue_epi(eb)
                points(s, 99)
                if cfg.get("pages") == 4 and not spare:
                    for p_, bi in enumerate(touch["at"]):
                        if s == max(0, bi - cfg.get("tdist", 3)):
                            S(f"s_cmp_eq_u32 s21, {p_ % 4}\ns_cbranch_scc0 L_nt{sfx}{p_}\n~s_call_b64 s[98:99], L_stub{p_}\nL_nt{sfx}{p_}:")
        assert not epq and st["n"] == NM
        if isB:
            if not spare: assert flagged | set(aflag.values()) == {1, 3, 5, 6, 7} and not flagged & set(aflag.values()), flagged
            if cfg.get("diag") is not None and not spare:
                S(f"s_cmp_lg_u32 s2, {cfg.get('diagwg', 8)}")
                S("s_cbranch_scc1 L_end")
                for s in range(lastB + 1, NST):
                    if s not in nobar: S("s_barrier")
                S("s_barrier")
                if cfg["diag"] == 99: S("s_memrealtime s[82:83]")
                S("s_waitcnt lgkmcnt(0)")
                if cfg["diag"] < 0: S("s_mov_b32 s82, s100")
                S("s_sub_u32 s98, s82, s100\ns_lshl_b32 s98, s98, 2\ns_add_u32 s98, s98, 3000")
                S(f"L_dg{sfx}:")
                S("s_memrealtime s[96:97]\ns_waitcnt lgkmcnt(0)\ns_sub_u32 s96, s96, s100\ns_cmp_lt_u32 s96, s98\ns_cbranch_scc1 L_dg" + sfx)
            S("s_endpgm")
            return S.render()
        assert st["h"] == 56
        R = RED; keep = A2[1]
        for q in range(2):
            for i in range(8*q, 8*q + 8): S.add(f"v_add_f32 v{R+i}, v{R+i}, v{keep+i}", need_lds=[("xr", i // 4)], vr=[keep+i])
            for i in range(4): S.add(f"v_cvt_pk_bf16_f32 v{TMP+4*q+i}, v{R+8*q+2*i}, v{R+8*q+2*i+1}", vw=[TMP+4*q+i])
            if SH2 == 16:
                for i in range(2): S.add(f"v_permlane16_swap_b32 v{TMP+4*q+i}, v{TMP+4*q+2+i}", pr=[TMP+4*q+i, TMP+4*q+2+i], vw=[TMP+4*q+i, TMP+4*q+2+i])
            if not cfg.get("o64", 0): S(f"buffer_store_dwordx4 v[{TMP+4*q}:{TMP+4*q+3}], v{VOUT}, s[{SW}:{SW+3}], s95 offen offset:{32*q}")
        if cfg.get("o64", 0):
            S("s_add_u32 s94, s95, 16384")
            for i in range(4): S.add(f"v_permlane16_swap_b32 v{TMP+i}, v{TMP+4+i}", pr=[TMP+i, TMP+4+i])
            for q in range(2): S(f"buffer_store_dwordx4 v[{TMP+4*q}:{TMP+4*q+3}], v{VOUT}, s[{SW}:{SW+3}], s{95-q} offen {cfg.get('outsc', '')}")
        if lite:
            for (r, v, idx) in lpend: S(f"v_writelane_b32 v{v}, s{r}, {idx}")
            S("s_memrealtime s[96:97]\ns_memtime s[36:37]\ns_waitcnt vmcnt(0)\ns_memrealtime s[98:99]\ns_waitcnt lgkmcnt(0)")
            S(f"v_writelane_b32 v{LT}, s100, 0\nv_writelane_b32 v{LT}, s96, 60\nv_writelane_b32 v{LT}, s98, 61")
            for x in range(NST + 1, 29): S(f"v_writelane_b32 v{LT+2}, s36, {x}")
            S(f"s_cmp_lg_u32 s20, {cfg.get('stwave', 1)}")
            S("s_cbranch_scc1 L_end")
            S(f"s_add_u32 s30, s{SH}, 0x8000000\ns_addc_u32 s31, s{SH+1}, 0")
            S(f"s_lshl_b32 s32, s2, 8\nv_lshrrev_b32 v0, 2, v{L16}\nv_add_u32 v0, s32, v0")
            for v in (LT, LT + 1, LT + 2):
                S(f"global_store_dword v0, v{v}, s[30:31]")
                S("v_add_u32 v0, 0x10000, v0")
        S("s_endpgm")
        return S.render()

    E = Stream()
    E("s_load_dwordx8 s[4:11], s[0:1], 0")
    E("s_load_dwordx4 s[24:27], s[0:1], 24")
    E("s_load_dwordx4 s[28:31], s[0:1], 40")
    if cfg.get("codepf") in (5, 6):
        if cfg["codepf"] == 5:
            E("s_cmp_ge_u32 s2, 224\ns_cbranch_scc0 L_reg0")
        E(f"s_getpc_b64 s[{SH}:{SH+1}]")
        E("L_pc:")
        if cfg["codepf"] == 5:
            E(f"s_bfe_u32 s35, s2, 0x20003\nv_lshlrev_b32 v{T1}, 4, v0\nv_lshl_add_u32 v{T1}, s35, 13, v{T1}")
        else:
            E(f"s_bfe_u32 s35, s2, 0x50003\nv_lshlrev_b32 v{T1}, 1, v0\nv_and_b32 v{T1}, 0x3fc, v{T1}\nv_lshl_add_u32 v{T1}, s35, 10, v{T1}")
        E(f"v_min_u32 v{T1}, L_codeend-L_pc-16, v{T1}")
        E(f"v_mov_b32 v{T2}, s{SH+1}")
        E(f"v_add_co_u32 v{T1}, vcc, s{SH}, v{T1}")
        E("s_nop 1")
        E(f"v_addc_co_u32 v{T2}, vcc, 0, v{T2}, vcc")
        E(f"global_load_dwordx4 v[204:207], v[{T1}:{T2}], off" if cfg["codepf"] == 5 else f"global_load_dword v204, v[{T1}:{T2}], off")
        E("L_reg0:")
    if lite or cfg.get("diag") is not None: E("s_memrealtime s[100:101]")
    E("v_lshrrev_b32 v1, 6, v0")
    E("s_cmp_ge_u32 s2, 256")
    E("s_cbranch_scc1 L_end")
    E("v_readfirstlane_b32 s20, v1")
    E("s_and_b32 s14, s2, 7\ns_lshr_b32 s15, s2, 3")
    E("s_and_b32 s35, s15, 3\ns_lshr_b32 s19, s15, 2")
    E("s_and_b32 s32, s14, 1\ns_lshl2_add_u32 s16, s32, s35")
    E("s_lshr_b32 s84, s14, 1\ns_mul_i32 s17, s84, 7\ns_add_u32 s17, s17, s19")
    if not XROT: E("s_mov_b32 s84, s17")
    E("s_lshl2_add_u32 s18, s14, s35")
    E("s_and_b32 s21, s20, 3")
    if cfg.get("nbswap", 1):
        E("s_mov_b32 s34, s19\ns_cmp_eq_u32 s19, 3\ns_cselect_b32 s19, 7, s19\ns_cmp_eq_u32 s34, 7\ns_cselect_b32 s19, 3, s19\ns_cselect_b32 s34, 0, s34")
    else:
        E("s_cmp_eq_u32 s19, 7\ns_cselect_b32 s34, 0, s19")
    if cfg.get("codepf") == 4:
        E("s_cbranch_scc0 L_reg")
        E(f"s_getpc_b64 s[{SH}:{SH+1}]")
        E("L_pc:")
        E(f"v_lshlrev_b32 v{T1}, 4, v0")
        E(f"v_lshl_add_u32 v{T1}, s35, 13, v{T1}")
        E(f"v_min_u32 v{T1}, L_codeend-L_pc-16, v{T1}")
        E(f"v_mov_b32 v{T2}, s{SH+1}")
        E(f"v_add_co_u32 v{T1}, vcc, s{SH}, v{T1}")
        E("s_nop 1")
        E(f"v_addc_co_u32 v{T2}, vcc, 0, v{T2}, vcc")
        E(f"global_load_dwordx4 v[204:207], v[{T1}:{T2}], off")
        E("s_branch L_spare")
        E("L_reg:")
    else:
        E("s_cbranch_scc1 L_spare")
    E(f"v_and_b32 v{LANE}, 63, v0")
    CM = cfg.get("cmode", 0)
    if CM == 0: E("s_lshl1_add_u32 s36, s35, s32")
    elif CM == 1: E("s_lshr_b32 s36, s35, 1\ns_mul_i32 s36, s36, 3\ns_lshl1_add_u32 s36, s32, s36\ns_add_u32 s36, s36, s32")
    elif CM == 2: E("s_mul_i32 s36, s32, 3")
    elif CM == 3: E("s_min_u32 s36, s14, 6")
    if cfg.get("crot", 1) == 1: E("s_lshr_b32 s32, s17, 2\ns_add_u32 s36, s36, s32")
    if cfg.get("crot", 1) == 2: E("s_add_u32 s36, s36, s34")
    if cfg.get("c3last", 1):
        E("s_sub_u32 s32, s36, 7\ns_min_u32 s36, s36, s32\ns_lshl_b32 s36, s36, 2")
        E("s_mov_b32 s96, 0x07654210\ns_mov_b32 s97, 0x65421\ns_lshr_b64 s[96:97], s[96:97], s36")
        E("s_and_b32 s36, s96, 0x0fffffff\ns_or_b32 s36, s36, 0x30000000")
    else:
        E("s_and_b32 s36, s36, 7\ns_lshl_b32 s36, s36, 2")
        E("s_mov_b32 s96, 0x76543210\ns_mov_b32 s97, s96\ns_lshr_b64 s[96:97], s[96:97], s36\ns_mov_b32 s36, s96")
    E("s_lshl_b32 s39, s16, 18")
    assert SP in ([0, 1], [0, 1, 2, 3])
    E("s_and_b32 s37, s21, 1")
    E(("s_lshl1_add_u32 s3, s84, s37" if NS == 2 else "s_lshl1_add_u32 s3, s84, s21") + "\ns_and_b32 s3, s3, 7\ns_lshl_b32 s3, s3, 15\ns_add_u32 s3, s3, s39")
    E("s_mul_i32 s37, s37, 114688\ns_lshl_b32 s32, s17, 7\ns_add_u32 s37, s37, s32")
    E("s_and_b32 s22, s21, 2")
    E("s_lshl_b32 s33, s21, 12")
    E("s_cmp_lt_u32 s20, 4")
    E("s_cselect_b32 s37, s3, s37")
    E("s_cselect_b32 s38, 1, 1792")
    E("s_cselect_b32 s12, 3, 1\ns_cselect_b32 s13, 0, 2")
    E(f"s_cselect_b32 s23, 0, {'s22' if SH1 == 32 else '0'}")
    E(f"s_cselect_b32 s92, 64, {0 if SH1 == 32 else 32}")
    E("s_cselect_b32 s93, 2, 7")
    E(f"s_cselect_b32 s{SX+2}, 8, 7")
    E("s_cselect_b32 s94, 0, 0x10000")
    E("s_cselect_b32 s95, s22, 0" if NS == 2 else "s_mov_b32 s95, 0")
    E(f"s_lshl_b32 s38, s38, 7\ns_lshl_b32 s93, s93, 9\ns_lshl_b32 s{SX+2}, s{SX+2}, 18")
    E(f"v_lshrrev_b32 v{T1}, 3, v{LANE}")
    E(f"v_lshrrev_b32 v{T2}, 4, v{LANE}")
    E(f"v_and_b32 v{T2}, s12, v{T2}")
    E(f"v_lshlrev_b32 v{T2}, s13, v{T2}")
    E(f"v_or_b32 v{T2}, s23, v{T2}")
    E(f"v_xor_b32 v{T2}, v{T2}, v{LANE}")
    E(f"v_and_b32 v{T2}, 7, v{T2}")
    E(f"v_mul_u32_u24 v{T1}, s93, v{T1}")
    E(f"v_lshl_add_u32 v{VX}, v{T2}, 4, v{T1}")
    E("s_lshl_b32 s93, s93, 3\ns_sub_u32 s93, s93, 1024")
    E(f"v_xor_b32 v{VX+1}, s92, v{VX}")
    E(f"v_add_u32 v{VX+1}, s93, v{VX+1}")
    E("s_lshl_b32 s93, s93, 1")
    E(f"v_add_u32 v{VX+2}, s93, v{VX}")
    E(f"v_add_u32 v{VX+3}, s93, v{VX+1}")
    E(f"s_mov_b32 s{SX+3}, 0x20000")
    E("s_add_u32 s33, s33, s94")
    E("s_lshl_b32 s95, s95, 1\ns_lshr_b32 s32, s36, s95\ns_and_b32 s32, s32, 7\ns_mul_i32 s32, s32, s38\ns_add_u32 s32, s32, s37")
    E("s_mov_b32 m0, s33")
    E("s_cmp_eq_u32 s22, 0")
    E("s_waitcnt lgkmcnt(0)")
    E(f"s_cselect_b32 s{SX}, s6, s8\ns_cselect_b32 s{SX+1}, s7, s9")
    E("s_cmp_lt_u32 s20, 4")
    E(f"s_cselect_b32 s{SX}, s4, s{SX}\ns_cselect_b32 s{SX+1}, s5, s{SX+1}")
    for q in range(4): E(f"buffer_load_dwordx4 v{VX+q}, s[{SX}:{SX+3}], s32 offen offset:{1024*q} lds")
    E("s_cbranch_scc0 L_B")
    body = E.render()
    atext = wave(False, False)
    nstub = 0
    if cfg.get("pages", 0):
        lines = atext.split("\n")
        bars = [i for i, l in enumerate(lines) if l.strip() == "s_barrier"]
        sz = [isize(l.strip()) if l.strip() else 0 for l in lines]
        cumsz = [0]
        for x in sz: cumsz.append(cumsz[-1] + x)
        cuts = [bars[0]]
        if cfg["pages"] == 4:
            esz = 0x300 + sum(isize(l.strip()) for l in body.split("\n") if l.strip())
            cuts = [[b for b in bars if esz + cumsz[b] <= 4070][-1]]
            if "cut0" in cfg: cuts = [bars[cfg["cut0"]]]
        while cumsz[-1] - cumsz[cuts[-1]] > 4080:
            ok = [b for b in bars if b > cuts[-1] and cumsz[b] - cumsz[cuts[-1]] <= 4080]
            cuts.append(ok[-1])
        touch["at"] = [bars.index(c) for c in cuts]
        out = []
        for i, l in enumerate(lines):
            if i in cuts:
                out += [f"    s_branch L_pg{nstub}", ".p2align 12", f"L_stub{nstub}:", "    s_setpc_b64 s[98:99]", f"L_pg{nstub}:"]
                nstub += 1
            out.append(l)
        atext = "\n".join(out)
        tt = ""
        for p_ in range(1, nstub):
            tt += f"    s_cmp_eq_u32 s21, {(p_ - 1) % 4}\n    s_cbranch_scc0 L_nta{p_}\n    s_call_b64 s[98:99], L_stub{p_}\nL_nta{p_}:\n"
        atext = atext.replace("    @TOUCH@\n", tt)
    touch["n"] = nstub
    body += ".p2align 3\n" + atext
    def bpage(t, nm):
        if not cfg.get("bpages", 0): return t
        i_ = t.index("    s_setprio")
        return t[:i_] + f"    s_branch L_bp{nm}\n.p2align 12\nL_bp{nm}:\n" + t[i_:]
    if off:
        body += ".p2align 6\nL_B:\n    s_cmp_eq_u32 s22, 0\n    s_cbranch_scc0 L_B1\n" + bpage(wave(True, False, 0), 0)
        body += ".p2align 6\nL_B1:\n" + bpage(wave(True, False, 1), 1)
    else:
        body += ".p2align 6\nL_B:\n" + bpage(wave(True, False, 0), 0)
    body += ".p2align 6\nL_spare:\n    s_cmp_lt_u32 s20, 4\n    s_cbranch_scc0 L_Bs\n"
    body += wave(False, True)
    body += ".p2align 6\nL_Bs:\n" + wave(True, True)
    body += "L_end:\n    s_endpgm\nL_codeend:\n"
    return single_file(body, 256, 512, 163840, 256)

R = "r"
DEF = dict(sp=[0, 2], al=[3, 4, 5, 6, 7], bgroups=[(1, [1, 2, 3, 4, 5, 6, 7, 8])],
           sched={("W", 1): -1, ("Y", 0): -1, ("X", 1): 0, ("W", 2): 0, ("W", 3): 1, ("X", 2): 2, ("W", 4): 1, ("W", 5): 2, ("Y", 1): 3, ("X", 3): 4,
                  ("W", 6): 3, ("W", 7): 4, ("X", 4): 5, ("X", 5): 6},
           dsched={0: 6, 1: 7, 2: 8, 3: 9, 4: 10, 5: 11, 6: 12, 7: -2, 8: -1, 9: 0, 10: 1, 11: 1, 12: 2, 13: 2},
           stage={9: 11, 10: 13, 11: 14, 12: 14, 13: 15},
           nobar2=(6,), eon=4, eon2=5, eoff=45, prio=(1, 2), prio_at={9: 0, (0,): 2},
           tag_pts=((9, 99), (10, 99)),
           flag_pts={1: (12, 0), 3: (14, 0), 5: (-1, 0, R), 6: (1, 0, R), 7: (3, 0, R)},
           pgroups=[(0, 3), (3, 7), (7, 10), (10, 12), (12, 14)],
           ppts=[((-4, 0, R), (-3, 99, R)), ((-2, 0, R), (-1, 99, R)), ((0, 99, R), (1, 99, R)), ((2, 99, R), (3, 99, R)), ((4, 0, R), (4, 99, R))],
           ppts_s=[((-3, 99, R), (-3, 99, R)), ((-2, 99, R), (-2, 99, R)), ((1, 99, R), (1, 99, R)), ((3, 99, R), (3, 99, R)), ((4, 99, R), (4, 99, R))],
           hper_at={4: 1, 5: 1},
           hmax={-2: 5, -1: 12, 0: 20, 1: 28, 2: 36, 3: 40, 4: 56})
def emit(variants):
    for k, v in variants.items():
        open(k + ".s", "w").write(build(dict(v)))
        open(k + "_lt.s", "w").write(build(dict(v, lite=True)))
NB = dict(DEF, sp=[0, 1], al=[2, 3, 4, 5, 6, 7], bgroups=[],
          sched={("W", 1): -1, ("X", 1): -1, ("W", 2): 0, ("W", 3): 0, ("W", 4): 1, ("X", 2): 1, ("W", 5): 2, ("W", 6): 3, ("X", 3): 3, ("W", 7): 4, ("X", 4): 5, ("X", 5): 6},
          dblk=[3, 8, 9, 4, 5, 6, 7, 1, 2, 0],
          dsched={0: 6, 1: 7, 2: 8, 3: 9, 4: 10, 5: 11, 6: 12, 7: -2, 8: -1, 9: 0, 10: 1, 11: 1, 12: 2, 13: 2},
          stage={9: 13, 10: 14, 11: 15, 12: 16, 13: 17},
          prio=(1, 0), prio_at={}, tag_pts=((8, 99), (9, 99)),
          flag_pts={1: (14, 0), 3: (17, 0), 5: (0, 0, R), 6: (2, 0, R), 7: (3, 0, R)},
          ppts=[((-4, 0, R), (-3, 99, R)), ((-2, 99, R), (-1, 99, R)), ((1, 0, R), (1, 99, R)), ((3, 0, R), (3, 99, R)), ((4, 0, R), (4, 99, R))],
          eon_at={16: 6, 17: 6, 18: 6, 19: 6}, eon2=6)
NC = dict(NB, flag_pts={1: (13, 0), 3: (16, 0), 5: (-1, 0, R), 6: (1, 0, R), 7: (3, 0, R)},
          ppts=[((-4, 0, R), (-3, 99, R)), ((-2, 99, R), (-1, 99, R)), ((0, 99, R), (1, 99, R)), ((2, 99, R), (3, 99, R)), ((4, 0, R), (4, 99, R))])
ND = dict(NC, dsched={0: 8, 1: 9, 2: 10, 3: 11, 4: 12, 5: 13, 6: 14, 7: -2, 8: -1, 9: 0, 10: 1, 11: 1, 12: 2, 13: 2}, stage={9: 15, 10: 16, 11: 17, 12: 14, 13: 16})
NE = dict(NC, dsched={0: 4, 1: 6, 2: 7, 3: 7, 4: 9, 5: 10, 6: 11, 7: -2, 8: -1, 9: 0, 10: 1, 11: 1, 12: 2, 13: 2}, stage={9: 12, 10: 13, 11: 14, 12: 15, 13: 16},
          spare_order="wx", look=6)
NF = dict(NE, hold=(0, 2, 4), aflag={3: 1, 5: 3, 6: 5, 7: 6}, atag=(7, 8), flag_pts={7: (3, 0, R)})
SG = {("W", 1): -1, ("X", 1): -1, ("W", 2): 0, ("W", 3): 0, ("W", 4): 1, ("X", 2): 1, ("W", 5): 2, ("X", 3): 2, ("W", 6): 3, ("W", 7): 4, ("X", 4): 4, ("X", 5): 5}
NG = dict(NE, hold=(0, 2, 4), nobar=(6, 7), sched=SG, blk={("X", 5): 3},
          dblk=[8, 9, 4, 5, 6, 7, 3, 1, 2, 0],
          dsched={0: 5, 1: 5, 2: 8, 3: 8, 4: 10, 5: 11, 6: 12, 7: -2, 8: -1, 9: 0, 10: 1, 11: 1, 12: 2, 13: 2},
          stage={9: 13, 10: 14, 11: 15, 12: 16, 13: 17})
OF = dict(NC, look=6, off={0: 3, 2: 3, 3: 3, 4: 3, 5: 3, 6: 3, 7: 3}, eon=3, eon_at={}, eoff=46,
          dblk=[8, 9, 4, 5, 6, 7, 1, 2, 0, 3],
          dsched={0: 6, 1: 7, 2: 8, 3: 9, 4: 10, 5: 11, 6: 18, 7: -1, 8: 0, 9: 2, 10: 1, 11: 1, 12: 2, 13: 3},
          stage={8: 12, 9: 13, 10: 14, 11: 15, 12: 16, 13: 17},
          tag_pts=((7, 99), (8, 99)), eoff_at={21: 90}, epi_first=(21,), prio_at={21: 2},
          flag_pts={1: (12, 99), 3: (16, 50), 5: (0, 50, R), 6: (2, 0, R), 7: (3, 0, R)},
          ppts=[((-5, 99, R), (-4, 99, R)), ((-1, 0, R), (-1, 99, R)), ((1, 50, R), (1, 99, R)), ((3, 0, R), (3, 99, R)), ((4, 0, R), (4, 99, R))])
O1 = dict(NC, look=6, off={0: 7}, eon=3, eoff=30, mix=1, tag_pts=((7, 99), (8, 99)),
          flag_pts={1: (13, 99), 3: (16, 0), 5: (-1, 0, R), 6: (1, 0, R), 7: (3, 0, R)}, eon_at={16: 5, 17: 5, 18: 5, 19: 5})
T1_ = dict(NE, hold=(0, 2, 4), tag_pts=((6, 99), (11, 99)), mix=1)
T2_ = dict(NC, look=6, tag_pts=((6, 99), (11, 99)), mix=1)
SE = {("W", 1): -1, ("X", 1): -1, ("W", 2): 0, ("W", 3): 0, ("W", 4): 1, ("X", 2): 1, ("W", 5): 2, ("W", 6): 3, ("X", 3): 3, ("W", 7): 4, ("X", 4): 5, ("X", 5): 5, ("X", 6): 6}
E1 = dict(T2_, defer=0, es=9, xring=4, sched=SE, look=8, look2=7,
          dblk=[8, 9, 4, 5, 6, 7, 0, 1, 2, 3],
          dsched={0: 6, 1: 7, 2: 8, 3: 9, 4: 10, 5: 11, 6: 17, 7: -2, 8: -1, 9: 0, 10: 1, 11: 1, 12: 2, 13: 2},
          stage={9: 12, 10: 13, 11: 14, 12: 15, 13: 16})
ORD = [0, 4, 7, 11, 1, 5, 8, 12, 2, 6, 9, 13, 3, 10]
def inter(base, start, xr4):
    ds = dict(base["dsched"]); stg = {}
    for n, j in enumerate(ORD):
        if j >= (6 if xr4 else 7): stg[j] = start + n
        else: ds[j] = start + n
    return dict(base, dsched=ds, stage=stg)
if __name__ == "__main__":
    B0_ = dict(T2_, defer=0, sh1=16, look=6, dblk=[3, 4, 5, 6, 8, 7, 9, 1, 2, 0])
    I1 = dict(inter(B0_, 6, False), split16=1, eon_at={}, eon2=4)
    O2 = dict(I1, off={0: 9}, eon=3, eoff=30, tag_pts=((6, 99), (8, 99)), flag_pts={1: (13, 99), 3: (16, 0), 5: (0, 0, R), 6: (2, 0, R), 7: (3, 0, R)})
    O3 = dict(O2, eon_at={16: 4, 17: 4, 18: 4, 19: 4}, flag_pts={1: (13, 99), 3: (16, 0), 5: (-1, 0, R), 6: (1, 0, R), 7: (3, 0, R)})
    P_ = dict(I1, pages=3, bpages=1)
    F1 = dict(P_, eon2=99, flag_pts={1: (13, 0), 3: (16, 0), 5: (-1, 0, R), 6: (1, 0, R), 7: (2, 0, R)},
              ppts=[((-4, 0, R), (-3, 99, R)), ((-2, 99, R), (-1, 99, R)), ((0, 99, R), (1, 99, R)), ((2, 99, R), (3, 99, R)), ((3, 99, R), (4, 99, R))])
    F2 = dict(F1, eon2=12)
    F3 = dict(F1, flag_pts={1: (13, 0), 3: (16, 0), 5: (-1, 0, R), 6: (2, 0, R), 7: (2, 0, R)},
              ppts=[((-4, 0, R), (-3, 99, R)), ((-2, 99, R), (-1, 99, R)), ((0, 99, R), (1, 99, R)), ((3, 0, R), (3, 99, R)), ((3, 99, R), (4, 99, R))])
    F4 = dict(F1, dsched={**F1["dsched"], 10: 1, 11: 2, 12: 3, 13: 4})
    def reord(base, order, start, staged):
        ds = dict(base["dsched"]); stg = {}
        for n, j in enumerate(order):
            if j is None: continue
            if j in staged: stg[j] = start + n
            else: ds[j] = start + n
        return dict(base, dsched=ds, stage=stg)
    G1 = reord(F4, [0, 4, 11, 9, 1, 5, 12, None, 2, 6, 13, 3], 6, (9, 11, 12, 13))
    G2 = dict(F4, hmax={-2: 3, -1: 8, 0: 16, 1: 26, 2: 34, 3: 40, 4: 56}, hper_at={1: 1, 4: 1, 5: 1})
    G3 = dict(F4, eon2=12)
    G4 = dict(F4, eon_at={16: 5, 17: 5, 18: 3, 19: 3})
    G5 = dict(G1, hmax=G2["hmax"], hper_at=G2["hper_at"], eon2=12)
    G6 = dict(F4, nobar=(5, 7), sched={**F4["sched"], ("X", 4): 4}, dsched={**F4["dsched"]})
    X1 = dict(F4, xrot=1, spare_order="pw12b3", crot=2)
    X2 = dict(X1, spare_order="pw1b23")
    ST = (7, 8, 9, 10, 11, 12, 13)
    def fix(c):
        return dict(c, dsched={**c["dsched"], **{j: F4["dsched"][j] for j in ST}})
    Y1 = fix(reord(X1, [0, None, 4, 7, 11, 1, 5, 8, 12, 2, 6, 9, 13, 3, 10], 4, ST))
    Y2 = fix(reord(X1, ORD, 5, ST))
    Y3 = dict(X1, nobar=(5, 7), sched={**F4["sched"], ("X", 4): 4})
    Y4 = dict(Y2, nobar=(3, 5, 7), sched={("W", 1): -1, ("X", 1): -1, ("W", 2): 0, ("W", 3): 0, ("W", 4): 1, ("X", 2): 1, ("W", 5): 2, ("X", 3): 2, ("W", 6): 4, ("W", 7): 4, ("X", 4): 4, ("X", 5): 6})
    Y5 = dict(X1, bk=4)
    Z = dict(X1, spare_order="pwm", pages=0, bpages=0)
    S4 = {("W", 1): -1, ("X", 1): -1}
    for i_ in range(2, 8): S4[("W", i_)] = i_ - 2; S4[("X", i_)] = i_ - 2
    N4 = dict(Z, sp=[0, 1, 2, 3], al=[4, 5, 6, 7], sched=S4, eon=6, tag_pts=((5, 99), (9, 99)),
              flag_pts={1: (12, 0), 3: (13, 99), 5: (-1, 0, R), 6: (1, 0, R), 7: (2, 0, R)},
              ppts=[((-3, 0, R), (-3, 99, R)), ((-2, 99, R), (-1, 99, R)), ((0, 99, R), (1, 99, R)), ((2, 99, R), (3, 99, R)), ((3, 99, R), (4, 99, R))])
    def pack(base, slots):
        ds = dict(base["dsched"]); stg = {}
        for st_, js in slots.items():
            for j in js:
                if j >= 7: stg[j] = st_
                else: ds[j] = st_
        return dict(base, dsched=ds, stage=stg)
    N4a = pack(N4, {6: [0], 7: [4], 8: [7, 11], 9: [1], 10: [5, 8], 11: [12, 2], 12: [6, 9], 13: [13, 3], 14: [10]})
    N4b = pack(N4, {6: [0], 7: [4], 8: [11], 9: [1], 10: [5], 11: [12], 12: [2], 13: [6], 14: [3]})
    D1 = dict(Z, defer=1, late_at=({0: 999}, {3: 30, 5: 999}))
    D2 = dict(Z, defer=1, late_at=({0: 80, 1: 40, 2: 15, 4: 999}, {3: 30, 5: 999}))
    D3 = dict(Z, defer=1, late_at=({1: 40, 2: 20, 4: 20, 6: 20, 7: 20, 8: 999}, {3: 30, 5: 999}))
    D4 = dict(D2, cmode=1, crot=0)
    D5 = dict(D2, spare_order="pw")
    D6 = dict(Z, defer=1, late_at=({0: 90, 1: 999}, {1: 999}))
    D7 = dict(Z, defer=1, late_at=({0: 999}, {1: 999}))
    SQ = {("W", 1): -1, ("W", 2): -1, ("X", 1): 0, ("W", 3): 0, ("W", 4): 1, ("X", 2): 1, ("W", 5): 2, ("W", 6): 3, ("X", 3): 3, ("W", 7): 4, ("X", 4): 5, ("X", 5): 6}
    D8 = dict(D6, sched=SQ)
    D9 = dict(D6, pages=3)
    def keep(c): return dict(c, dsched={**c["dsched"], **{j: Z["dsched"][j] for j in range(7, 14)}})
    K1 = keep(reord(Z, [0, 4, 11, 10, 1, 5, 12, 9, 2, 6, 13, 3], 6, (9, 10, 11, 12, 13)))
    K2 = keep(reord(Z, [0, 4, 11, None, 1, 5, 12, None, 2, 6, 13, 3], 6, (11, 12, 13)))
    K3 = dict(K1, dsched={**K1["dsched"], 9: 0, 10: 1, 11: 1, 12: 2, 13: 2}, nobar2=(6,))
    K4 = dict(K1, eon2=16)
    K5 = dict(K1, hmax={-2: 6, -1: 12, 0: 18, 1: 28, 2: 36, 3: 40, 4: 56}, hper_at={1: 1, 4: 1, 5: 1})
    K6 = dict(K1, prio=(2, 0))
    ST7 = (7, 8, 9, 10, 11, 12, 13)
    L1 = keep(reord(Z, [0, 7, 4, 1, 8, 5, 2, 9, 6, 3, 10, 11, 12, 13], 6, ST7))
    L2 = keep(reord(Z, [0, 7, 4, 1, 8, 5, 2, 9, 6, 3, 10, 11, 12, 13], 5, ST7))
    L3 = keep(reord(Z, [0, None, 4, 1, None, 5, 2, 9, 6, 3, 10, 11], 6, (9, 10, 11)))
    L4 = keep(reord(Z, [0, 4, 1, 5, 2, 9, 6, 3, 10, 11, 12, 13], 6, (9, 10, 11, 12, 13)))
    L5 = dict(L1, pages=3)
    W1 = dict(L1, spare_order="pwmx")
    W2 = dict(W1, pages=4, cut0=4, tdist=4, bpages=1)
    W3 = dict(W2, tk=8, tb=3)
    W4 = dict(W3, o64=1, outsc="sc1")
    W5 = dict(W4, elast=3)
    W6 = dict(W5, es=21, dsched={**W5["dsched"], 10: 1, 11: 2, 12: 2, 13: 3})
    W7 = dict(W5, es=20, dsched={**W5["dsched"], 10: 1, 11: 2, 12: 2, 13: 3})
    W8 = dict(W5, estart=3)
    W9 = dict(W5, flag_pts={1: (13, 0), 3: (16, 0), 5: (0, 0, R), 6: (2, 0, R), 7: (2, 0, R)},
              ppts=[((-4, 0, R), (-3, 99, R)), ((-2, 99, R), (-1, 99, R)), ((1, 0, R), (1, 99, R)), ((3, 0, R), (3, 99, R)), ((3, 99, R), (4, 99, R))])
    def slots(base, sl, staged):
        ds = dict(base["dsched"]); stg = {}
        for st_, js in sl.items():
            for j in js:
                if j in staged: stg[j] = st_
                else: ds[j] = st_
        return dict(base, dsched=ds, stage=stg)
    BF = dict(W5, al=[2, 3, 4, 6, 7], bgroups=[(5, [5, 6, 7, 8, 9, 10, 11, 12])], dblk=[3, 4, 5, 9, 6, 7, 8, 2, 0, 1],
              sched={**W5["sched"], ("Y", 0): 2, ("Y", 1): 7}, eoff=45, prio=(1, 0), tag_pts=((12, 99), (13, 50)),
              flag_pts={1: (13, 50), 3: (15, 99), 5: (-1, 99, R), 6: (1, 0, R), 7: (2, 0, R)},
              ppts=[((-4, 99, R), (-3, 99, R)), ((-1, 0, R), (-1, 99, R)), ((0, 99, R), (1, 99, R)), ((2, 99, R), (3, 99, R)), ((3, 99, R), (4, 99, R))])
    BF1 = slots(BF, {6: [0], 8: [7], 9: [4], 10: [1], 11: [8], 12: [5], 13: [2], 14: [9, 6], 15: [3, 10], 16: [11, 12], 17: [13]}, (7, 8, 9, 10, 11, 12, 13))
    FIN = dict(W5, codepf=5)
    BG = dict(FIN, al=[2, 3, 4, 5, 7], bgroups=[(6, [8, 9, 10, 11, 12, 13, 14, 15])], dblk=[3, 4, 5, 9, 6, 7, 8, 2, 0, 1],
              sched={**FIN["sched"], ("Y", 0): 6, ("Y", 1): 9}, eoff=45, prio=(1, 0), tag_pts=((7, 99), (8, 0)), eon_at={16: 6, 17: 6},
              flag_pts={1: (13, 0), 3: (16, 0), 5: (1, 0, R), 6: (1, 99, R), 7: (2, 0, R)},
              ppts=[((-3, 99, R), (-2, 99, R)), ((-1, 50, R), (0, 99, R)), ((2, 0, R), (2, 99, R)), ((3, 0, R), (3, 99, R)), ((3, 99, R), (4, 99, R))],
              hmax={-1: 10, 0: 12, 1: 28, 2: 28, 3: 40, 4: 56}, hper_at={-1: 1, 1: 1, 3: 1, 4: 1, 5: 1})
    BG1 = slots(BG, {7: [0], 8: [4], 10: [1], 11: [5], 12: [2], 13: [6], 14: [10], 15: [11], 16: [3]}, (10, 11))
    BG1["dsched"].update({7: -2, 8: -1, 9: 0, 10: 1, 11: 2, 12: 2, 13: 3})
    BH = dict(FIN, al=[2, 3, 4, 6, 7], bgroups=[(5, [7, 8, 9, 10, 11, 12, 13, 14])], dblk=[3, 4, 5, 9, 6, 7, 8, 2, 0, 1],
              sched={**FIN["sched"], ("Y", 0): 5, ("Y", 1): 9}, eoff=60, prio=(1, 0), tag_pts=((6, 99), (7, 0)),
              flag_pts={1: (13, 0), 3: (16, 0), 5: (0, 0, R), 6: (1, 0, R), 7: (2, 0, R)},
              ppts=[((-4, 99, R), (-3, 99, R)), ((-1, 0, R), (-1, 99, R)), ((1, 0, R), (1, 99, R)), ((2, 99, R), (3, 99, R)), ((3, 99, R), (4, 99, R))])
    BH1 = slots(BH, {7: [0], 8: [4], 10: [1], 11: [5], 12: [2], 13: [6], 14: [10], 15: [], 16: [3]}, (10,))
    BH1["dsched"].update({7: -1, 8: -1, 9: 0, 10: 1, 11: 2, 12: 2, 13: 3})
    BI = dict(BG, tag_pts=((9, 0), (9, 99)),
              ppts=[((-3, 0, R), (-3, 99, R)), ((-1, 0, R), (-1, 99, R)), ((1, 99, R), (2, 99, R)), ((3, 0, R), (3, 99, R)), ((3, 99, R), (4, 99, R))],
              flag_pts={1: (13, 0), 3: (15, 99), 5: (1, 0, R), 6: (1, 99, R), 7: (2, 0, R)},
              hmax={-2: 5, -1: 12, 0: 20, 1: 28, 2: 28, 3: 40, 4: 56}, hper_at={3: 1, 4: 1, 5: 1}, eoff=30)
    BI1 = slots(BI, {5: [0], 7: [4], 8: [1], 10: [5], 11: [2], 12: [6], 13: [10], 14: [11], 16: [3]}, (10, 11))
    BI1["dsched"].update({7: -2, 8: -1, 9: 0, 10: 1, 11: 1, 12: 2, 13: 2})
    BI2 = slots(BI, {5: [0], 7: [4], 8: [1], 10: [5], 11: [2], 12: [6], 13: [7], 14: [8], 16: [3], 17: [12, 13]}, (7, 8, 12, 13))
    BI2["dsched"].update({7: -2, 8: -1, 9: 0, 10: 1, 11: 2, 12: 2, 13: 3})
    SA = {("W", 1): -1, ("X", 1): 0, ("W", 2): 0, ("W", 3): 1, ("W", 4): 1, ("X", 2): 2, ("W", 5): 2, ("W", 6): 3, ("X", 3): 4, ("W", 7): 4, ("X", 4): 5, ("X", 5): 6}
    SB = {("W", 1): -1, ("W", 2): -1, ("X", 1): -1, ("W", 3): 0, ("X", 2): 0, ("W", 4): 1, ("W", 5): 2, ("X", 3): 2, ("W", 6): 3, ("W", 7): 4, ("X", 4): 4, ("X", 5): 6}
    L6 = keep(reord(FIN, [0, 7, 4, 1, 8, 5, 2, 9, 6, 3, 10, 11, 12], 7, (7, 8, 9, 10, 11, 12)))
    Q = dict(FIN, eon=12, mix=0)
    Q1 = dict(Q, flag_pts={1: (12, 0), 3: (15, 0), 5: (-1, 0, R), 6: (1, 0, R), 7: (2, 0, R)},
              ppts=[((-5, 0, R), (-4, 99, R)), ((-3, 0, R), (-2, 99, R)), ((0, 99, R), (1, 99, R)), ((2, 99, R), (3, 99, R)), ((3, 99, R), (4, 99, R))])
    Q2 = dict(Q1, hmax={-2: 4, -1: 16, 0: 22, 1: 28, 2: 36, 3: 40, 4: 56}, hper_at={-1: 1, 4: 1, 5: 1})
    Q3 = slots(Q2, {6: [0], 7: [7], 8: [4, 1], 10: [8, 5], 11: [2], 12: [9, 6], 13: [3], 14: [10, 11], 16: [12, 13]}, ST7)
    Q4 = dict(Q3, flag_pts={1: (12, 0), 3: (15, 0), 5: (-2, 99, R), 6: (0, 99, R), 7: (2, 0, R)},
              ppts=[((-5, 0, R), (-4, 99, R)), ((-3, 0, R), (-2, 99, R)), ((0, 0, R), (0, 99, R)), ((2, 0, R), (2, 99, R)), ((3, 99, R), (4, 99, R))],
              hmax={-2: 4, -1: 16, 0: 22, 1: 30, 2: 38, 3: 48, 4: 48, 5: 56}, hper_at={-1: 1, 5: 1})
    Q5 = dict(Q3, estart=2)
    U1 = dict(FIN, dsched={**FIN["dsched"], 7: 0, 8: 0, 9: 0})
    U2 = dict(U1, elast=1)
    U3 = dict(FIN, dsched={**FIN["dsched"], 7: -2, 8: 0, 9: 0}, eon_at={18: 170}, elast=1)
    U4 = dict(U2, eon_at={16: 8, 17: 8})
    U5 = dict(U2, eon_at={16: 170, 18: 170})
    V = dict(U1, sh2=16, elast=6, eon2=200)
    VC = dict(V, rsplit=1, es=21, dsched={**V["dsched"], 10: 1, 11: 2, 12: 2, 13: 3})
    VD_ = dict(VC, f1=1, phalf=1)
    VU = dict(U1, f1=1, phalf=1)
    CF = dict(VU, al=[2, 3, 4, 5, 7], bgroups=[(6, [8, 9, 10, 11, 12, 13, 14, 15])], dblk=[3, 4, 5, 9, 6, 7, 8, 2, 0, 1],
              sched={**FIN["sched"], ("Y", 0): 6, ("Y", 1): 9}, eoff=45, prio=(1, 0), tag_pts=((9, 0), (9, 99)), eon_at={16: 8},
              flag_pts={1: (13, 0), 3: (16, 0), 5: (0, 99, R), 6: (2, 0, R), 7: (2, 0, R)},
              ppts=[((-3, 0, R), (-3, 99, R)), ((-1, 0, R), (-1, 99, R)), ((1, 50, R), (1, 99, R)), ((3, 0, R), (3, 99, R)), ((3, 99, R), (4, 99, R))],
              hmax={-2: 5, -1: 12, 0: 20, 1: 28, 2: 36, 3: 40, 4: 56}, hper_at={4: 1, 5: 1})
    CF1 = slots(CF, {7: [0], 8: [4], 10: [1], 11: [5], 12: [2], 13: [6], 14: [10], 15: [11], 16: [3]}, (10, 11))
    CF1["dsched"].update({7: -1, 8: 0, 9: 0, 10: 1, 11: 1, 12: 2, 13: 3})
    CF2 = slots(CF, {7: [0], 8: [7], 10: [4], 11: [1], 12: [8], 13: [5], 14: [2], 15: [6], 16: [3], 17: [12, 13]}, (7, 8, 12, 13))
    CF2["dsched"].update({7: 0, 8: 0, 9: 0, 10: 1, 11: 2, 12: 2, 13: 3})
    CF3 = dict(CF1, flag_pts={1: (13, 0), 3: (16, 0), 5: (1, 0, R), 6: (2, 0, R), 7: (2, 0, R)},
               ppts=[((-3, 0, R), (-3, 99, R)), ((-1, 0, R), (-1, 99, R)), ((2, 0, R), (2, 99, R)), ((3, 0, R), (3, 99, R)), ((3, 99, R), (4, 99, R))],
               hmax={-2: 5, -1: 12, 0: 20, 1: 28, 2: 28, 3: 40, 4: 56}, hper_at={3: 1, 4: 1, 5: 1})
    emit({"v65b": VD_, "v66d": VU, "v68a": dict(VU, sh1=32), "v68b": dict(VD_, eon=3, off={}, flag_pts={1: (14, 0), 3: (17, 99), 5: (0, 0, R), 6: (1, 99, R), 7: (2, 0, R)}, eon_at={8: 4, 9: 4, 10: 4, 11: 4, 12: 4, 13: 4}),
          "v68c": dict(VD_, es=9, xring=4, sched=SE, dblk=[8, 4, 5, 6, 9, 7, 0, 1, 2, 3], stage={**VD_["stage"], 6: VD_["dsched"][6]}, dsched={**VD_["dsched"], 6: 17})})
```
